```python
import torch

def _softmax(x, axis=-1):
    return torch.softmax(x, dim=axis)
def _gelu(x):
    return torch.nn.functional.gelu(x, approximate="tanh")
def _silu(x):
    return torch.nn.functional.silu(x)
def _sigmoid(x):
    return torch.sigmoid(x)
def _layernorm(x, axis=-1, eps=1e-5):
    m = x.mean(dim=axis, keepdim=True)
    v = x.var(dim=axis, keepdim=True, unbiased=False)
    return (x - m) / torch.sqrt(v + eps)
def _scatter_add(tgt, idx, src, axis=0):
    return tgt.clone().index_add_(axis, idx, src)
def _segment_sum(src, seg, n):
    out = torch.zeros((n,) + src.shape[1:], dtype=src.dtype)
    return out.index_add_(0, seg, src)
def _pad(x, pw):
    flat = tuple(v for pair in reversed(pw) for v in pair)
    return torch.nn.functional.pad(x, flat)

kernel_name = 'parallel_sum__ssm_conv_s5__glu_gated_bilinear__prompt'

def setup_inputs():

    _w = (lambda a: (lambda t: t.to(torch.bfloat16) if t.is_floating_point() else t)(torch.as_tensor(a)))
    def _A_setup():
        B, S, D = 1, 2048, 640
        P = D
        Lambda_re = -0.5 * (lambda _x: torch.exp(torch.as_tensor(_x)))((lambda *s: torch.randn(*s, dtype=torch.bfloat16) * 0.2)(P))
        Lambda_im = (lambda *s: torch.randn(*s, dtype=torch.bfloat16) * 0.8)(P) * 1.0
        B_re = (lambda *s: torch.randn(*s, dtype=torch.bfloat16) * 0.2)(P, D) * (D ** -0.5)
        B_im = (lambda *s: torch.randn(*s, dtype=torch.bfloat16) * 0.2)(P, D) * (D ** -0.5)
        C_re = (lambda *s: torch.randn(*s, dtype=torch.bfloat16) * 0.2)(D, P) * (P ** -0.5)
        C_im = (lambda *s: torch.randn(*s, dtype=torch.bfloat16) * 0.2)(D, P) * (P ** -0.5)
        log_dt = (lambda *s: torch.randn(*s, dtype=torch.bfloat16) * 0.2)(P) * 0.3 - 2.0
        Dskip = (lambda *s: torch.randn(*s, dtype=torch.bfloat16) * 0.05)(D)
        return {
            "x": _w((lambda *s: torch.randn(*s, dtype=torch.bfloat16) * 0.05)(B, S, D)),
            "Lambda_re": _w(Lambda_re),
            "Lambda_im": _w(Lambda_im),
            "B_re": _w(B_re),
            "B_im": _w(B_im),
            "C_re": _w(C_re),
            "C_im": _w(C_im),
            "log_dt": _w(log_dt),
            "Dskip": _w(Dskip),
        }
    _A_in = _A_setup()

    def _B_setup():
        B, S, D, F = 1, 2048, 640, 1728
        return {
            "x": _w((lambda *s: torch.randn(*s, dtype=torch.bfloat16) * 0.05)(B, S, D)),
            "w_gate": _w((lambda *s: torch.randn(*s, dtype=torch.bfloat16) * 0.4)(D, F) * (D ** -0.5)),
            "w_up": _w((lambda *s: torch.randn(*s, dtype=torch.bfloat16) * 0.4)(D, F) * (D ** -0.5)),
            "w_down": _w((lambda *s: torch.randn(*s, dtype=torch.bfloat16) * 0.4)(F, D) * (F ** -0.5)),
        }
    _B_in = _B_setup()

    return {
        "A_x": _A_in["x"],
        "A_Lambda_re": _A_in["Lambda_re"],
        "A_Lambda_im": _A_in["Lambda_im"],
        "A_B_re": _A_in["B_re"],
        "A_B_im": _A_in["B_im"],
        "A_C_re": _A_in["C_re"],
        "A_C_im": _A_in["C_im"],
        "A_log_dt": _A_in["log_dt"],
        "A_Dskip": _A_in["Dskip"],
        "B_x": _B_in["x"],
        "B_w_gate": _B_in["w_gate"],
        "B_w_up": _B_in["w_up"],
        "B_w_down": _B_in["w_down"],
    }

def reference(A_x, A_Lambda_re, A_Lambda_im, A_B_re, A_B_im, A_C_re, A_C_im, A_log_dt, A_Dskip, B_x, B_w_gate, B_w_up, B_w_down):
    def _A_ref(x, Lambda_re, Lambda_im, B_re, B_im, C_re, C_im, log_dt, Dskip):
        Bsz, L, H = x.shape
        Lam = Lambda_re + 1j * Lambda_im
        Bmat = B_re + 1j * B_im
        Cmat = C_re + 1j * C_im
        dt = torch.exp(log_dt)
        Lam_bar = torch.exp(dt * Lam)
        B_bar = ((Lam_bar - 1.0) / Lam)[:, None] * Bmat
        Bu = torch.einsum("bld,pd->blp", x + 0j, B_bar)
        h = torch.zeros_like(Bu[:, 0, :])
        hs = []
        for t in range(L):
            h = Lam_bar[None, :] * h + Bu[:, t, :]
            hs.append(h)
        hseq = torch.stack(hs, 1)
        y = 2.0 * torch.einsum("blp,dp->bld", hseq, Cmat).real + x * Dskip[None, None, :]
        return y

    def _B_ref(x, w_gate, w_up, w_down):
        g = torch.einsum("bsd,df->bsf", x, w_gate)
        u = torch.einsum("bsd,df->bsf", x, w_up)
        h = g * u
        return torch.einsum("bsf,fd->bsd", h, w_down)

    x = A_x
    xn = _layernorm(x, axis=-1)
    return x + _A_ref(xn, A_Lambda_re, A_Lambda_im, A_B_re, A_B_im, A_C_re, A_C_im, A_log_dt, A_Dskip) + _B_ref(xn, B_w_gate, B_w_up, B_w_down)
```

```python
class Asm:
    def __init__(self):
        self.lines = []
        self.vm = []
        self.nlabel = 0
    def __call__(self, s):
        for l in s.strip("\n").split("\n"):
            self.lines.append("  " + l.strip())
    def raw(self, s): self.lines.append(s)
    def c(self, s): self.lines.append("  ; " + s)
    def label(self, name): self.lines.append(name + ":")
    def newlabel(self, p="L"):
        self.nlabel += 1
        return f"{p}_{self.nlabel}"
    def vmem(self, s, tag):
        self(s); self.vm.append(tag)
    def vmwait(self, tags, extra=""):
        if not isinstance(tags, (list, set)): tags = [tags]
        last = -1
        for i, t in enumerate(self.vm):
            if t in tags: last = i
        if last < 0:
            if extra: self(f"s_waitcnt {extra}")
            return
        n = len(self.vm) - 1 - last
        assert n <= 63, n
        self(f"s_waitcnt vmcnt({n}) {extra}".strip())
        self.vm = self.vm[last + 1:]
    def vmwait_all(self, extra=""):
        self(f"s_waitcnt vmcnt(0) {extra}".strip()); self.vm = []
    def text(self): return "\n".join(self.lines) + "\n"

def vr(b, n=1, p="v"):
    return f"{p}{b}" if n == 1 else f"{p}[{b}:{b+n-1}]"
def ar(b, n=1): return vr(b, n, "a")
def sr(b, n=1): return vr(b, n, "s")

def kd(name, vgpr, sgpr, accum):
    return f""".p2align 6
.amdhsa_kernel {name}
  .amdhsa_next_free_vgpr {vgpr}
  .amdhsa_next_free_sgpr {sgpr}
  .amdhsa_accum_offset {accum}
  .amdhsa_group_segment_fixed_size 0
  .amdhsa_kernarg_size 128
  .amdhsa_user_sgpr_count 2
  .amdhsa_user_sgpr_kernarg_segment_ptr 1
  .amdhsa_system_sgpr_workgroup_id_x 1
  .amdhsa_float_denorm_mode_32 3
.end_amdhsa_kernel
"""

def srd(a, s, ptr, size, off=0):
    if off:
        a(f"s_add_u32 s{s}, s{ptr}, {off}")
        a(f"s_addc_u32 s{s+1}, s{ptr+1}, 0")
    else:
        a(f"s_mov_b32 s{s}, s{ptr}")
        a(f"s_mov_b32 s{s+1}, s{ptr+1}")
    a(f"s_mov_b32 s{s+2}, {size}")
    a(f"s_mov_b32 s{s+3}, 0x20000")
```

```python
from asmlib import *
L, D, P, F = 2048, 640, 640, 1728
NS2 = 94
WS_XN = 0
XN_BYTES = L * D * 2
WS_HP = 0x400000
HP_BYTES = 128 * NS2 * 1024
WS_WP = 0x1000000
WP_BYTES = 40 * NS2 * 1024
WS_AGG = 0x1400000
AGG_BYTES = 10 * 8 * 64 * 16
KA = dict(x=0, lre=8, lim=16, bre=24, bim=32, cre=40, cim=48, ldt=56, dsk=64, wg=80, wu=88, wd=96, out=104, dbg=112, ws=120)
LOG2E = 0x3fb8aa3b
INV2PI = 0x3e22f983

def bf16r(a, dst, src):
    a(f"v_cvt_pk_bf16_f32 v{dst}, v{src}, v{src}")
    a(f"v_lshlrev_b32 v{dst}, 16, v{dst}")

def lam_calc(a, vlr, vli, vld, t, out_lr, out_li, coef=None):
    a(f"""
    v_lshlrev_b32 v{vlr}, 16, v{vlr}
    v_lshlrev_b32 v{vli}, 16, v{vli}
    v_lshlrev_b32 v{vld}, 16, v{vld}
    v_mul_f32 v{t}, {LOG2E:#x}, v{vld}
    v_exp_f32 v{t}, v{t}
    s_nop 0
    """)
    bf16r(a, t, t)
    a(f"""
    v_mul_f32 v{t+1}, v{t}, v{vlr}
    v_mul_f32 v{t+2}, v{t}, v{vli}
    v_mul_f32 v{t+1}, {LOG2E:#x}, v{t+1}
    v_mul_f32 v{t+2}, {INV2PI:#x}, v{t+2}
    v_exp_f32 v{t+1}, v{t+1}
    v_fract_f32 v{t+2}, v{t+2}
    s_nop 0
    v_cos_f32 v{t+3}, v{t+2}
    v_sin_f32 v{t+4}, v{t+2}
    s_nop 0
    v_mul_f32 v{out_lr}, v{t+1}, v{t+3}
    v_mul_f32 v{out_li}, v{t+1}, v{t+4}
    """)
    if coef:
        cr, ci = coef
        a(f"""
        v_add_f32 v{t}, -1.0, v{out_lr}
        v_mul_f32 v{t+1}, v{vlr}, v{vlr}
        v_fmac_f32 v{t+1}, v{vli}, v{vli}
        v_rcp_f32 v{t+1}, v{t+1}
        v_mul_f32 v{t+2}, v{t}, v{vlr}
        v_fmac_f32 v{t+2}, v{out_li}, v{vli}
        v_mul_f32 v{t+3}, v{out_li}, v{vlr}
        v_fma_f32 v{t+3}, -v{t}, v{vli}, v{t+3}
        v_mul_f32 v{cr}, v{t+2}, v{t+1}
        v_mul_f32 v{ci}, v{t+3}, v{t+1}
        """)
```

```python
from gen_common import *

def gen_k0():
    a = Asm()
    a.raw(".p2align 8\n.type prep_kernel,@function\nprep_kernel:")
    a(f"""
    s_cmp_ge_u32 s2, 223
    s_cbranch_scc1 K0_END
    s_load_dwordx2 s[4:5], s[0:1], {KA['ws']}
    s_load_dwordx2 s[6:7], s[0:1], {KA['x']}
    s_load_dwordx4 s[32:35], s[0:1], {KA['lre']}
    s_load_dwordx4 s[36:39], s[0:1], {KA['cre']}
    s_load_dwordx2 s[40:41], s[0:1], {KA['ldt']}
    s_load_dwordx2 s[42:43], s[0:1], {KA['wd']}
    v_and_b32 v1, 63, v0
    v_lshrrev_b32 v2, 6, v0
    s_nop 0
    v_readfirstlane_b32 s3, v2
    s_waitcnt lgkmcnt(0)
    """)
    srd(a, 8, 6, XN_BYTES)
    srd(a, 12, 4, XN_BYTES, WS_XN)
    srd(a, 16, 4, WP_BYTES, WS_WP)
    srd(a, 20, 42, F * D * 2)
    srd(a, 24, 36, D * P * 2)
    srd(a, 28, 38, D * P * 2)
    srd(a, 44, 32, P * 2)
    srd(a, 48, 34, P * 2)
    srd(a, 52, 40, P * 2)
    srd(a, 56, 4, AGG_BYTES, WS_AGG)
    a("""
    s_cmp_ge_u32 s2, 222
    s_cbranch_scc1 K0_ZERO
    s_cmp_ge_u32 s2, 182
    s_cbranch_scc1 K0_CREP
    s_cmp_ge_u32 s2, 128
    s_cbranch_scc1 K0_WDOWN
    """)
    a(f"""
    s_lshl_b32 s60, s2, 4
    s_lshl_b32 s61, s3, 2
    s_add_u32 s60, s60, s61
    v_lshrrev_b32 v2, 4, v1
    v_add_u32 v2, s60, v2
    v_mul_u32_u24 v2, 1280, v2
    v_and_b32 v3, 15, v1
    v_lshl_add_u32 v2, v3, 4, v2
    """)
    for q in range(5):
        a(f"buffer_load_dwordx4 v[{10+4*q}:{13+4*q}], v2, s[8:11], 0 offen offset:{256*q}")
    for q in range(5):
        a(f"s_waitcnt vmcnt({4-q})")
        for e in range(4):
            s = 10 + 4*q + e; d = 30 + 8*q + 2*e
            a(f"v_lshlrev_b32 v{d}, 16, v{s}")
            a(f"v_and_b32 v{d+1}, 0xffff0000, v{s}")
    a("v_add_f32 v4, v30, v31\nv_add_f32 v5, v32, v33\nv_add_f32 v6, v34, v35\nv_add_f32 v7, v36, v37")
    for i in range(38, 70, 4):
        for k in range(4): a(f"v_add_f32 v{4+k}, v{4+k}, v{i+k}")
    a("v_add_f32 v4, v4, v5\nv_add_f32 v6, v6, v7\nv_add_f32 v4, v4, v6")
    def rowsum(v):
        for r in (8, 4, 2, 1):
            a("s_nop 1")
            a(f"v_add_f32_dpp v{v}, v{v}, v{v} row_ror:{r} row_mask:0xf bank_mask:0xf")
    rowsum(4)
    inv640 = 0x3acccccd
    a(f"v_mul_f32 v4, {inv640:#x}, v4")
    a("v_mov_b32 v5, 0\nv_mov_b32 v6, 0")
    for i in range(30, 70, 2):
        a(f"v_sub_f32 v8, v{i}, v4\nv_sub_f32 v9, v{i+1}, v4\nv_fmac_f32 v5, v8, v8\nv_fmac_f32 v6, v9, v9")
    a("v_add_f32 v5, v5, v6")
    rowsum(5)
    a(f"v_mul_f32 v5, {inv640:#x}, v5")
    bf16r(a, 4, 4); bf16r(a, 5, 5)
    a("v_add_f32 v5, 0x3727c5ac, v5")
    bf16r(a, 5, 5)
    a("v_sqrt_f32 v5, v5\ns_nop 0")
    bf16r(a, 5, 5)
    a("v_rcp_f32 v5, v5\ns_nop 0")
    for q in range(5):
        for e in range(4):
            s = 30 + 8*q + 2*e; d = 10 + 4*q + e
            a(f"""
            v_sub_f32 v8, v{s}, v4
            v_sub_f32 v9, v{s+1}, v4
            v_cvt_pk_bf16_f32 v8, v8, v9
            v_and_b32 v9, 0xffff0000, v8
            v_lshlrev_b32 v8, 16, v8
            v_mul_f32 v8, v8, v5
            v_mul_f32 v9, v9, v5
            v_cvt_pk_bf16_f32 v{d}, v8, v9
            """)
        a(f"buffer_store_dwordx4 v[{10+4*q}:{13+4*q}], v2, s[12:15], 0 offen offset:{256*q}")
    a("s_endpgm")
    a.label("K0_WDOWN")
    a(f"""
    s_sub_u32 s60, s2, 128
    s_mul_i32 s61, s60, {32*1280}
    s_mul_i32 s62, s3, 640
    """)
    for n in range(10):
        a(f"""
        v_add_u32 v2, s62, v1
        v_add_u32 v2, {64*n}, v2
        v_mul_u32_u24 v3, 52429, v2
        v_lshrrev_b32 v3, 22, v3
        v_mul_u32_u24 v4, 80, v3
        v_sub_u32 v4, v2, v4
        v_and_b32 v5, 7, v3
        v_lshlrev_b32 v5, 1, v5
        v_xor_b32 v4, v4, v5
        v_mul_u32_u24 v3, 1280, v3
        v_lshl_add_u32 v3, v4, 4, v3
        s_mul_i32 s63, s3, 10240
        s_add_u32 s63, s63, {1024*n}
        s_mov_b32 m0, s63
        s_nop 0
        buffer_load_dwordx4 v3, s[20:23], s61 offen lds
        """)
    a(f"""
    v_lshrrev_b32 v2, 4, v1
    v_bfe_u32 v3, v1, 2, 2
    v_lshl_add_u32 v2, v2, 2, v3
    v_mul_u32_u24 v4, 1280, v2
    v_and_b32 v5, 7, v2
    v_lshl_add_u32 v4, v5, 5, v4
    v_and_b32 v5, 3, v1
    v_lshl_add_u32 v4, v5, 3, v4
    v_lshlrev_b32 v6, 4, v1
    s_mul_i32 s63, s3, 10
    s_waitcnt vmcnt(0)
    s_barrier
    """)
    for k in range(10):
        a(f"""
        s_add_u32 s64, s63, {k}
        s_and_b32 s65, s64, 7
        s_lshl_b32 s65, s65, 5
        s_lshr_b32 s66, s64, 3
        s_lshl_b32 s66, s66, 8
        v_xor_b32 v7, s65, v4
        v_add_u32 v7, s66, v7
        ds_read_b64_tr_b16 v[{10+4*k}:{11+4*k}], v7
        ds_read_b64_tr_b16 v[{12+4*k}:{13+4*k}], v7 offset:20480
        s_mul_i32 s{70+k}, s64, {NS2}
        s_add_u32 s{70+k}, s{70+k}, s60
        s_add_u32 s{70+k}, s{70+k}, 40
        s_lshl_b32 s{70+k}, s{70+k}, 10
        """)
    a("s_waitcnt lgkmcnt(0)")
    for k in range(10):
        a(f"buffer_store_dwordx4 v[{10+4*k}:{13+4*k}], v6, s[16:19], s{70+k} offen")
    a("s_endpgm")
    a.label("K0_CREP")
    a("s_sub_u32 s60, s2, 182")
    a(f"""
    v_and_b32 v2, 15, v1
    s_lshl_b32 s61, s60, 4
    v_add_u32 v2, s61, v2
    v_mul_u32_u24 v2, 1280, v2
    v_bfe_u32 v3, v1, 4, 1
    v_lshl_add_u32 v2, v3, 4, v2
    s_lshl_b32 s61, s3, 5
    v_add_u32 v2, s61, v2
    """)
    for k in range(10):
        a(f"buffer_load_dwordx4 v[{40+8*k}:{43+8*k}], v2, s[24:27], 0 offen offset:{128*k}")
        a(f"buffer_load_dwordx4 v[{44+8*k}:{47+8*k}], v2, s[28:31], 0 offen offset:{128*k}")
    a("v_lshlrev_b32 v4, 1, v0")
    for r in range(3):
        a(f"buffer_load_ushort v{10+3*r}, v4, s[44:47], 0 offen offset:{512*r}")
        a(f"buffer_load_ushort v{11+3*r}, v4, s[48:51], 0 offen offset:{512*r}")
        a(f"buffer_load_ushort v{12+3*r}, v4, s[52:55], 0 offen offset:{512*r}")
    a("s_waitcnt vmcnt(0)")
    a("v_lshlrev_b32 v5, 2, v0")
    for r in range(3):
        lam_calc(a, 10+3*r, 11+3*r, 12+3*r, 20, 28, 29, coef=(30, 31))
        a(f"""
        v_mul_f32 v30, 2.0, v30
        v_mul_f32 v31, -2.0, v31
        v_sub_f32 v32, 0, v30
        """)
        if r == 2:
            a("v_cmp_gt_u32 vcc, 128, v0\ns_and_saveexec_b64 s[62:63], vcc")
        a(f"""
        ds_write_b32 v5, v30 offset:{1024*r}
        ds_write_b32 v5, v31 offset:{2560+1024*r}
        ds_write_b32 v5, v32 offset:{5120+1024*r}
        """)
        if r == 2:
            a("s_mov_b64 exec, s[62:63]")
    a(f"""
    v_lshrrev_b32 v6, 5, v1
    v_mul_u32_u24 v6, 2560, v6
    v_lshl_add_u32 v6, v3, 5, v6
    s_lshl_b32 s61, s3, 6
    v_add_u32 v6, s61, v6
    v_lshlrev_b32 v7, 4, v1
    s_mul_i32 s61, s60, {NS2}
    s_add_u32 s61, s61, s3
    s_lshl_b32 s61, s61, 10
    s_waitcnt lgkmcnt(0)
    s_barrier
    """)
    for k in range(10):
        a(f"""
        ds_read_b128 v[8:11], v6 offset:{256*k}
        ds_read_b128 v[12:15], v6 offset:{256*k+16}
        ds_read_b128 v[16:19], v6 offset:{2560+256*k}
        ds_read_b128 v[20:23], v6 offset:{2560+256*k+16}
        s_waitcnt lgkmcnt(0)
        """)
        for e in range(4):
            cr = 40+8*k+e; ci = 44+8*k+e
            a(f"""
            v_lshlrev_b32 v24, 16, v{cr}
            v_and_b32 v25, 0xffff0000, v{cr}
            v_lshlrev_b32 v26, 16, v{ci}
            v_and_b32 v27, 0xffff0000, v{ci}
            v_mul_f32 v24, v24, v{8+2*e}
            v_mul_f32 v25, v25, v{9+2*e}
            v_fmac_f32 v24, v26, v{16+2*e}
            v_fmac_f32 v25, v27, v{17+2*e}
            v_cvt_pk_bf16_f32 v{cr}, v24, v25
            """)
        a(f"buffer_store_dwordx4 v[{40+8*k}:{43+8*k}], v7, s[16:19], s61 offen")
        a("s_add_u32 s61, s61, 4096")
    a("s_endpgm")
    a.label("K0_ZERO")
    a("v_lshlrev_b32 v2, 4, v0\nv_mov_b32 v4, 0\nv_mov_b32 v5, 0\nv_mov_b32 v6, 0\nv_mov_b32 v7, 0\ns_mov_b32 s60, 0")
    for k in range(AGG_BYTES // 4096):
        a(f"buffer_store_dwordx4 v[4:7], v2, s[56:59], s60 offen\ns_add_u32 s60, s60, 4096")
    a.label("K0_END")
    a("s_endpgm")
    return a.text(), kd("prep_kernel", 128, 96, 128), "; @launch kernel=prep_kernel grid=(223,1,1) block=(256,1,1) lds=40960"
```

```python
from gen_common import *

NSL = 5
XB = 4
ACC = 32
LDS_E16 = 102400
LDS_S = 110592
LDS_TOTAL = 118784
TAG = 0x5ca1ab1e
ST = " sc1"

def acc(i, jj): return ACC + 4*(jj*4 + i)
def Xf(b, ks, i): return 32*b + 16*ks + 4*i
def Wf(par, jj): return 128 + 40*par + 4*jj

def main_loop(a, kind):
    glu = kind == "glu"
    NJ = 5 if glu else 4
    NJ2 = 2*NJ
    ND = 5 if glu else 4
    SLOT = 20480 if glu else 16384
    KADV = 64*3456 if glu else 128
    def dma_ops(s):
        ops = []
        for n in range(ND):
            ops.append(("s", f"s_add_u32 m0, s41, {(s % NSL)*SLOT + n*1024}"))
            ops.append(("vm", f"buffer_load_dwordx4 v{4+n}, s[12:15], s40 offen lds", ("D", s)))
        ops.append(("s", f"s_add_u32 s40, s40, {KADV}"))
        return ops
    def x_ops(s):
        ops = []
        for i in range(4):
            for ks in range(2):
                ops.append(("vm", f"buffer_load_dwordx4 {ar(Xf(s % XB, ks, i),4)}, v2, s[8:11], s{36+i} offen offset:{64*ks}", ("X", s)))
        ops.append(("s", "v_add_u32 v2, 128, v2"))
        return ops
    def w_reads(n):
        s, ks = n >> 1, n & 1
        slot = s % NSL
        ops = []
        for jj in range(NJ2):
            mat, j = divmod(jj, NJ)
            if glu:
                base, off = (10, slot*SLOT) if slot < 3 else (11, (slot-3)*SLOT)
                for h in range(2):
                    o = off + mat*10240 + (8*h + 32*ks)*160 + 32*j
                    ops.append(("s", f"ds_read_b64_tr_b16 {ar(Wf(n & 1, jj) + 2*h, 2)}, v{base} offset:{o}"))
            else:
                base, off = (10 + ks, slot*SLOT) if slot < 4 else (12 + ks, (slot-4)*SLOT)
                o = off + mat*8192 + j*2048
                ops.append(("s", f"ds_read_b128 {ar(Wf(n & 1, jj), 4)}, v{base} offset:{o}"))
        return ops
    def emit(op):
        if op[0] == "s": a(op[1])
        else:
            if a.lines[-1].strip().startswith("s_add_u32 m0"): a("s_nop 0")
            a.vmem(op[1], op[2])
    for s in range(NSL):
        for op in dma_ops(s): emit(op)
        if s < XB:
            for op in x_ops(s): emit(op)
    yield "prologue_issued"
    a.vmwait(("D", 0)); a("s_barrier")
    for op in w_reads(0): emit(op)
    for n in range(20):
        s, ks = n >> 1, n & 1
        fill = []
        if ks == 0:
            a.vmwait(("X", s), "lgkmcnt(0)")
            fill += w_reads(n+1)
            if s >= 1 and s - 1 + XB < 10: fill2 = x_ops(s - 1 + XB)
            else: fill2 = []
        else:
            if s + 1 < 10:
                a.vmwait(("D", s+1), "lgkmcnt(0)"); a("s_barrier")
                fill += w_reads(n+1)
            else:
                a("s_waitcnt lgkmcnt(0)")
            fill2 = dma_ops(s + NSL) if s + NSL < 10 else []
        seq = []
        r, f2 = list(fill), list(fill2)
        while r or f2:
            if f2: seq.append(f2.pop(0))
            if r: seq.append(r.pop(0))
            if r and glu and not (len(seq) > 1 and seq[-2][1].startswith("s_add_u32 m0")): seq.append(r.pop(0))
        nm = 4*NJ2
        slots = nm - 4
        k = 0
        m = 0
        for jj in range(NJ2):
            for i in range(4):
                c = "0" if n == 0 else vr(acc(i, jj), 4)
                xa = ar(Xf(s % XB, ks, i), 4); wa = ar(Wf(n & 1, jj), 4)
                if glu: a(f"v_mfma_f32_16x16x32_bf16 {vr(acc(i,jj),4)}, {wa}, {xa}, {c}")
                else:   a(f"v_mfma_f32_16x16x32_bf16 {vr(acc(i,jj),4)}, {xa}, {wa}, {c}")
                m += 1
                while k < len(seq) and k * slots < m * len(seq):
                    emit(seq[k]); k += 1
        assert k >= len(seq)
    yield "done"

def gen_k1():
    a = Asm()
    a.raw(".p2align 8\n.type gemm1_kernel,@function\ngemm1_kernel:")
    a(f"""
    s_cmp_ge_u32 s2, 256
    s_cbranch_scc1 K1_END
    s_load_dwordx2 s[4:5], s[0:1], {KA['ws']}
    s_load_dwordx4 s[44:47], s[0:1], {KA['lre']}
    s_load_dwordx4 s[48:51], s[0:1], {KA['bre']}
    s_load_dwordx2 s[52:53], s[0:1], {KA['ldt']}
    s_load_dwordx4 s[56:59], s[0:1], {KA['wg']}
    v_and_b32 v1, 63, v0
    v_lshrrev_b32 v2, 6, v0
    s_nop 0
    v_readfirstlane_b32 s3, v2
    s_and_b32 s60, s2, 7
    s_lshr_b32 s61, s2, 3
    s_lshr_b32 s62, s60, 2
    s_lshl_b32 s62, s62, 2
    s_lshr_b32 s63, s61, 3
    s_add_u32 s62, s62, s63
    s_and_b32 s63, s60, 3
    s_lshl_b32 s63, s63, 3
    s_and_b32 s64, s61, 7
    s_add_u32 s63, s63, s64
    s_lshl_b32 s64, s62, 8
    s_lshl_b32 s65, s3, 6
    s_add_u32 s64, s64, s65
    s_mul_i32 s36, s64, 1280
    v_lshrrev_b32 v3, 4, v1
    v_and_b32 v9, 15, v1
    s_waitcnt lgkmcnt(0)
    """)
    srd(a, 8, 4, XN_BYTES, WS_XN)
    srd(a, 16, 4, HP_BYTES, WS_HP)
    a("""
    s_cmp_lt_u32 s63, 10
    s_cbranch_scc1 K1_SSM
    """)
    a(f"""
    s_sub_u32 s63, s63, 10
    s_cmp_lt_u32 s3, 2
    s_cselect_b32 s12, s56, s58
    s_cselect_b32 s13, s57, s59
    s_mov_b32 s14, {D*F*2}
    s_mov_b32 s15, 0x20000
    s_add_u32 s37, s36, {16*1280}
    s_add_u32 s38, s36, {32*1280}
    s_add_u32 s39, s36, {48*1280}
    v_mul_u32_u24 v2, 1280, v9
    v_lshl_add_u32 v2, v3, 4, v2
    s_mul_i32 s40, s63, 160
    s_mul_i32 s41, s3, 5120
    s_and_b32 s65, s3, 1
    s_mul_i32 s65, s65, 320
    """)
    for n in range(5):
        a(f"""
        v_add_u32 v14, s65, v1
        v_add_u32 v14, {64*n}, v14
        v_mul_u32_u24 v15, 6554, v14
        v_lshrrev_b32 v15, 16, v15
        v_mul_u32_u24 v16, 10, v15
        v_sub_u32 v16, v14, v16
        v_and_b32 v17, 0x33, v15
        v_bfe_u32 v18, v15, 2, 1
        v_lshl_or_b32 v17, v18, 3, v17
        v_bfe_u32 v18, v15, 3, 1
        v_lshl_or_b32 v17, v18, 2, v17
        v_mul_u32_u24 v17, 3456, v17
        v_lshl_add_u32 v{4+n}, v16, 4, v17
        """)
    a(f"""
    v_bfe_u32 v14, v1, 2, 2
    v_bfe_u32 v15, v1, 4, 1
    v_lshl_add_u32 v14, v15, 2, v14
    v_bfe_u32 v15, v1, 5, 1
    v_lshl_add_u32 v14, v15, 4, v14
    v_mul_u32_u24 v14, 160, v14
    v_and_b32 v15, 3, v1
    v_lshl_add_u32 v10, v15, 3, v14
    v_add_u32 v11, 61440, v10
    """)
    g = main_loop(a, "glu")
    next(g)
    a(f"""
    s_lshl_b32 s64, s62, 4
    s_lshl_b32 s65, s3, 2
    s_add_u32 s64, s64, s65
    s_mul_i32 s64, s64, {NS2*1024}
    s_mul_i32 s65, s63, 5
    v_lshlrev_b32 v12, 4, v1
    """)
    for j in range(5):
        a(f"""
        s_add_u32 s66, s65, {j}
        s_lshr_b32 s67, s66, 1
        s_add_u32 s67, s67, 40
        s_lshl_b32 s67, s67, 10
        s_and_b32 s68, s66, 1
        s_lshl_b32 s68, s68, 3
        s_add_u32 s67, s67, s68
        s_add_u32 s67, s67, s64
        s_cmp_lt_u32 s66, 108
        s_cselect_b32 s{70+j}, s67, 0x40000000
        """)
    next(g)
    a("s_nop 7")
    T = 192
    k = 0
    for j in range(5):
        for i in range(4):
            G = acc(i, j); U = acc(i, 5+j); t = T + 2*(k % 8); k += 1
            a(f"""
            v_pk_mul_f32 {vr(G,2)}, {vr(G,2)}, {vr(U,2)}
            v_pk_mul_f32 {vr(G+2,2)}, {vr(G+2,2)}, {vr(U+2,2)}
            s_add_u32 s75, s{70+j}, {i*NS2*1024}
            v_cvt_pk_bf16_f32 v{t}, v{G}, v{G+1}
            v_cvt_pk_bf16_f32 v{t+1}, v{G+2}, v{G+3}
            buffer_store_dwordx2 {vr(t,2)}, v12, s[16:19], s75 offen{ST}
            """)
    a("s_endpgm")
    a.vm = []
    a.label("K1_SSM")
    srd(a, 20, 44, P*2); srd(a, 24, 46, P*2); srd(a, 28, 52, P*2)
    srd(a, 76, 4, AGG_BYTES, WS_AGG)
    a(f"""
    s_lshl_b32 s65, s63, 7
    v_lshlrev_b32 v15, 1, v1
    v_add_u32 v15, s65, v15
    """)
    LR = 200
    a.vmem(f"buffer_load_ushort v{LR}, v15, s[20:23], 0 offen", "L")
    a.vmem(f"buffer_load_ushort v{LR+1}, v15, s[24:27], 0 offen", "L")
    a.vmem(f"buffer_load_ushort v{LR+2}, v15, s[28:31], 0 offen", "L")
    a(f"""
    s_cmp_lt_u32 s3, 2
    s_cselect_b32 s12, s48, s50
    s_cselect_b32 s13, s49, s51
    s_mov_b32 s14, {P*D*2}
    s_mov_b32 s15, 0x20000
    s_add_u32 s37, s36, {2*1280}
    s_add_u32 s38, s36, {4*1280}
    s_add_u32 s39, s36, {6*1280}
    v_bfe_u32 v14, v1, 2, 2
    v_lshlrev_b32 v14, 4, v14
    v_and_b32 v15, 1, v1
    v_lshl_add_u32 v14, v15, 3, v14
    v_bfe_u32 v15, v1, 1, 1
    v_add_u32 v14, v14, v15
    v_mul_u32_u24 v2, 1280, v14
    v_lshl_add_u32 v2, v3, 4, v2
    s_mul_i32 s40, s63, {64*1280}
    s_lshl_b32 s41, s3, 12
    s_and_b32 s65, s3, 1
    s_lshl_b32 s65, s65, 5
    """)
    for n in range(4):
        a(f"""
        v_lshrrev_b32 v14, 3, v1
        v_add_u32 v14, s65, v14
        v_add_u32 v14, {8*n}, v14
        v_bfe_u32 v15, v14, 1, 3
        v_and_b32 v16, 7, v1
        v_xor_b32 v15, v15, v16
        v_mul_u32_u24 v14, 1280, v14
        v_lshl_add_u32 v{4+n}, v15, 4, v14
        """)
    a(f"""
    v_lshrrev_b32 v14, 1, v9
    v_xor_b32 v14, v14, v3
    v_lshlrev_b32 v15, 7, v9
    v_lshl_add_u32 v10, v14, 4, v15
    v_xor_b32 v11, 64, v10
    v_add_u32 v12, 65536, v10
    v_add_u32 v13, 65536, v11
    """)
    g = main_loop(a, "ssm")
    next(g)
    a.vmwait("L")
    LAM = 216; L8 = 226; L16 = 234; L256 = 236
    def csq(d, s, t=20):
        a(f"""
        v_mul_f32 v{t}, v{s+1}, v{s+1}
        v_mul_f32 v{t+1}, v{s}, v{s+1}
        v_fma_f32 v{d}, v{s}, v{s}, -v{t}
        v_add_f32 v{d+1}, v{t+1}, v{t+1}
        """)
    lam_calc(a, LR, LR+1, LR+2, 20, LAM+8, LAM+9)
    csq(204, LAM+8); csq(204, 204); csq(204, 204)
    csq(L16, 204)
    csq(L256, L16); csq(L256, L256); csq(L256, L256); csq(L256, L256)
    a("v_lshlrev_b32 v14, 2, v9")
    for j in range(4):
        if j: a("v_add_u32 v14, 64, v14")
        a(f"""
        ds_bpermute_b32 v{LAM+2*j}, v14, v{LAM+8}
        ds_bpermute_b32 v{LAM+2*j+1}, v14, v{LAM+9}
        ds_bpermute_b32 v{L8+2*j}, v14, v204
        ds_bpermute_b32 v{L8+2*j+1}, v14, v205
        """)
        if j == 2: a("s_waitcnt lgkmcnt(0)")
    a("s_waitcnt lgkmcnt(0)")
    next(g)
    a("s_nop 7")
    def BR(j, sg): return acc(sg >> 1, j) + 2*(sg & 1)
    def BI(j, sg): return acc(sg >> 1, 4+j) + 2*(sg & 1)
    E = 160
    def ER(q, j): return E + 16*q + 4*j
    def EI(q, j): return E + 16*q + 4*j + 2
    def step(dR, dI, pR, pI, bR, bI, lam):
        return [
          f"v_pk_fma_f32 {vr(dR,2)}, {vr(lam,2)}, {vr(pR,2)}, {vr(bR,2)} op_sel_hi:[0,1,1]",
          f"v_pk_fma_f32 {vr(dI,2)}, {vr(lam,2)}, {vr(pI,2)}, {vr(bI,2)} op_sel_hi:[0,1,1]",
          f"v_pk_fma_f32 {vr(dR,2)}, {vr(lam,2)}, {vr(pI,2)}, {vr(dR,2)} op_sel:[1,0,0] op_sel_hi:[1,1,1] neg_lo:[1,0,0] neg_hi:[1,0,0]",
          f"v_pk_fma_f32 {vr(dI,2)}, {vr(lam,2)}, {vr(pR,2)}, {vr(dI,2)} op_sel:[1,0,0] op_sel_hi:[1,1,1]"]
    for sg in range(1, 8):
        q = sg & 1
        cols = []
        for j in range(4):
            pR, pI = (BR(j, 0), BI(j, 0)) if sg == 1 else (ER(q ^ 1, j), EI(q ^ 1, j))
            cols.append(step(ER(q, j), EI(q, j), pR, pI, BR(j, sg), BI(j, sg), LAM+2*j))
        for k in range(4):
            for j in range(4): a(cols[j][k])
    a(f"""
    s_lshl_b32 s65, s3, 2
    v_add_u32 v14, s65, v3
    v_lshlrev_b32 v14, 9, v14
    v_lshl_add_u32 v14, v9, 3, v14
    v_lshlrev_b32 v15, 3, v1
    v_add_u32 v14, {LDS_E16}, v14
    v_add_u32 v15, {LDS_E16}, v15
    """)
    for j in range(4):
        c = ER(0, j); r = ER(1, j); im = EI(1, j); l8 = L8+2*j
        a(f"""
        v_fma_f32 v{c}, v{l8}, v{r}, v{r+1}
        v_fma_f32 v{c+1}, v{l8}, v{im}, v{im+1}
        v_fma_f32 v{c}, -v{l8+1}, v{im}, v{c}
        v_fma_f32 v{c+1}, v{l8+1}, v{r}, v{c+1}
        ds_write_b64 v14, {vr(c,2)} offset:{128*j}
        """)
    a("""
    s_waitcnt lgkmcnt(0)
    s_barrier
    s_cmp_lg_u32 s3, 0
    s_cbranch_scc1 K1_L2DONE
    """)
    EV = 192
    def ev(R): return EV + 2*R if R < 12 else 20 + 2*(R-12)
    for R in range(16):
        a(f"ds_read_b64 {vr(ev(R),2)}, v15 offset:{512*R}")
    def cfma(d, lam, s, add):
        a(f"""
        v_fma_f32 v{d}, v{lam}, v{s}, v{add}
        v_fma_f32 v{d+1}, v{lam}, v{s+1}, v{add+1}
        v_fma_f32 v{d}, -v{lam+1}, v{s+1}, v{d}
        v_fma_f32 v{d+1}, v{lam+1}, v{s}, v{d+1}
        """)
    A0, A1 = 240, 244
    a("s_waitcnt lgkmcnt(0)")
    cur = ev(0)
    for R in range(1, 16):
        d = A0 if (R & 1) else A1
        cfma(d, L16, cur, ev(R)); cur = d
    assert cur == A0
    a(f"""
    v_mov_b32 v{A0+2}, {TAG:#x}
    v_mov_b32 v{A0+3}, 0
    v_lshlrev_b32 v16, 4, v1
    v_add_u32 v19, 4096, v16
    s_lshl_b32 s65, s63, 13
    s_lshl_b32 s66, s62, 10
    s_add_u32 s66, s66, s65
    buffer_store_dwordx4 {vr(A0,4)}, v16, s[76:79], s66 offen sc1
    s_mov_b32 s67, 0
    s_cmp_eq_u32 s62, 0
    s_cbranch_scc1 K1_POLLOK
    """)
    a.label("K1_POLL")
    for rb in range(7):
        a(f"buffer_load_dwordx4 {ar(4*rb,4)}, v{16 if rb < 4 else 19}, s[76:79], s65 offen offset:{1024*(rb%4)} sc1")
    a("s_waitcnt vmcnt(0)\ns_mov_b64 s[68:69], -1")
    lab = a.newlabel("K1_CHK")
    for rb in range(7):
        a(f"""
        s_cmp_le_u32 s62, {rb}
        s_cbranch_scc1 {lab}
        v_accvgpr_read_b32 v17, a{4*rb+2}
        s_nop 0
        v_cmp_eq_u32 vcc, {TAG:#x}, v17
        s_and_b64 s[68:69], s[68:69], vcc
        """)
    a.label(lab)
    a(f"""
    s_cmp_eq_u64 s[68:69], -1
    s_cbranch_scc1 K1_POLLOK
    s_add_u32 s67, s67, 1
    s_cmp_lt_u32 s67, 100000
    s_sleep 1
    s_cbranch_scc1 K1_POLL
    """)
    a.label("K1_POLLOK")
    a("v_mov_b32 v248, 0\nv_mov_b32 v249, 0")
    lab = a.newlabel("K1_CAR")
    for rb in range(7):
        a(f"""
        s_cmp_le_u32 s62, {rb}
        s_cbranch_scc1 {lab}
        v_accvgpr_read_b32 v252, a{4*rb}
        v_accvgpr_read_b32 v253, a{4*rb+1}
        """)
        cfma(250, L256, 248, 252)
        a("v_mov_b32 v248, v250\nv_mov_b32 v249, v251")
    a.label(lab)
    cur = 248
    for R in range(16):
        a(f"ds_write_b64 v15, {vr(cur,2)} offset:{LDS_S-LDS_E16+512*R}")
        if R < 15:
            d = A0 if (R & 1) else A1
            cfma(d, L16, cur, ev(R)); cur = d
    a("s_waitcnt lgkmcnt(0)")
    a.label("K1_L2DONE")
    a("s_barrier")
    for j in range(4):
        a(f"ds_read_b64 {vr(ER(0,j),2)}, v14 offset:{LDS_S-LDS_E16+128*j}")
    a(f"""
    s_mul_i32 s65, s3, 18432
    v_mul_u32_u24 v16, 144, v9
    v_lshl_add_u32 v16, v3, 5, v16
    v_add_u32 v16, s65, v16
    v_bfe_u32 v17, v1, 2, 2
    v_lshl_add_u32 v17, v3, 3, v17
    v_mul_u32_u24 v17, 144, v17
    v_and_b32 v18, 3, v1
    v_lshl_add_u32 v17, v18, 3, v17
    v_add_u32 v17, s65, v17
    v_lshlrev_b32 v18, 4, v1
    s_lshl_b32 s64, s62, 4
    s_lshl_b32 s65, s3, 2
    s_add_u32 s64, s64, s65
    s_mul_i32 s64, s64, {NS2}
    s_lshl_b32 s65, s63, 2
    s_add_u32 s64, s64, s65
    s_lshl_b32 s64, s64, 10
    s_waitcnt lgkmcnt(0)
    """)
    for j in range(4):
        sa = ER(0, j); h = 192 + 4*j; l8 = L8+2*j
        a(f"""
        v_mov_b32 v{h}, v{sa}
        v_mov_b32 v{h+2}, v{sa+1}
        v_fma_f32 v{h+1}, v{l8}, v{sa}, v{ER(1,j)}
        v_fma_f32 v{h+3}, v{l8}, v{sa+1}, v{EI(1,j)}
        v_fma_f32 v{h+1}, -v{l8+1}, v{sa+1}, v{h+1}
        v_fma_f32 v{h+3}, v{l8+1}, v{sa}, v{h+3}
        """)
    for sg in range(8):
        cols = []
        for j in range(4):
            pR, pI = (192+4*j, 194+4*j) if sg == 0 else (BR(j, sg-1), BI(j, sg-1))
            cols.append(step(BR(j, sg), BI(j, sg), pR, pI, BR(j, sg), BI(j, sg), LAM+2*j))
        for k in range(4):
            for j in range(4): a(cols[j][k])
    for jj in range(8):
        im, j = divmod(jj, 4)
        t = 160 + 8*(jj % 4)
        for i in range(4):
            A = acc(i, jj)
            a(f"v_cvt_pk_bf16_f32 v{t+i}, v{A}, v{A+2}")
            a(f"v_cvt_pk_bf16_f32 v{t+4+i}, v{A+1}, v{A+3}")
        o = (32*j + 16*im)*144
        a(f"ds_write_b128 v16, {vr(t,4)} offset:{o}")
        a(f"ds_write_b128 v16, {vr(t+4,4)} offset:{o+16}")
    a("s_waitcnt lgkmcnt(0)")
    for i in range(4):
        for j in range(4):
            d = ACC + 4*(i*4+j)
            for h in range(2):
                a(f"ds_read_b64_tr_b16 {vr(d+2*h,2)}, v17 offset:{(32*j+4*h)*144 + 32*i}")
    k = 0
    for i in range(4):
        for j in range(4):
            d = ACC + 4*(i*4+j)
            k += 1
            a(f"s_waitcnt lgkmcnt({min(15, 32-2*k)})")
            a(f"s_add_u32 s65, s64, {(i*NS2 + j)*1024}")
            a(f"buffer_store_dwordx4 {vr(d,4)}, v18, s[16:19], s65 offen{ST}")
    a.label("K1_END")
    a("s_endpgm")
    return a.text(), kd("gemm1_kernel", 256+208, 96, 256), f"; @launch kernel=gemm1_kernel grid=(256,1,1) block=(256,1,1) lds={LDS_TOTAL}"
```

```python
from gen_common import *

def gen_k2(NB=4):
    a = Asm()
    a.raw(".p2align 8\n.type gemm2_kernel,@function\ngemm2_kernel:")
    ACC = 16
    def acc(jd, i): return ACC + 4*(jd*4+i)
    EX = 96
    a(f"""
    s_cmp_ge_u32 s2, 256
    s_cbranch_scc1 K2_END
    s_load_dwordx2 s[4:5], s[0:1], {KA['ws']}
    s_load_dwordx2 s[6:7], s[0:1], {KA['x']}
    s_load_dwordx2 s[42:43], s[0:1], {KA['dsk']}
    s_load_dwordx2 s[44:45], s[0:1], {KA['out']}
    v_and_b32 v1, 63, v0
    v_lshrrev_b32 v2, 6, v0
    v_lshlrev_b32 v3, 4, v0
    v_readfirstlane_b32 s3, v2
    s_and_b32 s46, s2, 7
    s_lshr_b32 s47, s2, 3
    s_lshr_b32 s48, s46, 1
    s_lshl_b32 s48, s48, 3
    s_lshr_b32 s49, s47, 2
    s_add_u32 s48, s48, s49
    s_and_b32 s49, s46, 1
    s_lshl_b32 s49, s49, 2
    s_and_b32 s50, s47, 3
    s_add_u32 s49, s49, s50
    s_mul_i32 s32, s48, {4*NS2*1024}
    s_add_u32 s33, s32, {NS2*1024}
    s_add_u32 s34, s32, {2*NS2*1024}
    s_add_u32 s35, s32, {3*NS2*1024}
    s_mul_i32 s36, s49, {5*NS2*1024}
    s_add_u32 s37, s36, {NS2*1024}
    s_add_u32 s38, s36, {2*NS2*1024}
    s_add_u32 s39, s36, {3*NS2*1024}
    s_add_u32 s40, s36, {4*NS2*1024}
    s_waitcnt lgkmcnt(0)
    """)
    srd(a, 8, 4, HP_BYTES, WS_HP)
    srd(a, 12, 4, WP_BYTES, WS_WP)
    def bufH(b, i): return 36*b + 4*i
    def bufW(b, j): return 36*b + 16 + 4*j
    NK = 24
    def loadH(n):
        for i in range(4):
            a.vmem(f"buffer_load_dwordx4 {ar(bufH(n%NB,i),4)}, v3, s[8:11], s{32+i} offen", ("H", n))
    def loadW(n, j):
        a.vmem(f"buffer_load_dwordx4 {ar(bufW(n%NB,j),4)}, v4, s[12:15], s{36+j} offen", ("W", n))
    a("v_mov_b32 v4, v3")
    for n in range(NB):
        loadH(n); a("v_add_u32 v3, 4096, v3")
        for j in range(5): loadW(n, j)
        a("v_add_u32 v4, 4096, v4")
    srd(a, 16, 6, XN_BYTES)
    srd(a, 20, 4, XN_BYTES, WS_XN)
    srd(a, 24, 42, D*2)
    srd(a, 28, 44, L*D*4)
    a(f"""
    s_lshl_b32 s51, s48, 6
    s_lshl_b32 s52, s3, 4
    s_add_u32 s51, s51, s52
    v_and_b32 v5, 15, v1
    v_add_u32 v5, s51, v5
    v_lshrrev_b32 v6, 4, v1
    v_lshlrev_b32 v6, 2, v6
    s_mul_i32 s52, s49, 80
    v_add_u32 v6, s52, v6
    v_mul_u32_u24 v7, 640, v5
    v_add_u32 v7, v7, v6
    v_lshlrev_b32 v8, 1, v7
    v_lshlrev_b32 v7, 2, v7
    v_lshlrev_b32 v6, 1, v6
    """)
    for jd in range(5):
        a.vmem(f"buffer_load_dwordx2 {vr(EX+2*jd,2)}, v8, s[16:19], 0 offen offset:{32*jd}", "E")
        a.vmem(f"buffer_load_dwordx2 {vr(EX+10+2*jd,2)}, v8, s[20:23], 0 offen offset:{32*jd}", "E")
        a.vmem(f"buffer_load_dwordx2 {vr(EX+20+2*jd,2)}, v6, s[24:27], 0 offen offset:{32*jd}", "E")
    for n in range(NK):
        b = n % NB
        a.vmwait([("H", n), ("W", n)])
        if n == NK-1:
            a("s_cmp_ge_u32 s3, 2\ns_cbranch_scc1 K2_RED")
        for j in range(5):
            for i in range(4):
                c = "0" if n == 0 else vr(acc(j,i),4)
                a(f"v_mfma_f32_16x16x32_bf16 {vr(acc(j,i),4)}, {ar(bufW(b,j),4)}, {ar(bufH(b,i),4)}, {c}")
            if n + NB < NK: loadW(n+NB, j)
        if n + NB < NK:
            a("v_add_u32 v4, 4096, v4")
            loadH(n+NB); a("v_add_u32 v3, 4096, v3")
    a.label("K2_RED")
    a(f"""
    s_mul_i32 s52, s3, 20480
    v_lshlrev_b32 v9, 4, v1
    v_add_u32 v10, s52, v9
    s_mul_i32 s52, s3, 5120
    v_add_u32 v11, s52, v9
    v_add_u32 v9, 40960, v11
    s_nop 7
    """)
    for j in range(5):
        for i in range(4):
            a(f"ds_write_b128 v10, {vr(acc(j,i),4)} offset:{(i*5+j)*1024}")
    a("s_waitcnt lgkmcnt(0)\ns_barrier")
    for sw in range(4):
        for j in range(5):
            a(f"ds_read_b128 {vr(ACC+4*(sw*5+j),4)}, v{11 if sw < 2 else 9} offset:{(sw%2)*20480+j*1024}")
    a.vmwait("E")
    T = 130
    for jd in range(5):
        for h in range(2):
            x = EX+2*jd+h; xn = EX+10+2*jd+h; ds = EX+20+2*jd+h
            a(f"""
            v_lshlrev_b32 v12, 16, v{xn}
            v_and_b32 v13, 0xffff0000, v{xn}
            v_lshlrev_b32 v14, 16, v{ds}
            v_and_b32 v15, 0xffff0000, v{ds}
            v_mul_f32 v12, v12, v14
            v_mul_f32 v13, v13, v15
            v_cvt_pk_bf16_f32 v12, v12, v13
            v_and_b32 v13, 0xffff0000, v12
            v_lshlrev_b32 v12, 16, v12
            v_lshlrev_b32 v14, 16, v{x}
            v_and_b32 v15, 0xffff0000, v{x}
            v_add_f32 v{T+4*jd+2*h}, v12, v14
            v_add_f32 v{T+4*jd+2*h+1}, v13, v15
            """)
    a("s_waitcnt lgkmcnt(0)")
    for j in range(5):
        for sw in range(4):
            for h in range(2):
                a(f"v_pk_add_f32 {vr(T+4*j+2*h,2)}, {vr(T+4*j+2*h,2)}, {vr(ACC+4*(sw*5+j)+2*h,2)}")
        a(f"buffer_store_dwordx4 {vr(T+4*j,4)}, v7, s[28:31], 0 offen offset:{64*j}")
    a.label("K2_END")
    a("s_endpgm")
    return a.text(), kd("gemm2_kernel", 152 + 36*NB, 64, 152), "; @launch kernel=gemm2_kernel grid=(256,1,1) block=(256,1,1) lds=81920"
```

```python
import sys
sys.path.insert(0, "dev")
from gen_common import *
import gen_k0, gen_k2
OUT = "parallel_sum__ssm_conv_s5__glu_gated_bilinear__prompt.s"
def build(parts, path):
    hdr = "\n".join(p[2] for p in parts) + "\n"
    txt = hdr + '.amdgcn_target "amdgcn-amd-amdhsa--gfx950"\n.text\n' + "".join(p[0] for p in parts)
    txt += '.section .rodata,"a"\n' + "".join(p[1] for p in parts)
    open(path, "w").write(txt)
if __name__ == "__main__":
    parts = [gen_k0.gen_k0()]
    try:
        import gen_k1
        parts.append(gen_k1.gen_k1())
    except ImportError:
        pass
    parts.append(gen_k2.gen_k2())
    build(parts, sys.argv[1] if len(sys.argv) > 1 else OUT)
```

```python
class Asm:
    def __init__(self):
        self.lines = []
        self.vm = []
        self.nlabel = 0
    def __call__(self, s):
        for l in s.strip("\n").split("\n"):
            self.lines.append("  " + l.strip())
    def raw(self, s): self.lines.append(s)
    def c(self, s): self.lines.append("  ; " + s)
    def label(self, name): self.lines.append(name + ":")
    def newlabel(self, p="L"):
        self.nlabel += 1
        return f"{p}_{self.nlabel}"
    def vmem(self, s, tag):
        self(s); self.vm.append(tag)
    def vmwait(self, tags, extra=""):
        if not isinstance(tags, (list, set)): tags = [tags]
        last = -1
        for i, t in enumerate(self.vm):
            if t in tags: last = i
        if last < 0:
            if extra: self(f"s_waitcnt {extra}")
            return
        n = len(self.vm) - 1 - last
        assert n <= 63, n
        self(f"s_waitcnt vmcnt({n}) {extra}".strip())
        self.vm = self.vm[last + 1:]
    def vmwait_all(self, extra=""):
        self(f"s_waitcnt vmcnt(0) {extra}".strip()); self.vm = []
    def lds(self, s, tag):
        self(s)
        if not hasattr(self, "lg"): self.lg = []
        self.lg.append(tag)
    def lgwait(self, tags):
        if not isinstance(tags, (list, set)): tags = [tags]
        if not hasattr(self, "lg"): self.lg = []
        last = -1
        for i, t in enumerate(self.lg):
            if t in tags: last = i
        if last < 0: return
        n = len(self.lg) - 1 - last
        self(f"s_waitcnt lgkmcnt({min(n, 15)})")
        self.lg = self.lg[last + 1:]
    def lgwait_all(self):
        self("s_waitcnt lgkmcnt(0)"); self.lg = []
    def stamp(self, i):
        self.lines.append(f"  ;@STAMP {i}")
    def dstamp(self, base, sreg):
        self.lines.append(f'  ;@DSTAMP {base} {sreg}')
    def text(self): return "\n".join(self.lines) + "\n"

def vr(b, n=1, p="v"):
    return f"{p}{b}" if n == 1 else f"{p}[{b}:{b+n-1}]"
def ar(b, n=1): return vr(b, n, "a")
def sr(b, n=1): return vr(b, n, "s")

def kd(name, vgpr, sgpr, accum):
    return f""".p2align 6
.amdhsa_kernel {name}
  .amdhsa_next_free_vgpr {vgpr}
  .amdhsa_next_free_sgpr {sgpr}
  .amdhsa_accum_offset {accum}
  .amdhsa_group_segment_fixed_size 0
  .amdhsa_kernarg_size 128
  .amdhsa_user_sgpr_count 2
  .amdhsa_user_sgpr_kernarg_segment_ptr 1
  .amdhsa_system_sgpr_workgroup_id_x 1
  .amdhsa_float_denorm_mode_32 3
.end_amdhsa_kernel
"""

def srd(a, s, ptr, size, off=0):
    if off:
        a(f"s_add_u32 s{s}, s{ptr}, {off}")
        a(f"s_addc_u32 s{s+1}, s{ptr+1}, 0")
    else:
        a(f"s_mov_b32 s{s}, s{ptr}")
        a(f"s_mov_b32 s{s+1}, s{ptr+1}")
    a(f"s_mov_b32 s{s+2}, {size}")
    a(f"s_mov_b32 s{s+3}, 0x20000")
```

```python
from asmlib import *
L, D, P, F = 2048, 640, 640, 1728
NS2 = 96
def glu_S(q): return 84 + q//5 if q % 5 == 2 else 40 + q - (q+2)//5
WS_XN = 0
XN_BYTES = L * D * 2
WS_HP = 0x400000
HP_BYTES = 128 * NS2 * 1024
WS_WP = 0x1100000
WP_BYTES = 40 * NS2 * 1024
WS_AGG = 0x1500000
AGG_BYTES = 10 * 8 * 64 * 16
WS_STAT = 0x1600000
WS_CSP = 0x1700000
CSP_BYTES = 32*8*2*640
KA = dict(x=0, lre=8, lim=16, bre=24, bim=32, cre=40, cim=48, ldt=56, dsk=64, wg=80, wu=88, wd=96, out=104, dbg=112, ws=120)
LOG2E = 0x3fb8aa3b
INV2PI = 0x3e22f983

def bf16r(a, dst, src):
    a(f"v_cvt_pk_bf16_f32 v{dst}, v{src}, v{src}")
    a(f"v_lshlrev_b32 v{dst}, 16, v{dst}")

def lam_calc(a, vlr, vli, vld, t, out_lr, out_li, coef=None):
    a(f"""
    v_lshlrev_b32 v{vlr}, 16, v{vlr}
    v_lshlrev_b32 v{vli}, 16, v{vli}
    v_lshlrev_b32 v{vld}, 16, v{vld}
    v_mul_f32 v{t}, {LOG2E:#x}, v{vld}
    v_exp_f32 v{t}, v{t}
    s_nop 0
    """)
    bf16r(a, t, t)
    a(f"""
    v_mul_f32 v{t+1}, v{t}, v{vlr}
    v_mul_f32 v{t+2}, v{t}, v{vli}
    v_mul_f32 v{t+1}, {LOG2E:#x}, v{t+1}
    v_mul_f32 v{t+2}, {INV2PI:#x}, v{t+2}
    v_exp_f32 v{t+1}, v{t+1}
    v_fract_f32 v{t+2}, v{t+2}
    s_nop 0
    v_cos_f32 v{t+3}, v{t+2}
    v_sin_f32 v{t+4}, v{t+2}
    s_nop 0
    v_mul_f32 v{out_lr}, v{t+1}, v{t+3}
    v_mul_f32 v{out_li}, v{t+1}, v{t+4}
    """)
    if coef:
        cr, ci = coef
        a(f"""
        v_add_f32 v{t}, -1.0, v{out_lr}
        v_mul_f32 v{t+1}, v{vlr}, v{vlr}
        v_fmac_f32 v{t+1}, v{vli}, v{vli}
        v_rcp_f32 v{t+1}, v{t+1}
        v_mul_f32 v{t+2}, v{t}, v{vlr}
        v_fmac_f32 v{t+2}, v{out_li}, v{vli}
        v_mul_f32 v{t+3}, v{out_li}, v{vlr}
        v_fma_f32 v{t+3}, -v{t}, v{vli}, v{t+3}
        v_mul_f32 v{cr}, v{t+2}, v{t+1}
        v_mul_f32 v{ci}, v{t+3}, v{t+1}
        """)
```

```python
from gen_common import *

def gen_k0():
    a = Asm()
    a.raw(".p2align 8\n.type prep_kernel,@function\nprep_kernel:")
    a(f"""
    s_cmp_ge_u32 s2, 223
    s_cbranch_scc1 K0_END
    s_load_dwordx2 s[4:5], s[0:1], {KA['ws']}
    s_load_dwordx2 s[6:7], s[0:1], {KA['x']}
    s_load_dwordx4 s[32:35], s[0:1], {KA['lre']}
    s_load_dwordx4 s[36:39], s[0:1], {KA['cre']}
    s_load_dwordx2 s[40:41], s[0:1], {KA['ldt']}
    s_load_dwordx2 s[42:43], s[0:1], {KA['wd']}
    v_and_b32 v1, 63, v0
    v_lshrrev_b32 v2, 6, v0
    s_nop 0
    v_readfirstlane_b32 s3, v2
    s_waitcnt lgkmcnt(0)
    """)
    srd(a, 8, 6, XN_BYTES)
    srd(a, 12, 4, XN_BYTES, WS_XN)
    srd(a, 16, 4, WP_BYTES, WS_WP)
    srd(a, 20, 42, F * D * 2)
    srd(a, 24, 36, D * P * 2)
    srd(a, 28, 38, D * P * 2)
    srd(a, 44, 32, P * 2)
    srd(a, 48, 34, P * 2)
    srd(a, 52, 40, P * 2)
    srd(a, 56, 4, AGG_BYTES, WS_AGG)
    a("""
    s_cmp_ge_u32 s2, 222
    s_cbranch_scc1 K0_ZERO
    s_cmp_ge_u32 s2, 182
    s_cbranch_scc1 K0_CREP
    s_cmp_ge_u32 s2, 128
    s_cbranch_scc1 K0_WDOWN
    """)
    a(f"""
    s_lshl_b32 s60, s2, 4
    s_lshl_b32 s61, s3, 2
    s_add_u32 s60, s60, s61
    v_lshrrev_b32 v2, 4, v1
    v_add_u32 v2, s60, v2
    v_mul_u32_u24 v2, 1280, v2
    v_and_b32 v3, 15, v1
    v_lshl_add_u32 v2, v3, 4, v2
    """)
    for q in range(5):
        a(f"buffer_load_dwordx4 v[{10+4*q}:{13+4*q}], v2, s[8:11], 0 offen offset:{256*q}")
    for q in range(5):
        a(f"s_waitcnt vmcnt({4-q})")
        for e in range(4):
            s = 10 + 4*q + e; d = 30 + 8*q + 2*e
            a(f"v_lshlrev_b32 v{d}, 16, v{s}")
            a(f"v_and_b32 v{d+1}, 0xffff0000, v{s}")
    a("v_add_f32 v4, v30, v31\nv_add_f32 v5, v32, v33\nv_add_f32 v6, v34, v35\nv_add_f32 v7, v36, v37")
    for i in range(38, 70, 4):
        for k in range(4): a(f"v_add_f32 v{4+k}, v{4+k}, v{i+k}")
    a("v_add_f32 v4, v4, v5\nv_add_f32 v6, v6, v7\nv_add_f32 v4, v4, v6")
    def rowsum(v):
        for r in (8, 4, 2, 1):
            a("s_nop 1")
            a(f"v_add_f32_dpp v{v}, v{v}, v{v} row_ror:{r} row_mask:0xf bank_mask:0xf")
    rowsum(4)
    inv640 = 0x3acccccd
    a(f"v_mul_f32 v4, {inv640:#x}, v4")
    a("v_mov_b32 v5, 0\nv_mov_b32 v6, 0")
    for i in range(30, 70, 2):
        a(f"v_sub_f32 v8, v{i}, v4\nv_sub_f32 v9, v{i+1}, v4\nv_fmac_f32 v5, v8, v8\nv_fmac_f32 v6, v9, v9")
    a("v_add_f32 v5, v5, v6")
    rowsum(5)
    a(f"v_mul_f32 v5, {inv640:#x}, v5")
    bf16r(a, 4, 4); bf16r(a, 5, 5)
    a("v_add_f32 v5, 0x3727c5ac, v5")
    bf16r(a, 5, 5)
    a("v_sqrt_f32 v5, v5\ns_nop 0")
    bf16r(a, 5, 5)
    a("v_rcp_f32 v5, v5\ns_nop 0")
    for q in range(5):
        for e in range(4):
            s = 30 + 8*q + 2*e; d = 10 + 4*q + e
            a(f"""
            v_sub_f32 v8, v{s}, v4
            v_sub_f32 v9, v{s+1}, v4
            v_cvt_pk_bf16_f32 v8, v8, v9
            v_and_b32 v9, 0xffff0000, v8
            v_lshlrev_b32 v8, 16, v8
            v_mul_f32 v8, v8, v5
            v_mul_f32 v9, v9, v5
            v_cvt_pk_bf16_f32 v{d}, v8, v9
            """)
        a(f"buffer_store_dwordx4 v[{10+4*q}:{13+4*q}], v2, s[12:15], 0 offen offset:{256*q}")
    a("s_endpgm")
    a.label("K0_WDOWN")
    a(f"""
    s_sub_u32 s60, s2, 128
    s_mul_i32 s61, s60, {32*1280}
    s_mul_i32 s62, s3, 640
    ; S(q): q%5==2 -> 84+q/5 else 40+q-(q+2)/5
    s_mul_i32 s67, s60, 52429
    s_lshr_b32 s67, s67, 18
    s_mul_i32 s68, s67, 5
    s_sub_u32 s68, s60, s68
    s_add_u32 s69, s60, 2
    s_mul_i32 s69, s69, 52429
    s_lshr_b32 s69, s69, 18
    s_sub_u32 s69, s60, s69
    s_add_u32 s69, s69, 40
    s_add_u32 s67, s67, 84
    s_cmp_eq_u32 s68, 2
    s_cselect_b32 s60, s67, s69
    """)
    for n in range(10):
        a(f"""
        v_add_u32 v2, s62, v1
        v_add_u32 v2, {64*n}, v2
        v_mul_u32_u24 v3, 52429, v2
        v_lshrrev_b32 v3, 22, v3
        v_mul_u32_u24 v4, 80, v3
        v_sub_u32 v4, v2, v4
        v_and_b32 v5, 7, v3
        v_lshlrev_b32 v5, 1, v5
        v_xor_b32 v4, v4, v5
        v_mul_u32_u24 v3, 1280, v3
        v_lshl_add_u32 v3, v4, 4, v3
        s_mul_i32 s63, s3, 10240
        s_add_u32 s63, s63, {1024*n}
        s_mov_b32 m0, s63
        s_nop 0
        buffer_load_dwordx4 v3, s[20:23], s61 offen lds
        """)
    a(f"""
    v_lshrrev_b32 v2, 4, v1
    v_bfe_u32 v3, v1, 2, 2
    v_lshl_add_u32 v2, v2, 2, v3
    v_mul_u32_u24 v4, 1280, v2
    v_and_b32 v5, 7, v2
    v_lshl_add_u32 v4, v5, 5, v4
    v_and_b32 v5, 3, v1
    v_lshl_add_u32 v4, v5, 3, v4
    v_lshlrev_b32 v6, 4, v1
    s_mul_i32 s63, s3, 10
    s_waitcnt vmcnt(0)
    s_barrier
    """)
    for k in range(10):
        a(f"""
        s_add_u32 s64, s63, {k}
        s_and_b32 s65, s64, 7
        s_lshl_b32 s65, s65, 5
        s_lshr_b32 s66, s64, 3
        s_lshl_b32 s66, s66, 8
        v_xor_b32 v7, s65, v4
        v_add_u32 v7, s66, v7
        ds_read_b64_tr_b16 v[{10+4*k}:{11+4*k}], v7
        ds_read_b64_tr_b16 v[{12+4*k}:{13+4*k}], v7 offset:20480
        s_mul_i32 s{70+k}, s64, {NS2}
        s_add_u32 s{70+k}, s{70+k}, s60
        s_lshl_b32 s{70+k}, s{70+k}, 10
        """)
    a("s_waitcnt lgkmcnt(0)")
    for k in range(10):
        a(f"buffer_store_dwordx4 v[{10+4*k}:{13+4*k}], v6, s[16:19], s{70+k} offen")
    a("s_endpgm")
    a.label("K0_CREP")
    a("s_sub_u32 s60, s2, 182")
    a(f"""
    v_and_b32 v2, 15, v1
    s_lshl_b32 s61, s60, 4
    v_add_u32 v2, s61, v2
    v_mul_u32_u24 v2, 1280, v2
    v_bfe_u32 v3, v1, 4, 1
    v_lshl_add_u32 v2, v3, 4, v2
    s_lshl_b32 s61, s3, 5
    v_add_u32 v2, s61, v2
    """)
    for k in range(10):
        a(f"buffer_load_dwordx4 v[{40+8*k}:{43+8*k}], v2, s[24:27], 0 offen offset:{128*k}")
        a(f"buffer_load_dwordx4 v[{44+8*k}:{47+8*k}], v2, s[28:31], 0 offen offset:{128*k}")
    a("v_lshlrev_b32 v4, 1, v0")
    for r in range(3):
        a(f"buffer_load_ushort v{10+3*r}, v4, s[44:47], 0 offen offset:{512*r}")
        a(f"buffer_load_ushort v{11+3*r}, v4, s[48:51], 0 offen offset:{512*r}")
        a(f"buffer_load_ushort v{12+3*r}, v4, s[52:55], 0 offen offset:{512*r}")
    a("s_waitcnt vmcnt(0)")
    a("v_lshlrev_b32 v5, 2, v0")
    for r in range(3):
        lam_calc(a, 10+3*r, 11+3*r, 12+3*r, 20, 28, 29, coef=(30, 31))
        a(f"""
        v_mul_f32 v30, 2.0, v30
        v_mul_f32 v31, -2.0, v31
        v_sub_f32 v32, 0, v30
        """)
        if r == 2:
            a("v_cmp_gt_u32 vcc, 128, v0\ns_and_saveexec_b64 s[62:63], vcc")
        a(f"""
        ds_write_b32 v5, v30 offset:{1024*r}
        ds_write_b32 v5, v31 offset:{2560+1024*r}
        ds_write_b32 v5, v32 offset:{5120+1024*r}
        """)
        if r == 2:
            a("s_mov_b64 exec, s[62:63]")
    a(f"""
    v_lshrrev_b32 v6, 5, v1
    v_mul_u32_u24 v6, 2560, v6
    v_lshl_add_u32 v6, v3, 5, v6
    s_lshl_b32 s61, s3, 6
    v_add_u32 v6, s61, v6
    v_lshlrev_b32 v7, 4, v1
    s_mul_i32 s61, s60, {NS2}
    s_add_u32 s61, s61, s3
    s_lshl_b32 s61, s61, 10
    s_waitcnt lgkmcnt(0)
    s_barrier
    """)
    for k in range(10):
        a(f"""
        ds_read_b128 v[8:11], v6 offset:{256*k}
        ds_read_b128 v[12:15], v6 offset:{256*k+16}
        ds_read_b128 v[16:19], v6 offset:{2560+256*k}
        ds_read_b128 v[20:23], v6 offset:{2560+256*k+16}
        s_waitcnt lgkmcnt(0)
        """)
        for e in range(4):
            cr = 40+8*k+e; ci = 44+8*k+e
            a(f"""
            v_lshlrev_b32 v24, 16, v{cr}
            v_and_b32 v25, 0xffff0000, v{cr}
            v_lshlrev_b32 v26, 16, v{ci}
            v_and_b32 v27, 0xffff0000, v{ci}
            v_mul_f32 v24, v24, v{8+2*e}
            v_mul_f32 v25, v25, v{9+2*e}
            v_fmac_f32 v24, v26, v{16+2*e}
            v_fmac_f32 v25, v27, v{17+2*e}
            v_cvt_pk_bf16_f32 v{cr}, v24, v25
            """)
        a(f"buffer_store_dwordx4 v[{40+8*k}:{43+8*k}], v7, s[16:19], s61 offen")
        a("s_add_u32 s61, s61, 4096")
    a("s_endpgm")
    a.label("K0_ZERO")
    a("v_lshlrev_b32 v2, 4, v0\nv_mov_b32 v4, 0\nv_mov_b32 v5, 0\nv_mov_b32 v6, 0\nv_mov_b32 v7, 0\ns_mov_b32 s60, 0")
    for k in range(AGG_BYTES // 4096):
        a(f"buffer_store_dwordx4 v[4:7], v2, s[56:59], s60 offen\ns_add_u32 s60, s60, 4096")
    a.label("K0_END")
    a("s_endpgm")
    return a.text(), kd("prep_kernel", 128, 96, 128), "; @launch kernel=prep_kernel grid=(223,1,1) block=(256,1,1) lds=40960"
```

```python
from gen_common import *
import os
EXP = os.environ.get('EXP', '')
PF = os.environ.get('PF', '1') == '1'

ACC = 32
XBASE = 0
WBASE = 98304
SPARE = 159744
LDS_TOTAL = 163840
LDS_E16 = WBASE + 20480
LDS_S = WBASE + 40960
LDS_LAM = SPARE
LDS_STA = SPARE + 1024
LDS_STM = SPARE + 2048
LDS_CS = SPARE + 3072
LDS_UV = SPARE + 3584
LDS_RP = 73728
TAG = 0x5ca1ab1e
DBG_RB = 0
DBG_CT = 8
ST = " sc1"
WRN = 6

def acc(i, jj): return ACC + 4*(jj*4 + i)
def XF(par, i): return 16*par + 4*i
def WR(phi): return 32 + 4*(phi % WRN)

def consumer_loop(a, glu, hooks={}):
    NJ = 5 if glu else 4
    NJ2 = 2*NJ
    SLOT = 20480 if glu else 16384
    P3 = 6*NJ2
    def wread(phi, last=False):
        n, jj = divmod(phi, NJ2)
        if last and n >= 2: return
        s, ks = (n >> 1) % 3, n & 1
        mat, j = divmod(jj, NJ)
        off = s*SLOT
        if glu:
            for h in range(2):
                o = off + mat*10240 + (8*h + 32*ks)*160 + 32*j
                a.lds(f"ds_read_b64_tr_b16 {ar(WR(phi) + 2*h, 2)}, v8 offset:{o}", ("W", phi % P3))
        else:
            a.lds(f"ds_read_b128 {ar(WR(phi), 4)}, v{8+ks} offset:{off + mat*8192 + j*2048}", ("W", phi % P3))
    def xread(n, i, last=False):
        if last and n >= 2: return
        s, ks = (n >> 1) % 3, n & 1
        a.lds(f"ds_read_b128 {ar(XF(n & 1, i), 4)}, v{2 + s*2 + ks} offset:{i*2048}", ("X", n % 6))
    BJ = NJ2 - 3
    def kstep(n, last=False):
        ks = n & 1
        for jj in range(NJ2):
            phi = n*NJ2 + jj
            if ks == 1 and jj == BJ and not last:
                a.lgwait_all()
                a("s_mul_i32 s86, s87, 3") if os.environ.get("CST") else None
                a.dstamp(17 + (n >> 1), "s86") if os.environ.get("CST") else None
                a("s_barrier")
                if "touch" in hooks:
                    lt = a.newlabel("K1_CT")
                    a(f"s_cmp_ge_u32 s87, {(9 - PFD - (n >> 1) - 1)//3 + 1}\ns_cbranch_scc1 {lt}")
                    hooks["touch"]()
                    a.label(lt)
                lf = a.newlabel("K1_CF")
                c = (n >> 1) + 1
                if c == 1:
                    a(f"""
                    s_cmp_eq_u32 s32, s87
                    s_cselect_b32 s65, s34, 0x40000000
                    s_cselect_b32 s69, 3, s69
                    s_mov_b64 exec, 1
                    buffer_store_byte v11, v10, s[20:23], s65 offen sc1
                    v_mov_b32 v11, s69
                    s_mov_b64 exec, -1
                    """)
                a(f"""
                s_cmp_lg_u32 s33, {c}
                s_cbranch_scc1 {lf}
                s_mov_b64 exec, 1
                buffer_store_byte v11, v10, s[20:23], s34 offen sc1
                s_mov_b64 exec, -1
                """)
                a.label(lf)
            a.lgwait([("W", phi % P3), ("X", n % 6)])
            todo = []
            if ks == 0:
                todo.append(("w", phi + 4))
                if 2 <= jj < 6: todo.append(("x", n + 1, jj - 2))
            else:
                if jj + 4 < NJ2: todo.append(("w", phi + 4))
                elif jj == BJ: todo += [("w", phi + 3), ("x", n+1, 0), ("w", phi + 4), ("x", n+1, 1)]
                elif jj == BJ + 1: todo += [("w", phi + 4), ("x", n+1, 2), ("x", n+1, 3)]
                elif jj == BJ + 2: todo.append(("w", phi + 4))
            for i in range(4):
                c = vr(acc(i, jj), 4)
                xa = ar(XF(n & 1, i), 4); wa = ar(WR(phi), 4)
                if glu: a(f"v_mfma_f32_16x16x32_bf16 {c}, {wa}, {xa}, {c}")
                else:   a(f"v_mfma_f32_16x16x32_bf16 {c}, {xa}, {wa}, {c}")
                if todo:
                    t = todo.pop(0)
                    if t[0] == "w": wread(t[1], last)
                    else: xread(t[1], t[2], last)
            assert not todo
    a.stamp(1)
    a("s_barrier")
    for r in range(ACC, ACC + 16*NJ2): a(f"v_mov_b32 v{r}, 0")
    srd(a, 20, 54, 256)
    a("""
    s_mov_b32 s87, 0
    s_add_u32 s33, s62, 1
    s_cmp_lt_u32 s33, 5
    s_cselect_b32 s33, 99, s33
    s_cmp_ge_u32 s33, 7
    s_cselect_b32 s33, 99, s33
    s_cmp_eq_u32 s33, 99
    s_cselect_b32 s69, 3, 1
    v_mov_b32 v11, s69
    s_cmp_eq_u32 s3, 0
    s_cselect_b32 s33, s33, 99
    s_cselect_b32 s32, 1, 99
    s_lshl_b32 s34, s62, 5
    s_add_u32 s34, s34, s35
    v_mov_b32 v10, 0
    """)
    a("s_barrier")
    a.stamp(2)
    if "touch" in hooks: hooks["touch"]()
    wread(0); xread(0, 0); wread(1); xread(0, 1); wread(2); xread(0, 2); xread(0, 3); wread(3)
    entry = list(a.lg)
    lab = a.newlabel("K1_CL")
    a.label(lab)
    for n in range(6): kstep(n)
    assert a.lg == entry, (a.lg, entry)
    a(f"s_sub_u32 s33, s33, 3\ns_add_u32 s87, s87, 1\ns_cmp_lt_u32 s87, 3\ns_cbranch_scc1 {lab}")
    a.stamp(11)
    kstep(0, True); kstep(1, True)
    a("s_waitcnt vmcnt(0)")
    a.stamp(12)
    a("s_barrier")

def loader_loop(a, glu):
    ND = 5 if glu else 4
    SLOT = 20480 if glu else 16384
    KADV = 64*3456 if glu else 128
    XQ = 16*1280 if glu else 2*1280
    WH = 32*3456 if glu else 32*1280
    NV = 2*ND + 16
    def dma(s, part=None):
        if s >= 10: return
        ops = []
        for c in range(2):
            for q in range(8):
                ops.append(f"s_add_u32 m0, s41, {(s % 3)*32768 + c*8192 + q*1024}\ns_add_u32 s68, s36, {c*64*1280 + (q >> 1)*XQ + 128*s}\nbuffer_load_dwordx4 v{4+(q & 1)}, s[8:11], s68 offen lds")
            for n in range(ND):
                ops.append(f"s_add_u32 m0, s42, {(s % 3)*SLOT + (c*ND + n)*1024}\n" + (f"s_add_u32 s69, s40, {KADV*s + c*WH}" if n == 0 else "s_nop 0") + f"\nbuffer_load_dwordx4 v{12+n}, s[12:15], s69 offen lds")
        h = NV // 2
        for o in (ops if part is None else (ops[:h] if part == 0 else ops[h:])): a(o)
    a.stamp(1)
    dma(0)
    a("s_barrier")
    a(f"s_waitcnt vmcnt({NV//2})")
    dma(1, 0)
    a(f"s_waitcnt vmcnt({NV//2})")
    for s in range(10):
        a.stamp(2 + s)
        a("s_barrier")
        a.stamp(16 + s)
        if s == 0: dma(1, 1)
        dma(s + 2)
        if s <= 7: a(f"s_waitcnt vmcnt({NV})")
        if s == 8: a("s_waitcnt vmcnt(0)")
    a("s_endpgm")

def helper_loop(a, glu, hooks={}):
    NJ = 5 if glu else 4
    SLOT = 20480 if glu else 16384
    def colsum(s, dst):
        off = (s % 3)*SLOT
        for ks in range(2):
            for j in range(NJ):
                r = 88 + 20*ks + 4*j
                if glu:
                    for h in range(2): a(f"ds_read_b64_tr_b16 {vr(r+2*h,2)}, v18 offset:{off + (8*h + 32*ks)*160 + 32*j}")
                else:
                    a(f"ds_read_b128 {vr(r,4)}, v{18 if ks == 0 else 16} offset:{off + j*2048}")
            if ks == 0 and glu: a("s_waitcnt lgkmcnt(2)")
        for ks in range(2):
            a(f"s_waitcnt lgkmcnt({(2*NJ if glu else NJ) if ks == 0 else 0})")
            for j in range(NJ):
                a(f"v_mfma_f32_16x16x32_bf16 {vr(dst+4*j,4)}, v[56:59], {vr(88+20*ks+4*j,4)}, {vr(dst+4*j,4)}")
    def pick(dst):
        a(f"s_nop 7\nv_mov_b32 v24, v{dst}")
        for g in range(1, 4):
            a(f"v_cmp_eq_u32 vcc, {g}, v30\ns_nop 1\nv_cndmask_b32 v24, v24, v{dst+4*g}, vcc")
        if glu: a(f"v_mov_b32 v25, v{dst+16}")
    def remote_colsum(s):
        l4 = a.newlabel("K1_LC")
        a(f"s_cmp_lg_u32 s62, {s}\ns_cbranch_scc1 {l4}")
        colsum(s, 128); pick(128)
        a("buffer_store_dword v24, v19, s[28:31], s93 offen sc1")
        if glu: a("s_mov_b64 exec, 0xffff\nbuffer_store_dword v25, v19, s[28:31], s93 offen offset:256 sc1\ns_mov_b64 exec, -1")
        a.label(l4)
    def red16(v):
        for r in (8, 4, 2, 1):
            a(f"s_nop 1\nv_add_f32_dpp v{v}, v{v}, v{v} row_ror:{r} row_mask:0xf bank_mask:0xf")
    inv640 = 0x3acccccd
    U = 148
    def stats_a():
        a("s_waitcnt vmcnt(0)")
        for k in range(20):
            a(f"v_lshlrev_b32 v{U+2*k}, 16, v{60+k}\nv_and_b32 v{U+1+2*k}, 0xffff0000, v{60+k}")
        a(f"v_pk_add_f32 v[22:23], {vr(U,2)}, {vr(U+2,2)}\nv_pk_add_f32 v[28:29], {vr(U+4,2)}, {vr(U+6,2)}")
        for k in range(U+8, U+40, 4):
            a(f"v_pk_add_f32 v[22:23], v[22:23], v[{k}:{k+1}]\nv_pk_add_f32 v[28:29], v[28:29], v[{k+2}:{k+3}]")
        a("v_pk_add_f32 v[22:23], v[22:23], v[28:29]\ns_nop 0\nv_add_f32 v22, v22, v23")
        red16(22)
        a(f"v_mul_f32 v80, {inv640:#x}, v22")
    def stats_b():
        for k in range(U, U+40, 2):
            a(f"v_pk_add_f32 v[{k}:{k+1}], v[{k}:{k+1}], v[80:81] op_sel_hi:[1,0] neg_lo:[0,1] neg_hi:[0,1]")
        a(f"v_pk_mul_f32 v[22:23], {vr(U,2)}, {vr(U,2)}\nv_pk_mul_f32 v[28:29], {vr(U+2,2)}, {vr(U+2,2)}")
        for k in range(U+4, U+40, 4):
            a(f"v_pk_fma_f32 v[22:23], v[{k}:{k+1}], v[{k}:{k+1}], v[22:23]\nv_pk_fma_f32 v[28:29], v[{k+2}:{k+3}], v[{k+2}:{k+3}], v[28:29]")
        a("v_pk_add_f32 v[22:23], v[22:23], v[28:29]\ns_nop 0\nv_add_f32 v25, v22, v23")
        red16(25)
        a(f"v_mul_f32 v25, {inv640:#x}, v25")
        bf16r(a, 24, 80); bf16r(a, 25, 25)
        a("v_add_f32 v25, 0x3727c5ac, v25")
        bf16r(a, 25, 25)
        a("v_sqrt_f32 v25, v25\ns_nop 0")
        bf16r(a, 25, 25)
        a("""
        v_rcp_f32 v25, v25
        s_mov_b32 exec_lo, 0x10001
        s_mov_b32 exec_hi, 0x10001
        buffer_store_dwordx2 v[24:25], v26, s[24:27], 0 offen sc1
        s_mov_b64 exec, -1
        """)
    a(f"""
    s_lshl_b32 s66, s62, 8
    s_lshl_b32 s67, s35, 3
    s_add_u32 s66, s66, s67
    s_lshl_b32 s67, s43, 2
    s_add_u32 s66, s66, s67
    s_mul_i32 s94, s66, 1280
    v_mul_u32_u24 v54, 1280, v30
    v_lshl_add_u32 v54, v31, 4, v54
    v_add_u32 v26, s66, v30
    v_lshlrev_b32 v26, 3, v26
    s_barrier
    """)
    for q in range(5):
        a(f"buffer_load_dwordx4 {vr(60+4*q,4)}, v54, s[8:11], s94 offen offset:{256*q}")
    if "preload" in hooks: hooks["preload"]()
    srd(a, 24, 4, L*8, WS_STAT); srd(a, 28, 4, CSP_BYTES, WS_CSP)
    for r in range(32, 52): a(f"v_mov_b32 v{r}, 0")
    for r in range(128, 148): a(f"v_mov_b32 v{r}, 0")
    for r in range(56, 60): a(f"v_mov_b32 v{r}, 0x3f803f80")
    a(f"""
    s_lshl_b32 s92, s35, 3
    s_add_u32 s93, s92, s62
    s_lshl_b32 s93, s93, 1
    s_add_u32 s93, s93, s43
    s_mul_i32 s93, s93, 320
    s_lshl_b32 s92, s92, 1
    s_add_u32 s92, s92, s43
    s_mul_i32 s92, s92, 320
    v_lshlrev_b32 v19, 2, v1
    s_and_b32 s66, s35, 3
    s_lshl_b32 s66, s66, 3
    s_lshl_b32 s66, 2, s66
    s_lshr_b32 s67, s35, 2
    v_mov_b32 v22, s66
    v_cmp_eq_u32 vcc, s67, v21
    v_mov_b32 v23, 0x01010101
    s_nop 0
    v_cndmask_b32 v17, 0, v22, vcc
    v_cmp_eq_u32 vcc, s62, v20
    s_nop 1
    v_cndmask_b32 v23, 0, v23, vcc
    v_or_b32 v17, v17, v23
    v_add_u32 v22, {LDS_CS}, v19
    v_mov_b32 v23, 0
    ds_write_b32 v22, v23
    ds_write_b32 v22, v23 offset:256
    ds_write_b32 v22, v23 offset:512
    s_waitcnt lgkmcnt(0)
    """)
    for s in range(10):
        a.stamp(2 + s)
        a("s_barrier")
        a.stamp(16 + s)
        if s <= 5 and "norc" not in EXP: remote_colsum(s)
        if s == 1 and "nost" not in EXP: stats_a()
        if s == 2 and "nost" not in EXP: stats_b()
        if s == 3 and "noc" not in EXP: hooks["c_issue"]()
        if ("side", s) in hooks: hooks[("side", s)]()
        if s == 5 and "noc" not in EXP: hooks["c_finish"]()
        if s == 6: hooks["w_issue"](); srd(a, 20, 54, 256)
        if s == 8:
            a("buffer_load_dwordx2 v[26:27], v53, s[24:27], 0 offen sc1")
            a("buffer_load_dwordx2 v[28:29], v53, s[24:27], 0 offen offset:512 sc1")
            for r in range(6):
                a(f"s_add_u32 s66, s92, {r*640}")
                a(f"buffer_load_dword v{60+r}, v19, s[28:31], s66 offen sc1")
                if glu: a(f"buffer_load_dword v{68+r}, v19, s[28:31], s66 offen offset:256 sc1")
        if s >= 6: colsum(s, 32)
        if 3 <= s <= 5: a("s_waitcnt vmcnt(%d)" % (8 if s == 3 else 0 if s == 4 else 4))
        if s == 7:
            lp = a.newlabel("K1_GP"); lo = a.newlabel("K1_GO")
            a(f"s_mov_b32 s67, 0\ns_cmp_lg_u32 s43, 0\ns_cbranch_scc1 {lo}")
            a.label(lp)
            a(f"""
            buffer_load_dword v52, v19, s[20:23], 0 offen sc1
            s_add_u32 s67, s67, 1
            s_waitcnt vmcnt(0)
            v_and_b32 v22, v52, v17
            v_cmp_eq_u32 vcc, v22, v17
            s_cmp_eq_u64 vcc, -1
            s_cbranch_scc1 {lo}
            s_cmp_lt_u32 s67, 100000
            s_sleep 2
            s_cbranch_scc1 {lp}
            """)
            a.label(lo)
    pick(32)
    a.stamp(12)
    a(f"""
    s_mul_i32 s65, s43, {NJ*64}
    v_add_u32 v22, s65, v19
    v_add_u32 v22, {LDS_CS}, v22
    s_lshl_b32 s65, s43, 9
    v_add_u32 v23, s65, v19
    v_add_u32 v23, {LDS_STA}, v23
    s_waitcnt vmcnt(0)
    ds_write_b32 v23, v27
    ds_write_b32 v23, v26 offset:1024
    ds_write_b32 v23, v29 offset:256
    ds_write_b32 v23, v28 offset:1280
    """)
    for r in range(6):
        a(f"v_add_f32 v24, v24, v{60+r}")
        if glu: a(f"v_add_f32 v25, v25, v{68+r}")
    a("ds_write_b32 v22, v24")
    if glu: a("s_mov_b64 exec, 0xffff\nds_write_b32 v22, v25 offset:256\ns_mov_b64 exec, -1")
    a.stamp(13)
    a("s_waitcnt lgkmcnt(0)\ns_barrier")
    a.stamp(14)

PFD = int(os.environ.get("PFD", "3"))
def prefetch_setup(a, glu):
    if not PF: return {}
    KADV = 64*3456 if glu else 128
    p0, p1 = (56, 58) if glu else (48, 50)
    a(f"""
    s_cmp_eq_u32 s3, 0
    s_cselect_b32 s12, s{p0}, s{p1}
    s_cselect_b32 s13, s{p0+1}, s{p1+1}
    s_mov_b32 s14, {D*F*2 if glu else P*D*2}
    s_mov_b32 s15, 0x20000
    s_mov_b32 s81, {KADV}
    s_lshr_b32 s82, s61, 3
    s_lshl_b32 s82, s82, 4
    """)
    if glu:
        a(f"""
        s_mul_i32 s80, s82, 3456
        s_mul_i32 s82, s63, 160
        s_add_u32 s80, s80, s82
        v_mul_u32_u24 v14, 3456, v31
        v_bfe_u32 v15, v1, 4, 1
        v_mul_u32_u24 v15, 156, v15
        v_add_u32 v14, v14, v15
        s_mov_b32 s83, 32
        """)
    else:
        a(f"""
        s_lshl_b32 s80, s63, 6
        s_add_u32 s80, s80, s82
        s_mul_i32 s80, s80, 1280
        v_mul_u32_u24 v14, 1280, v31
        s_mov_b32 s83, 16
        """)
    a(f"""
    s_lshl_b32 s82, s62, 8
    s_and_b32 s84, s61, 7
    s_lshl_b32 s84, s84, 5
    s_add_u32 s82, s82, s84
    s_mul_i32 s82, s82, 1280
    v_mul_u32_u24 v15, 1280, v1
    s_cmp_eq_u32 s3, 2
    s_cselect_b32 s12, s8, s12
    s_cselect_b32 s13, s9, s13
    s_cselect_b32 s14, s10, s14
    s_cselect_b32 s80, s82, s80
    s_cselect_b32 s81, 128, s81
    s_cselect_b32 s83, 32, s83
    s_cselect_b64 vcc, -1, 0
    s_cmp_eq_u32 s3, 3
    s_cselect_b32 s83, 0, s83
    v_cndmask_b32 v14, v14, v15, vcc
    v_cmp_gt_u32 vcc, s83, v1
    v_mov_b32 v15, 0x40000000
    s_nop 0
    v_cndmask_b32 v14, v15, v14, vcc
    """)
    def touch():
        a("s_add_u32 s80, s80, s81\nbuffer_load_dword v16, v14, s[12:15], s80 offen")
    for _ in range(PFD - 1): touch()
    return {"touch": touch}

def repack_hooks(a):
    def c_issue():
        a(f"""
        s_waitcnt lgkmcnt(0)
        v_mul_u32_u24 v23, 1280, v31
        v_bfe_u32 v24, v1, 4, 1
        v_lshl_add_u32 v23, v24, 4, v23
        s_mov_b32 s22, {D*P*2}
        s_mov_b32 s23, 0x20000
        """)
        for k in range(2):
            a(f"""
            s_lshl_b32 s66, s2, 1
            s_add_u32 s66, s66, s43
            s_add_u32 s66, s66, {512*k}
            s_mul_i32 s72, s66, 52429
            s_lshr_b32 s72, s72, 20
            s_mul_i32 s73, s72, 20
            s_sub_u32 s73, s66, s73
            s_mul_i32 s74, s72, {16*1280}
            s_lshl_b32 s75, s73, 6
            s_add_u32 s74, s74, s75
            s_mul_i32 s72, s72, {NS2}
            s_lshl_b32 s73, s73, 1
            s_add_u32 s72, s72, s73
            s_lshl_b32 s72, s72, 10
            s_cmp_lt_u32 s66, 800
            s_cselect_b32 s74, s74, 0x40000000
            s_cselect_b32 s{86+k}, s72, 0x40000000
            s_mov_b32 s20, s80
            s_mov_b32 s21, s81
            s_mov_b32 exec_hi, 0
            buffer_load_dwordx4 {vr(60+8*k,4)}, v23, s[20:23], s74 offen
            buffer_load_dwordx4 {vr(64+8*k,4)}, v23, s[20:23], s74 offen offset:32
            s_mov_b32 s20, s82
            s_mov_b32 s21, s83
            s_mov_b32 exec_hi, -1
            s_mov_b32 exec_lo, 0
            buffer_load_dwordx4 {vr(60+8*k,4)}, v23, s[20:23], s74 offen
            buffer_load_dwordx4 {vr(64+8*k,4)}, v23, s[20:23], s74 offen offset:32
            s_mov_b32 exec_lo, -1
            """)
    def c_finish():
        a("v_lshlrev_b32 v25, 4, v1")
        for k in range(2):
            a(f"buffer_store_dwordx4 {vr(60+8*k,4)}, v25, s[16:19], s{86+k} offen sc1")
            a(f"buffer_store_dwordx4 {vr(64+8*k,4)}, v25, s[16:19], s{86+k} offen offset:1024 sc1")
    def w_issue():
        a("v_mul_u32_u24 v22, 1280, v20\nv_lshl_add_u32 v22, v21, 4, v22")
        srd(a, 20, 84, F*D*2)
        for b in range(2):
            a(f"""
            s_lshl_b32 s66, s2, 1
            s_add_u32 s66, s66, s43
            s_add_u32 s66, s66, {512*b}
            s_mul_i32 s67, s66, 6554
            s_lshr_b32 s67, s67, 16
            s_mul_i32 s68, s67, 10
            s_sub_u32 s68, s66, s68
            s_mul_i32 s69, s67, {32*1280}
            s_lshl_b32 s70, s68, 7
            s_add_u32 s69, s69, s70
            s_cmp_lt_u32 s66, 540
            s_cselect_b32 s69, s69, 0x40000000
            """)
            for k in range(4):
                a(f"s_add_u32 s72, s69, {k*8*1280}")
                a(f"buffer_load_dwordx4 {vr(148+16*b+4*k,4)}, v22, s[20:23], s72 offen")
            a(f"""
            s_mul_i32 s70, s67, 52429
            s_lshr_b32 s70, s70, 18
            s_mul_i32 s73, s70, 5
            s_sub_u32 s73, s67, s73
            s_add_u32 s72, s67, 2
            s_mul_i32 s72, s72, 52429
            s_lshr_b32 s72, s72, 18
            s_sub_u32 s72, s67, s72
            s_add_u32 s72, s72, 40
            s_add_u32 s70, s70, 84
            s_cmp_eq_u32 s73, 2
            s_cselect_b32 s70, s70, s72
            s_mul_i32 s73, s68, {4*NS2}
            s_add_u32 s70, s70, s73
            s_lshl_b32 s70, s70, 10
            s_cmp_lt_u32 s66, 540
            s_cselect_b32 s{86+b}, s70, 0x40000000
            """)
    def w_finish():
        a(f"""
        s_mul_i32 s72, s43, 9216
        s_add_u32 s72, s72, {LDS_RP}
        v_mul_u32_u24 v2, 144, v20
        v_lshl_add_u32 v2, v21, 4, v2
        v_add_u32 v2, s72, v2
        v_bfe_u32 v3, v1, 2, 2
        v_lshl_add_u32 v3, v30, 2, v3
        v_mul_u32_u24 v3, 144, v3
        v_and_b32 v4, 3, v1
        v_lshl_add_u32 v3, v4, 3, v3
        v_add_u32 v3, s72, v3
        v_lshlrev_b32 v4, 4, v1
        s_waitcnt vmcnt(0)
        """)
        for k in range(8):
            a(f"ds_write_b128 v2, {vr(148+4*k,4)} offset:{k*8*144}")
        a("s_waitcnt lgkmcnt(0)")
        for b in range(2):
            for dd in range(4):
                r = 148 + 16*b + 4*dd
                a(f"ds_read_b64_tr_b16 {vr(r,2)}, v3 offset:{b*4608 + 32*dd}")
                a(f"ds_read_b64_tr_b16 {vr(r+2,2)}, v3 offset:{b*4608 + 16*144+32*dd}")
            a("s_waitcnt lgkmcnt(0)")
            for dd in range(4):
                a(f"s_add_u32 s72, s{86+b}, {dd*NS2*1024}")
                a(f"buffer_store_dwordx4 {vr(148+16*b+4*dd,4)}, v4, s[16:19], s72 offen sc1")
    return {"c_issue": c_issue, "c_finish": c_finish, "w_issue": w_issue}, w_finish

def gen_k1():
    a = Asm()
    a.raw(".p2align 8\n.type gemm1_kernel,@function\ngemm1_kernel:")
    a(f"""
    s_cmp_ge_u32 s2, 256
    s_cbranch_scc1 K1_END
    s_load_dwordx2 s[4:5], s[0:1], {KA['ws']}
    s_load_dwordx2 s[6:7], s[0:1], {KA['x']}
    s_load_dwordx4 s[44:47], s[0:1], {KA['lre']}
    s_load_dwordx4 s[48:51], s[0:1], {KA['bre']}
    s_load_dwordx2 s[52:53], s[0:1], {KA['ldt']}
    s_load_dwordx2 s[54:55], s[0:1], {KA['dbg']}
    s_load_dwordx4 s[56:59], s[0:1], {KA['wg']}
    v_and_b32 v1, 63, v0
    v_lshrrev_b32 v2, 6, v0
    s_nop 0
    v_readfirstlane_b32 s3, v2
    s_and_b32 s60, s2, 7
    s_lshr_b32 s61, s2, 3
    s_lshr_b32 s62, s60, 2
    s_lshl_b32 s62, s62, 2
    s_lshr_b32 s63, s61, 3
    s_add_u32 s62, s62, s63
    s_and_b32 s63, s60, 3
    s_lshl_b32 s63, s63, 3
    s_and_b32 s64, s61, 7
    s_add_u32 s63, s63, s64
    s_and_b32 s43, s3, 3
    s_mov_b32 s35, s63
    v_lshrrev_b32 v30, 4, v1
    v_and_b32 v31, 15, v1
    s_waitcnt lgkmcnt(0)
    """)
    srd(a, 8, 6, XN_BYTES)
    srd(a, 16, 4, HP_BYTES, WS_HP)
    srd(a, 76, 4, AGG_BYTES, WS_AGG)
    a(f"""
    v_lshrrev_b32 v10, 1, v31
    v_xor_b32 v10, v10, v30
    v_lshlrev_b32 v11, 7, v31
    v_lshl_add_u32 v10, v10, 4, v11
    v_bfe_u32 v14, v1, 2, 2
    v_bfe_u32 v15, v1, 4, 1
    v_lshl_add_u32 v14, v15, 2, v14
    v_bfe_u32 v15, v1, 5, 1
    v_lshl_add_u32 v14, v15, 4, v14
    v_mul_u32_u24 v14, 160, v14
    v_and_b32 v15, 3, v1
    v_lshl_add_u32 v11, v15, 3, v14
    s_cmp_ge_u32 s3, 4
    s_cbranch_scc1 K1_LOADER
    """)
    a(f"""
    s_lshl_b32 s65, s3, 13
    v_add_u32 v2, s65, v10
    v_xor_b32 v3, 64, v2
    v_add_u32 v4, 32768, v2
    v_add_u32 v5, 32768, v3
    v_add_u32 v6, 65536, v2
    v_add_u32 v7, 65536, v3
    s_lshl_b32 s64, s62, 4
    s_lshl_b32 s65, s3, 2
    s_add_u32 s64, s64, s65
    s_mul_i32 s64, s64, {NS2*1024}
    v_lshlrev_b32 v12, 4, v1
    s_cmp_lt_u32 s63, 10
    s_cbranch_scc1 K1_SSM
    """)
    a(f"""
    s_sub_u32 s63, s63, 10
    v_add_u32 v8, {WBASE}, v11
    s_lshr_b32 s65, s63, 1
    s_and_b32 s66, s63, 1
    s_lshl_b32 s67, s65, 2
    s_lshl_b32 s68, s66, 1
    s_add_u32 s67, s67, s68
    s_add_u32 s67, s67, 40
    s_lshl_b32 s67, s67, 10
    s_add_u32 s70, s67, s64
    s_add_u32 s71, s70, 1024
    s_cmp_eq_u32 s63, 21
    s_cselect_b32 s71, 0x40000000, s71
    s_add_u32 s67, s65, 84
    s_lshl_b32 s67, s67, 10
    s_lshl_b32 s68, s66, 9
    s_add_u32 s67, s67, s68
    s_add_u32 s72, s67, s64
    v_lshlrev_b32 v13, 3, v1
    """)
    consumer_loop(a, True, prefetch_setup(a, True))
    a(f"""
    s_lshl_b32 s65, s3, 8
    v_lshlrev_b32 v2, 2, v31
    v_add_u32 v2, s65, v2
    v_add_u32 v2, {LDS_STA}, v2
    v_lshlrev_b32 v3, 4, v30
    v_add_u32 v3, {LDS_CS}, v3
    """)
    for i in range(4):
        a(f"ds_read_b32 v{4+i}, v2 offset:{64*i}")
        a(f"ds_read_b32 v{8+i}, v2 offset:{1024+64*i}")
    a("s_cmp_eq_u32 s66, 1\ns_waitcnt lgkmcnt(0)")
    for i in range(4): a(f"v_mul_f32 v{4+i}, v{4+i}, v{4+i}")
    a("s_cbranch_scc1 K1_GLU_ODD")
    for odd in range(2):
        if odd: a.label("K1_GLU_ODD")
        groups = [(4,), (0, 1), (2, 3)] if not odd else [(0,), (1, 2), (3, 4)]
        k = 0
        for gi, grp in enumerate(groups):
            for x, j in enumerate(grp):
                a(f"ds_read_b128 {vr(14+8*x,4)}, v3 offset:{64*j}")
                a(f"ds_read_b128 {vr(18+8*x,4)}, v3 offset:{320+64*j}")
            a("s_waitcnt lgkmcnt(0)")
            for i in range(4):
                mi = 8 + (i & ~1); msel = i & 1
                ai = 4 + (i & ~1)
                sel = f"op_sel:[0,{msel},0] op_sel_hi:[1,{msel},1] neg_lo:[0,1,0] neg_hi:[0,1,0]"
                sel2 = f"op_sel:[0,{msel}] op_sel_hi:[1,{msel}]"
                for x, j in enumerate(grp):
                    G = acc(i, j); U = acc(i, 5+j)
                    for h in range(2):
                        a(f"v_pk_fma_f32 {vr(G+2*h,2)}, {vr(14+8*x+2*h,2)}, {vr(mi,2)}, {vr(G+2*h,2)} {sel}")
                        a(f"v_pk_fma_f32 {vr(U+2*h,2)}, {vr(18+8*x+2*h,2)}, {vr(mi,2)}, {vr(U+2*h,2)} {sel}")
                    for h in range(2):
                        a(f"v_pk_mul_f32 {vr(G+2*h,2)}, {vr(G+2*h,2)}, {vr(U+2*h,2)}")
                    for h in range(2):
                        a(f"v_pk_mul_f32 {vr(G+2*h,2)}, {vr(G+2*h,2)}, {vr(ai,2)} {sel2}")
                T = acc(i, 5+grp[0])
                for x, j in enumerate(grp):
                    G = acc(i, j)
                    a(f"v_cvt_pk_bf16_f32 v{T+2*x}, v{G}, v{G+1}")
                    a(f"v_cvt_pk_bf16_f32 v{T+2*x+1}, v{G+2}, v{G+3}")
                a(f"s_add_u32 s75, s{72 if gi == 0 else 69+gi}, {i*NS2*1024}")
                if gi == 0: a(f"buffer_store_dwordx2 {vr(T,2)}, v13, s[16:19], s75 offen{ST}")
                else: a(f"buffer_store_dwordx4 {vr(T,4)}, v12, s[16:19], s75 offen{ST}")
        a("s_endpgm")
    a.label("K1_SSM")
    a.lg = []
    a(f"""
    v_add_u32 v8, {WBASE}, v10
    v_xor_b32 v9, 64, v8
    s_lshl_b32 s65, s63, 12
    s_add_u32 s64, s64, s65
    """)
    consumer_loop(a, False, prefetch_setup(a, False))
    LAM = 14
    a(f"""
    v_lshlrev_b32 v13, 4, v31
    v_add_u32 v13, {LDS_LAM}, v13
    s_lshl_b32 s65, s3, 8
    v_lshlrev_b32 v2, 4, v30
    v_add_u32 v2, s65, v2
    v_add_u32 v2, {LDS_STA}, v2
    v_lshlrev_b32 v3, 2, v31
    v_add_u32 v3, {LDS_CS}, v3
    """)
    for i in range(4):
        a(f"ds_read_b128 {vr(160+4*i,4)}, v2 offset:{64*i}")
        a(f"ds_read_b128 {vr(176+4*i,4)}, v2 offset:{1024+64*i}")
    for jj in range(8):
        a(f"ds_read_b32 v{4+jj}, v3 offset:{64*jj}")
    a(f"v_lshlrev_b32 v2, 3, v31\nv_add_u32 v2, {LDS_UV}, v2")
    for j in range(4):
        a(f"ds_read_b64 {vr(14+2*j,2)}, v2 offset:{128*j}")
    a("s_waitcnt lgkmcnt(0)")
    for j in range(4):
        for jj in (j, 4+j):
            cs = 4 + (jj & ~1); sl = jj & 1
            for i in range(4):
                A = acc(i, jj)
                for h in range(2):
                    a(f"v_pk_fma_f32 {vr(A+2*h,2)}, {vr(176+4*i+2*h,2)}, {vr(cs,2)}, {vr(A+2*h,2)} op_sel:[0,{sl},0] op_sel_hi:[1,{sl},1] neg_lo:[0,1,0] neg_hi:[0,1,0]")
            for i in range(4):
                A = acc(i, jj)
                for h in range(2):
                    a(f"v_pk_mul_f32 {vr(A+2*h,2)}, {vr(A+2*h,2)}, {vr(160+4*i+2*h,2)}")
        U = 14 + 2*j
        for half in range(2):
            prs = [(acc(i, j)+2*h, acc(i, 4+j)+2*h) for i in (2*half, 2*half+1) for h in range(2)]
            for k, (R, I) in enumerate(prs):
                a(f"v_pk_mul_f32 {vr(22+2*k,2)}, {vr(R,2)}, {vr(U,2)} op_sel:[0,1] op_sel_hi:[1,1]")
            for k, (R, I) in enumerate(prs):
                a(f"v_pk_mul_f32 {vr(R,2)}, {vr(R,2)}, {vr(U,2)} op_sel:[0,0] op_sel_hi:[1,0]")
            for k, (R, I) in enumerate(prs):
                a(f"v_pk_fma_f32 {vr(R,2)}, {vr(I,2)}, {vr(U,2)}, {vr(R,2)} op_sel:[0,1,0] op_sel_hi:[1,1,1] neg_lo:[0,1,0] neg_hi:[0,1,0]")
            for k, (R, I) in enumerate(prs):
                a(f"v_pk_fma_f32 {vr(I,2)}, {vr(I,2)}, {vr(U,2)}, {vr(22+2*k,2)} op_sel:[0,0,0] op_sel_hi:[1,0,1]")
    for j in range(4):
        a(f"ds_read_b128 {vr(LAM+4*j,4)}, v13 offset:{256*j}")
    a(f"""
    s_lshl_b32 s65, s3, 2
    v_add_u32 v10, s65, v30
    v_lshlrev_b32 v10, 9, v10
    v_lshl_add_u32 v10, v31, 3, v10
    v_add_u32 v10, {LDS_E16}, v10
    s_waitcnt lgkmcnt(0)
    """)
    def BR(j, sg): return acc(sg >> 1, j) + 2*(sg & 1)
    def BI(j, sg): return acc(sg >> 1, 4+j) + 2*(sg & 1)
    E = 160
    def ER(q, j): return E + 16*q + 4*j
    def EI(q, j): return E + 16*q + 4*j + 2
    def step(dR, dI, pR, pI, bR, bI, lam):
        return [
          f"v_pk_fma_f32 {vr(dR,2)}, {vr(lam,2)}, {vr(pR,2)}, {vr(bR,2)} op_sel_hi:[0,1,1]",
          f"v_pk_fma_f32 {vr(dI,2)}, {vr(lam,2)}, {vr(pI,2)}, {vr(bI,2)} op_sel_hi:[0,1,1]",
          f"v_pk_fma_f32 {vr(dR,2)}, {vr(lam,2)}, {vr(pI,2)}, {vr(dR,2)} op_sel:[1,0,0] op_sel_hi:[1,1,1] neg_lo:[1,0,0] neg_hi:[1,0,0]",
          f"v_pk_fma_f32 {vr(dI,2)}, {vr(lam,2)}, {vr(pR,2)}, {vr(dI,2)} op_sel:[1,0,0] op_sel_hi:[1,1,1]"]
    for sg in range(1, 8):
        q = sg & 1
        cols = []
        for j in range(4):
            pR, pI = (BR(j, 0), BI(j, 0)) if sg == 1 else (ER(q ^ 1, j), EI(q ^ 1, j))
            cols.append(step(ER(q, j), EI(q, j), pR, pI, BR(j, sg), BI(j, sg), LAM+4*j))
        for k in range(4):
            for j in range(4): a(cols[j][k])
    for j in range(4):
        c = ER(0, j); r = ER(1, j); im = EI(1, j); l8 = LAM+4*j+2
        a(f"""
        v_fma_f32 v{c}, v{l8}, v{r}, v{r+1}
        v_fma_f32 v{c+1}, v{l8}, v{im}, v{im+1}
        v_fma_f32 v{c}, -v{l8+1}, v{im}, v{c}
        v_fma_f32 v{c+1}, v{l8+1}, v{r}, v{c+1}
        ds_write_b64 v10, {vr(c,2)} offset:{128*j}
        """)
    a(f"""
    s_mul_i32 s65, s3, 18432
    v_mul_u32_u24 v2, 144, v31
    v_lshl_add_u32 v2, v30, 5, v2
    v_add_u32 v2, s65, v2
    v_bfe_u32 v3, v1, 2, 2
    v_lshl_add_u32 v3, v30, 3, v3
    v_mul_u32_u24 v3, 144, v3
    v_and_b32 v4, 3, v1
    v_lshl_add_u32 v3, v4, 3, v3
    v_add_u32 v3, s65, v3
    s_waitcnt lgkmcnt(0)
    s_barrier
    """)
    a.stamp(13)
    a("s_barrier")
    a.stamp(14)
    for j in range(4):
        h = ER(0, j)
        a(f"ds_read_b32 v{h}, v10 offset:{LDS_S-LDS_E16+128*j}")
        a(f"ds_read_b32 v{h+2}, v10 offset:{LDS_S-LDS_E16+128*j+4}")
    a("s_waitcnt lgkmcnt(0)")
    for j in range(4):
        h = ER(0, j); l8 = LAM+4*j+2
        a(f"""
        v_fma_f32 v{h+1}, v{l8}, v{h}, v{ER(1,j)}
        v_fma_f32 v{h+3}, v{l8}, v{h+2}, v{EI(1,j)}
        v_fma_f32 v{h+1}, -v{l8+1}, v{h+2}, v{h+1}
        v_fma_f32 v{h+3}, v{l8+1}, v{h}, v{h+3}
        """)
    for sg in range(8):
        cols = []
        for j in range(4):
            pR, pI = (ER(0, j), EI(0, j)) if sg == 0 else (BR(j, sg-1), BI(j, sg-1))
            cols.append(step(BR(j, sg), BI(j, sg), pR, pI, BR(j, sg), BI(j, sg), LAM+4*j))
        for k in range(4):
            for j in range(4): a(cols[j][k])
    for jj in range(8):
        im, j = divmod(jj, 4)
        t = 160 + 8*(jj % 4)
        for i in range(4):
            A = acc(i, jj)
            ng = "-" if im else ""
            a(f"v_cvt_pk_bf16_f32 v{t+i}, {ng}v{A}, {ng}v{A+2}")
            a(f"v_cvt_pk_bf16_f32 v{t+4+i}, {ng}v{A+1}, {ng}v{A+3}")
        o = (32*j + 16*im)*144
        a(f"ds_write_b128 v2, {vr(t,4)} offset:{o}")
        a(f"ds_write_b128 v2, {vr(t+4,4)} offset:{o+16}")
    a("s_waitcnt lgkmcnt(0)")
    for i in range(4):
        for j in range(4):
            d = ACC + 4*(i*4+j)
            for h in range(2):
                a(f"ds_read_b64_tr_b16 {vr(d+2*h,2)}, v3 offset:{(32*j+4*h)*144 + 32*i}")
    k = 0
    for i in range(4):
        for j in range(4):
            d = ACC + 4*(i*4+j)
            k += 1
            a(f"s_waitcnt lgkmcnt({min(15, 32-2*k)})")
            a(f"s_add_u32 s65, s64, {(i*NS2 + j)*1024}")
            a(f"buffer_store_dwordx4 {vr(d,4)}, v12, s[16:19], s65 offen{ST}")
    a("s_endpgm")
    a.label("K1_LOADER")
    a(f"""
    s_and_b32 s43, s3, 1
    s_lshl_b32 s64, s62, 8
    s_lshl_b32 s65, s43, 7
    s_add_u32 s64, s64, s65
    v_lshrrev_b32 v20, 3, v1
    v_and_b32 v21, 7, v1
    s_cmp_ge_u32 s3, 6
    s_cbranch_scc1 K1_HELPER
    s_mul_i32 s36, s64, 1280
    s_lshl_b32 s41, s43, 14
    s_cmp_lt_u32 s63, 10
    s_cbranch_scc1 K1_LSSM
    s_sub_u32 s63, s63, 10
    s_cmp_eq_u32 s43, 0
    s_cselect_b32 s12, s56, s58
    s_cselect_b32 s13, s57, s59
    s_mov_b32 s14, {D*F*2}
    s_mov_b32 s15, 0x20000
    s_mul_i32 s40, s63, 160
    s_mul_i32 s42, s43, 10240
    s_add_u32 s42, s42, {WBASE}
    """)
    for q in range(2):
        a(f"""
        v_add_u32 v22, {8*q}, v20
        v_bfe_u32 v23, v22, 1, 3
        v_xor_b32 v23, v23, v21
        v_mul_u32_u24 v22, 1280, v22
        v_lshl_add_u32 v{4+q}, v23, 4, v22
        """)
    for n in range(5):
        a(f"""
        v_add_u32 v22, {64*n}, v1
        v_mul_u32_u24 v23, 6554, v22
        v_lshrrev_b32 v23, 16, v23
        v_mul_u32_u24 v24, 10, v23
        v_sub_u32 v24, v22, v24
        v_and_b32 v25, 0x33, v23
        v_bfe_u32 v26, v23, 2, 1
        v_lshl_or_b32 v25, v26, 3, v25
        v_bfe_u32 v26, v23, 3, 1
        v_lshl_or_b32 v25, v26, 2, v25
        v_mul_u32_u24 v25, 3456, v25
        v_lshl_add_u32 v{12+n}, v24, 4, v25
        """)
    loader_loop(a, True)
    a.label("K1_LSSM")
    a(f"""
    s_cmp_eq_u32 s43, 0
    s_cselect_b32 s12, s48, s50
    s_cselect_b32 s13, s49, s51
    s_mov_b32 s14, {P*D*2}
    s_mov_b32 s15, 0x20000
    s_mul_i32 s40, s63, {64*1280}
    s_lshl_b32 s42, s43, 13
    s_add_u32 s42, s42, {WBASE}
    """)
    for q in range(2):
        a(f"""
        v_add_u32 v22, {8*q}, v20
        v_bfe_u32 v23, v22, 1, 3
        v_xor_b32 v23, v23, v21
        v_bfe_u32 v24, v22, 2, 2
        v_lshlrev_b32 v24, 4, v24
        v_and_b32 v25, 1, v22
        v_lshl_add_u32 v24, v25, 3, v24
        v_bfe_u32 v25, v22, 1, 1
        v_add_u32 v24, v24, v25
        v_mul_u32_u24 v24, 1280, v24
        v_lshl_add_u32 v{4+q}, v23, 4, v24
        """)
    for n in range(4):
        a(f"""
        v_add_u32 v22, {8*n}, v20
        v_bfe_u32 v23, v22, 1, 3
        v_xor_b32 v23, v23, v21
        v_mul_u32_u24 v22, 1280, v22
        v_lshl_add_u32 v{12+n}, v23, 4, v22
        """)
    loader_loop(a, False)
    a.label("K1_HELPER")
    a(f"s_load_dwordx4 s[80:83], s[0:1], {KA['cre']}\ns_load_dwordx2 s[84:85], s[0:1], {KA['wd']}")
    srd(a, 16, 4, WP_BYTES, WS_WP)
    a(f"""
    s_cmp_lt_u32 s63, 10
    s_cbranch_scc1 K1_HSSM
    s_mul_i32 s66, s43, 10240
    s_add_u32 s66, s66, {WBASE}
    v_add_u32 v18, s66, v11
    v_add_u32 v53, s64, v1
    v_lshlrev_b32 v53, 3, v53
    """)
    rh, finish = repack_hooks(a)
    helper_loop(a, True, rh)
    finish()
    a("s_endpgm")
    a.label("K1_HSSM")
    LR = 85
    def preload():
        srd(a, 20, 44, P*2); srd(a, 24, 46, P*2); srd(a, 28, 52, P*2)
        a(f"""
        s_lshl_b32 s65, s63, 7
        v_lshlrev_b32 v22, 1, v1
        v_add_u32 v22, s65, v22
        v_mov_b32 v4, 0
        v_mov_b32 v5, 0
        v_mov_b32 v6, 0
        v_mov_b32 v7, 0
        v_lshlrev_b32 v23, 4, v1
        s_lshl_b32 s90, s63, 13
        s_lshl_b32 s91, s62, 10
        s_add_u32 s91, s91, s90
        buffer_store_dwordx4 v[4:7], v23, s[76:79], s91 offen sc1
        buffer_load_ushort v{LR}, v22, s[20:23], 0 offen
        buffer_load_ushort v{LR+1}, v22, s[24:27], 0 offen
        buffer_load_ushort v{LR+2}, v22, s[28:31], 0 offen
        """)
    LM = 8; L16 = 188; L256 = 190
    def csq(d, s, t=22):
        a(f"""
        v_mul_f32 v{t}, v{s+1}, v{s+1}
        v_mul_f32 v{t+1}, v{s}, v{s+1}
        v_fma_f32 v{d}, v{s}, v{s}, -v{t}
        v_add_f32 v{d+1}, v{t+1}, v{t+1}
        """)
    def pre():
        lam_calc(a, LR, LR+1, LR+2, 148, LM, LM+1, coef=(6, 7))
        a(f"""
        v_add_f32 v6, v6, v6
        v_add_f32 v7, v7, v7
        v_lshlrev_b32 v22, 3, v1
        v_add_u32 v22, {LDS_UV}, v22
        ds_write_b64 v22, v[6:7]
        """)
    def pre2():
        csq(LM+2, LM); csq(LM+2, LM+2); csq(LM+2, LM+2)
        csq(L16, LM+2)
        csq(L256, L16); csq(L256, L256); csq(L256, L256); csq(L256, L256)
        a(f"""
        v_lshlrev_b32 v22, 4, v1
        v_add_u32 v23, {LDS_LAM}, v22
        ds_write_b128 v23, {vr(LM,4)}
        s_waitcnt lgkmcnt(0)
        """)
    a(f"""
    s_lshl_b32 s67, s43, 13
    s_add_u32 s67, s67, {WBASE}
    v_add_u32 v18, s67, v10
    v_xor_b32 v16, 64, v18
    v_bfe_u32 v53, v1, 2, 2
    v_lshlrev_b32 v53, 4, v53
    v_and_b32 v22, 1, v1
    v_lshl_add_u32 v53, v22, 3, v53
    v_bfe_u32 v22, v1, 1, 1
    v_add_u32 v53, v53, v22
    v_lshl_add_u32 v53, v30, 1, v53
    v_add_u32 v53, s64, v53
    v_lshlrev_b32 v53, 3, v53
    """)
    rh, finish = repack_hooks(a)
    helper_loop(a, False, {"preload": preload, ("side", 3): pre, ("side", 4): pre2, **rh})
    a("s_cmp_eq_u32 s43, 0\ns_cbranch_scc1 K1_LEVEL2")
    a("s_barrier")
    finish()
    a("s_barrier\ns_endpgm")
    a.label("K1_LEVEL2")
    a(f"""
    v_lshlrev_b32 v22, 4, v1
    v_lshlrev_b32 v23, 3, v1
    v_add_u32 v23, {LDS_E16}, v23
    v_add_u32 v24, 4096, v22
    s_barrier
    """)
    EV = 32
    def ev(R): return EV + 2*R
    for R in range(16):
        a(f"ds_read_b64 {vr(ev(R),2)}, v23 offset:{512*R}")
    def cfma(d, lam, s, add):
        a(f"""
        v_fma_f32 v{d}, v{lam}, v{s}, v{add}
        v_fma_f32 v{d+1}, v{lam}, v{s+1}, v{add+1}
        v_fma_f32 v{d}, -v{lam+1}, v{s+1}, v{d}
        v_fma_f32 v{d+1}, v{lam+1}, v{s}, v{d+1}
        """)
    A0, A1 = 96, 100
    a(f"v_mov_b32 v{A0+2}, {TAG:#x}\nv_mov_b32 v{A0+3}, 0")
    a("s_waitcnt lgkmcnt(0)")
    cur = ev(0)
    for R in range(1, 16):
        d = A0 if (R & 1) else A1
        cfma(d, L16, cur, ev(R)); cur = d
    assert cur == A0
    a(f"""
    buffer_store_dwordx4 {vr(A0,4)}, v22, s[76:79], s91 offen sc1
    s_mov_b32 s67, 0
    s_cmp_eq_u32 s62, 0
    s_cbranch_scc1 K1_POLLOK
    """)
    PV = 64
    a.label("K1_POLL")
    for rb in range(7):
        a(f"buffer_load_dwordx4 {vr(PV+4*rb,4)}, v{22 if rb < 4 else 24}, s[76:79], s90 offen offset:{1024*(rb%4)} sc1")
    a("s_waitcnt vmcnt(0)\ns_mov_b64 s[68:69], -1")
    lab = a.newlabel("K1_CHK")
    for rb in range(7):
        a(f"""
        s_cmp_le_u32 s62, {rb}
        s_cbranch_scc1 {lab}
        v_cmp_eq_u32 vcc, {TAG:#x}, v{PV+4*rb+2}
        s_and_b64 s[68:69], s[68:69], vcc
        """)
    a.label(lab)
    a(f"""
    s_cmp_eq_u64 s[68:69], -1
    s_cbranch_scc1 K1_POLLOK
    s_add_u32 s67, s67, 1
    s_cmp_lt_u32 s67, 100000
    s_sleep 1
    s_cbranch_scc1 K1_POLL
    """)
    a.label("K1_POLLOK")
    a("v_mov_b32 v104, 0\nv_mov_b32 v105, 0")
    lab = a.newlabel("K1_CAR")
    for rb in range(7):
        a(f"s_cmp_le_u32 s62, {rb}\ns_cbranch_scc1 {lab}")
        cfma(106, L256, 104, PV+4*rb)
        a("v_mov_b32 v104, v106\nv_mov_b32 v105, v107")
    a.label(lab)
    cur = 104
    for R in range(16):
        a(f"ds_write_b64 v23, {vr(cur,2)} offset:{LDS_S-LDS_E16+512*R}")
        if R < 15:
            d = A0 if (R & 1) else A1
            cfma(d, L16, cur, ev(R)); cur = d
    a("s_waitcnt lgkmcnt(0)\ns_barrier")
    finish()
    a.label("K1_END")
    a("s_endpgm")
    return a.text(), kd("gemm1_kernel", 192+56, 96, 192), f"; @launch kernel=gemm1_kernel grid=(256,1,1) block=(512,1,1) lds={LDS_TOTAL}"
```

```python
from gen_common import *

import os
PF2 = os.environ.get('PF2', '0') == '1'
PFT = [int(x) for x in os.environ.get('PFT', '-1,-1,2,7,11').split(',')]
def gen_k2(NB=int(os.environ.get("NB", "4"))):
    a = Asm()
    a.raw(".p2align 8\n.type gemm2_kernel,@function\ngemm2_kernel:")
    ACC = 16
    def acc(jd, i): return ACC + 4*(jd*4+i)
    EX = 96
    a(f"""
    s_cmp_ge_u32 s2, 256
    s_cbranch_scc1 K2_END
    s_load_dwordx2 s[4:5], s[0:1], {KA['ws']}
    s_load_dwordx2 s[6:7], s[0:1], {KA['x']}
    s_load_dwordx2 s[42:43], s[0:1], {KA['dsk']}
    s_load_dwordx2 s[44:45], s[0:1], {KA['out']}
    v_and_b32 v1, 63, v0
    v_lshrrev_b32 v2, 6, v0
    v_lshlrev_b32 v3, 4, v0
    v_readfirstlane_b32 s3, v2
    s_and_b32 s46, s2, 7
    s_lshr_b32 s47, s2, 3
    s_lshr_b32 s48, s46, 1
    s_lshl_b32 s48, s48, 3
    s_lshr_b32 s49, s47, 2
    s_add_u32 s48, s48, s49
    s_and_b32 s49, s46, 1
    s_lshl_b32 s49, s49, 2
    s_and_b32 s50, s47, 3
    s_add_u32 s49, s49, s50
    s_mul_i32 s32, s48, {4*NS2*1024}
    s_add_u32 s33, s32, {NS2*1024}
    s_add_u32 s34, s32, {2*NS2*1024}
    s_add_u32 s35, s32, {3*NS2*1024}
    s_mul_i32 s36, s49, {5*NS2*1024}
    s_add_u32 s37, s36, {NS2*1024}
    s_add_u32 s38, s36, {2*NS2*1024}
    s_add_u32 s39, s36, {3*NS2*1024}
    s_add_u32 s40, s36, {4*NS2*1024}
    s_waitcnt lgkmcnt(0)
    """)
    srd(a, 8, 4, HP_BYTES, WS_HP)
    srd(a, 12, 4, WP_BYTES, WS_WP)
    a(f"""
    s_lshl_b32 s54, s47, 2
    s_add_u32 s54, s54, s3
    v_lshlrev_b32 v12, 7, v1
    s_lshr_b32 s55, s46, 1
    s_lshl_b32 s55, s55, 5
    s_and_b32 s56, s46, 1
    s_mul_i32 s56, s56, 20
    s_sub_u32 s56, s56, 32
    s_mov_b32 s63, 0x20000
    """)
    def touch(m):
        if not PF2: return
        a(f"""
        s_add_u32 s57, s54, {128*m}
        s_mul_i32 s58, s57, 40330
        s_lshr_b32 s58, s58, 21
        s_mul_i32 s59, s58, 52
        s_sub_u32 s59, s57, s59
        s_cmp_lt_u32 s59, 32
        s_cselect_b32 s60, s8, s12
        s_cselect_b32 s61, s9, s13
        s_cselect_b32 s62, s10, s14
        s_cselect_b32 s64, s55, s56
        s_add_u32 s59, s59, s64
        s_mul_i32 s59, s59, 12
        s_add_u32 s59, s59, s58
        s_add_u32 s59, s59, 1
        s_lshl_b32 s59, s59, 13
        s_cmp_lt_u32 s57, 572
        s_cselect_b32 s59, s59, 0x40000000
        """)
        a.vmem(f"buffer_load_dword v13, v12, s[60:63], s59 offen", "T")
    def bufH(b, i): return 36*b + 4*i
    def bufW(b, j): return 36*b + 16 + 4*j
    NK = 24
    def loadH(n):
        if n == 21: a("v_lshlrev_b32 v3, 3, v1\ns_lshl_b32 s53, s3, 10\nv_add_u32 v3, s53, v3\nv_add_u32 v3, 86016, v3")
        for i in range(4):
            if n < 21:
                a.vmem(f"buffer_load_dwordx4 {ar(bufH(n%NB,i),4)}, v3, s[8:11], s{32+i} offen", ("H", n))
            else:
                a.vmem(f"buffer_load_dwordx2 {ar(bufH(n%NB,i),2)}, v3, s[8:11], s{32+i} offen", ("H", n))
                a.vmem(f"buffer_load_dwordx2 {ar(bufH(n%NB,i)+2,2)}, v3, s[8:11], s{32+i} offen offset:512", ("H", n))
    def loadW(n, j):
        a.vmem(f"buffer_load_dwordx4 {ar(bufW(n%NB,j),4)}, v4, s[12:15], s{36+j} offen", ("W", n))
    a("v_mov_b32 v4, v3")
    for n in range(NB):
        loadH(n); a("v_add_u32 v3, 4096, v3")
        for j in range(5): loadW(n, j)
        a("v_add_u32 v4, 4096, v4")
        if n == 0:
            for m in range(5):
                if PFT[m] < 0: touch(m)
    srd(a, 16, 6, XN_BYTES)
    srd(a, 20, 4, L*8, WS_STAT)
    srd(a, 24, 42, D*2)
    srd(a, 28, 44, L*D*4)
    a(f"""
    s_lshl_b32 s51, s48, 6
    s_lshl_b32 s52, s3, 4
    s_add_u32 s51, s51, s52
    v_and_b32 v5, 15, v1
    v_add_u32 v5, s51, v5
    v_lshrrev_b32 v6, 4, v1
    v_lshlrev_b32 v6, 2, v6
    s_mul_i32 s52, s49, 80
    v_add_u32 v6, s52, v6
    v_mul_u32_u24 v7, 640, v5
    v_add_u32 v7, v7, v6
    v_lshlrev_b32 v8, 1, v7
    v_lshlrev_b32 v7, 2, v7
    v_lshlrev_b32 v6, 1, v6
    """)
    a("v_lshlrev_b32 v5, 3, v5")
    a.vmem(f"buffer_load_dwordx2 {vr(EX+10,2)}, v5, s[20:23], 0 offen", "E")
    for jd in range(5):
        a.vmem(f"buffer_load_dwordx2 {vr(EX+2*jd,2)}, v8, s[16:19], 0 offen offset:{32*jd}", "E")
        a.vmem(f"buffer_load_dwordx2 {vr(EX+20+2*jd,2)}, v6, s[24:27], 0 offen offset:{32*jd}", "E")
    for n in range(NK):
        b = n % NB
        a.vmwait([("H", n), ("W", n)])
        if n % 4 == 0: a.stamp(1 + n//4)
        for m in range(5):
            if PFT[m] == n: touch(m)
        if n == NK-1:
            a("s_cmp_eq_u32 s3, 3\ns_cbranch_scc1 K2_RED")
        if n == 20:
            a("s_cmp_eq_u32 s3, 3\ns_cbranch_scc1 K2_SKIP20")
        for j in range(5):
            for i in range(4):
                c = "0" if n == 0 else vr(acc(j,i),4)
                a(f"v_mfma_f32_16x16x32_bf16 {vr(acc(j,i),4)}, {ar(bufW(b,j),4)}, {ar(bufH(b,i),4)}, {c}")
            if n + NB < NK and n != 20: loadW(n+NB, j)
        if n == 20:
            a.label("K2_SKIP20")
            if n + NB < NK:
                for j in range(5): loadW(n+NB, j)
        if n + NB < NK:
            a("v_add_u32 v4, 4096, v4")
            loadH(n+NB); a("v_add_u32 v3, 4096, v3")
    a.label("K2_RED")
    a.stamp(8)
    a(f"""
    s_mul_i32 s52, s3, 20480
    v_lshlrev_b32 v9, 4, v1
    v_add_u32 v10, s52, v9
    s_mul_i32 s52, s3, 5120
    v_add_u32 v11, s52, v9
    v_add_u32 v9, 40960, v11
    s_nop 7
    """)
    for j in range(5):
        for i in range(4):
            a(f"ds_write_b128 v10, {vr(acc(j,i),4)} offset:{(i*5+j)*1024}")
    a("s_waitcnt lgkmcnt(0)\ns_barrier")
    for sw in range(4):
        for j in range(5):
            a(f"ds_read_b128 {vr(ACC+4*(sw*5+j),4)}, v{11 if sw < 2 else 9} offset:{(sw%2)*20480+j*1024}")
    a.vmwait("E")
    T = 130
    for jd in range(5):
        for h in range(2):
            x = EX+2*jd+h; ds = EX+20+2*jd+h
            a(f"""
            v_lshlrev_b32 v14, 16, v{x}
            v_and_b32 v15, 0xffff0000, v{x}
            v_sub_f32 v12, v14, v{EX+10}
            v_sub_f32 v13, v15, v{EX+10}
            v_cvt_pk_bf16_f32 v12, v12, v13
            v_and_b32 v13, 0xffff0000, v12
            v_lshlrev_b32 v12, 16, v12
            v_mul_f32 v12, v12, v{EX+11}
            v_mul_f32 v13, v13, v{EX+11}
            v_cvt_pk_bf16_f32 v12, v12, v13
            v_and_b32 v13, 0xffff0000, v12
            v_lshlrev_b32 v12, 16, v12
            v_lshlrev_b32 v2, 16, v{ds}
            v_and_b32 v3, 0xffff0000, v{ds}
            v_mul_f32 v12, v12, v2
            v_mul_f32 v13, v13, v3
            v_cvt_pk_bf16_f32 v12, v12, v13
            v_and_b32 v13, 0xffff0000, v12
            v_lshlrev_b32 v12, 16, v12
            v_add_f32 v{T+4*jd+2*h}, v12, v14
            v_add_f32 v{T+4*jd+2*h+1}, v13, v15
            """)
    a("s_waitcnt lgkmcnt(0)")
    for j in range(5):
        for sw in range(4):
            for h in range(2):
                a(f"v_pk_add_f32 {vr(T+4*j+2*h,2)}, {vr(T+4*j+2*h,2)}, {vr(ACC+4*(sw*5+j)+2*h,2)}")
        a(f"buffer_store_dwordx4 {vr(T+4*j,4)}, v7, s[28:31], 0 offen offset:{64*j} sc1")
    a.label("K2_END")
    a("s_endpgm")
    return a.text(), kd("gemm2_kernel", 152 + 36*NB, 72, 152), "; @launch kernel=gemm2_kernel grid=(256,1,1) block=(256,1,1) lds=81920"
```

```python
import sys
sys.path.insert(0, "dev")
from gen_common import *
import gen_k0, gen_k2
OUT = "parallel_sum__ssm_conv_s5__glu_gated_bilinear__prompt.s"
def build(parts, path):
    hdr = "\n".join(p[2] for p in parts) + "\n"
    txt = hdr + '.amdgcn_target "amdgcn-amd-amdhsa--gfx950"\n.text\n' + "".join(p[0] for p in parts) + "CODE_END:\n"
    txt += '.section .rodata,"a"\n' + "".join(p[1] for p in parts)
    open(path, "w").write(txt)
if __name__ == "__main__":
    import gen_k1
    parts = [gen_k1.gen_k1()]
    parts.append(gen_k2.gen_k2())
    build(parts, sys.argv[1] if len(sys.argv) > 1 else OUT)
```

```python
from gen_common import *
import os
EXP = os.environ.get('EXP', '')
PF = os.environ.get('PF', '1') == '1'

ACC = 32
XBASE = 0
WBASE = 98304
SPARE = 159744
LDS_TOTAL = 163840
LDS_E16 = WBASE + 20480
LDS_S = WBASE + 40960
LDS_LAM = SPARE
LDS_STA = SPARE + 1024
LDS_STM = SPARE + 2048
LDS_CS = SPARE + 3072
LDS_UV = SPARE + 3584
LDS_RP = 73728
TAG = 0x5ca1ab1e
DBG_RB = 0
DBG_CT = 8
ST = " sc1"
WRN = 6

def acc(i, jj): return ACC + 4*(jj*4 + i)
def XF(par, i): return 16*par + 4*i
def WR(phi): return 32 + 4*(phi % WRN)

def consumer_loop(a, glu, hooks={}):
    NJ = 5 if glu else 4
    NJ2 = 2*NJ
    SLOT = 20480
    P3 = 6*NJ2
    def wread(phi, last=False):
        n, jj = divmod(phi, NJ2)
        if last and n >= 2: return
        s, ks = (n >> 1) % 3, n & 1
        mat, j = divmod(jj, NJ)
        off = s*SLOT
        if glu:
            for h in range(2):
                o = off + mat*10240 + (8*h + 32*ks)*160 + 32*j
                a.lds(f"ds_read_b64_tr_b16 {ar(WR(phi) + 2*h, 2)}, v8 offset:{o}", ("W", phi % P3))
        else:
            a.lds(f"ds_read_b128 {ar(WR(phi), 4)}, v{8+ks} offset:{off + mat*10240 + j*2048 + (1024 if j >= 2 else 0)}", ("W", phi % P3))
    def xread(n, i, last=False):
        if last and n >= 2: return
        s, ks = (n >> 1) % 3, n & 1
        a.lds(f"ds_read_b128 {ar(XF(n & 1, i), 4)}, v{2 + s*2 + ks} offset:{i*2048}", ("X", n % 6))
    BJ = NJ2 - 3
    def kstep(n, last=False):
        ks = n & 1
        for jj in range(NJ2):
            phi = n*NJ2 + jj
            if ks == 1 and jj == BJ and not last:
                a.lgwait_all()
                a("s_mul_i32 s86, s87, 3") if os.environ.get("CST") else None
                a.dstamp(17 + (n >> 1), "s86") if os.environ.get("CST") else None
                a("s_barrier")
                if "touch" in hooks:
                    lt = a.newlabel("K1_CT")
                    a(f"s_cmp_ge_u32 s87, {(9 - PFD - (n >> 1) - 1)//3 + 1}\ns_cbranch_scc1 {lt}")
                    hooks["touch"]()
                    a.label(lt)
            a.lgwait([("W", phi % P3), ("X", n % 6)])
            todo = []
            if ks == 0:
                todo.append(("w", phi + 4))
                if 2 <= jj < 6: todo.append(("x", n + 1, jj - 2))
            else:
                if jj + 4 < NJ2: todo.append(("w", phi + 4))
                elif jj == BJ: todo += [("w", phi + 3), ("x", n+1, 0), ("w", phi + 4), ("x", n+1, 1)]
                elif jj == BJ + 1: todo += [("w", phi + 4), ("x", n+1, 2), ("x", n+1, 3)]
                elif jj == BJ + 2: todo.append(("w", phi + 4))
            for i in range(4):
                c = vr(acc(i, jj), 4)
                xa = ar(XF(n & 1, i), 4); wa = ar(WR(phi), 4)
                if glu: a(f"v_mfma_f32_16x16x32_bf16 {c}, {wa}, {xa}, {c}")
                else:   a(f"v_mfma_f32_16x16x32_bf16 {c}, {xa}, {wa}, {c}")
                if todo:
                    t = todo.pop(0)
                    if t[0] == "w": wread(t[1], last)
                    else: xread(t[1], t[2], last)
            assert not todo
    a.stamp(1)
    for r in range(ACC, ACC + 16*NJ2): a(f"v_mov_b32 v{r}, 0")
    a("s_mov_b32 s87, 0")
    a("s_barrier")
    a.stamp(2); a.lines.append("  ;@CSTAMP 26")
    if "touch" in hooks: hooks["touch"]()
    wread(0); xread(0, 0); wread(1); xread(0, 1); wread(2); xread(0, 2); xread(0, 3); wread(3)
    entry = list(a.lg)
    lab = a.newlabel("K1_CL")
    a.label(lab)
    for n in range(6): kstep(n)
    assert a.lg == entry, (a.lg, entry)
    a(f"s_add_u32 s87, s87, 1\ns_cmp_lt_u32 s87, 3\ns_cbranch_scc1 {lab}")
    a.stamp(11); a.lines.append("  ;@CSTAMP 27")
    kstep(0, True); kstep(1, True)
    a("s_waitcnt vmcnt(0)")
    a.stamp(12); a.lines.append("  ;@CSTAMP 28")
    a("s_barrier")

LT = int(os.environ.get("LT", "3"))
def loader_code(a):
    a(f"""
    s_and_b32 s43, s3, 1
    v_and_b32 v31, 15, v1
    s_lshr_b32 s65, s61, 3
    s_lshl_b32 s65, s65, 4
    s_mov_b32 s15, 0x20000
    s_cmp_lt_u32 s63, 10
    s_cselect_b64 vcc, -1, 0
    s_cbranch_scc1 K1_LT_SSM
    s_sub_u32 s63, s63, 10
    s_cmp_eq_u32 s43, 0
    s_cselect_b32 s12, s56, s58
    s_cselect_b32 s13, s57, s59
    s_mov_b32 s14, {D*F*2}
    s_mul_i32 s40, s63, 160
    s_mov_b32 s33, {64*3456}
    s_mul_i32 s65, s65, 3456
    v_mul_u32_u24 v22, 3456, v31
    v_bfe_u32 v23, v1, 4, 1
    v_mul_u32_u24 v23, 156, v23
    v_add_u32 v22, v22, v23
    s_mov_b32 exec_lo, -1
    s_branch K1_LT_GO
    """)
    a.label("K1_LT_SSM")
    a(f"""
    s_cmp_eq_u32 s43, 0
    s_cselect_b32 s12, s48, s50
    s_cselect_b32 s13, s49, s51
    s_mov_b32 s14, {P*D*2}
    s_mul_i32 s40, s63, {64*1280}
    s_mov_b32 s33, 128
    s_mul_i32 s65, s65, 1280
    v_mul_u32_u24 v22, 1280, v31
    s_mov_b32 exec_lo, 0xffff
    """)
    a.label("K1_LT_GO")
    a(f"""
    s_mov_b32 exec_hi, 0
    s_add_u32 s65, s65, s40
    s_lshl_b32 s66, s62, 8
    s_and_b32 s67, s61, 7
    s_lshl_b32 s67, s67, 5
    s_add_u32 s66, s66, s67
    s_lshl_b32 s67, s43, 4
    s_add_u32 s66, s66, s67
    s_mul_i32 s66, s66, 1280
    v_mul_u32_u24 v23, 1280, v31
    """)
    a.stamp(12)
    for t in range(LT):
        a(f"buffer_load_dword v{26+t}, v22, s[12:15], s65 offen\nbuffer_load_dword v{40+t}, v23, s[8:11], s66 offen offset:{128*t}\ns_add_u32 s65, s65, s33")
    a(f"""
    s_mov_b64 exec, -1
    s_lshl_b32 s64, s62, 8
    s_lshl_b32 s65, s43, 7
    s_add_u32 s64, s64, s65
    s_mul_i32 s20, s64, 1280
    s_lshl_b32 s41, s43, 14
    v_lshrrev_b32 v20, 3, v1
    v_and_b32 v21, 7, v1
    s_movk_i32 s66, {16*1280}
    s_movk_i32 s67, {8*1280}
    s_cmp_lg_u64 vcc, 0
    s_cselect_b32 s66, {2*1280}, s66
    v_lshrrev_b32 v23, 4, v1
    v_xor_b32 v23, v23, v21
    v_bfe_u32 v24, v1, 5, 1
    v_lshlrev_b32 v24, 4, v24
    v_bfe_u32 v25, v1, 3, 1
    v_lshl_add_u32 v24, v25, 3, v24
    v_bfe_u32 v25, v1, 4, 1
    v_add_u32 v24, v24, v25
    v_cndmask_b32 v24, v20, v24, vcc
    v_mul_u32_u24 v24, 1280, v24
    v_lshl_add_u32 v4, v23, 4, v24
    s_cselect_b32 s67, {32*1280}, s67
    v_xor_b32 v5, 64, v4
    v_add_u32 v5, s67, v5
    s_add_u32 s21, s20, s66
    s_add_u32 s22, s21, s66
    s_add_u32 s23, s22, s66
    s_add_u32 s24, s20, {64*1280}
    s_add_u32 s25, s21, {64*1280}
    s_add_u32 s26, s22, {64*1280}
    s_add_u32 s27, s23, {64*1280}
    s_mov_b32 s36, 0
    s_mov_b32 s37, s41
    s_mul_i32 s42, s43, 10240
    s_add_u32 s42, s42, {WBASE}
    s_mov_b32 s30, s42
    s_add_u32 s31, s30, 5120
    s_cbranch_vccnz K1_LW_SSM
    s_mov_b32 s39, {32*3456}
    s_mov_b32 s34, 0
    """)
    for n in range(5):
        a(f"""
        v_add_u32 v22, {64*n}, v1
        v_mul_u32_u24 v23, 6554, v22
        v_lshrrev_b32 v23, 16, v23
        v_mul_u32_u24 v24, 10, v23
        v_sub_u32 v24, v22, v24
        v_and_b32 v25, 0x33, v23
        v_bfe_u32 v6, v23, 2, 1
        v_lshl_or_b32 v25, v6, 3, v25
        v_bfe_u32 v6, v23, 3, 1
        v_lshl_or_b32 v25, v6, 2, v25
        v_mul_u32_u24 v25, 3456, v25
        v_lshl_add_u32 v{12+n}, v24, 4, v25
        """)
    a("s_branch K1_LW_GO")
    a.label("K1_LW_SSM")
    a(f"""
    s_mov_b32 s39, {32*1280}
    s_mov_b32 s34, 0x40000000
    v_mul_u32_u24 v24, 1280, v20
    v_lshl_add_u32 v12, v23, 4, v24
    v_xor_b32 v13, 64, v12
    v_add_u32 v13, {8*1280}, v13
    v_add_u32 v14, {16*1280}, v12
    v_add_u32 v15, {16*1280}, v13
    v_mov_b32 v16, v12
    """)
    a.label("K1_LW_GO")
    def xdma(lo, hi):
        for k in range(lo, hi):
            c, q = divmod(k, 8)
            a(f"s_add_u32 m0, s37, {c*8192 + q*1024}\ns_add_u32 s68, s{20 + 4*c + (q >> 1)}, s36\nbuffer_load_dwordx4 v{4+(q & 1)}, s[8:11], s68 offen lds")
    def wdma(c):
        a(f"s_add_u32 s69, s40, s39" if c else "s_mov_b32 s69, s40")
        for n in range(5):
            if n == 4: a("s_add_u32 s69, s69, s34")
            a(f"s_add_u32 m0, s{30+c}, {n*1024}\ns_nop 0\nbuffer_load_dwordx4 v{12+n}, s[12:15], s69 offen lds")
    def adv():
        a(f"""
        s_add_u32 s40, s40, s33
        s_add_u32 s36, s36, 128
        s_add_u32 s37, s37, 32768
        s_add_u32 s30, s30, 20480
        s_cmp_ge_u32 s37, 98304
        s_cselect_b32 s37, s41, s37
        s_cselect_b32 s30, s42, s30
        s_add_u32 s31, s30, 5120
        """)
    NV = 26
    a(f"s_waitcnt vmcnt({2*LT-2})")
    a.stamp(1)
    xdma(0, 16); wdma(0); wdma(1); adv()
    a(f"s_waitcnt vmcnt({NV//2})")
    xdma(0, 13)
    a(f"s_waitcnt vmcnt(13)\ns_mov_b32 s87, 0")
    a.stamp(2)
    a("s_barrier")
    a.stamp(16)
    xdma(13, 16); wdma(0); wdma(1); adv()
    a.label("K1_LL")
    xdma(0, 16); wdma(0); wdma(1); adv()
    a(f"s_add_u32 s87, s87, 1\ns_waitcnt vmcnt({NV})")
    a.dstamp(2, "s87")
    a("s_barrier")
    a.dstamp(16, "s87")
    a("s_cmp_lt_u32 s87, 8\ns_cbranch_scc1 K1_LL\ns_waitcnt vmcnt(0)")
    a.stamp(11)
    a("s_barrier")
    a.stamp(25)
    a("s_endpgm")

def helper_loop(a, glu, hooks={}):
    NJ = 5 if glu else 4
    SLOT = 20480
    def colsum(s, dst):
        off = (s % 3)*SLOT
        for ks in range(2):
            for j in range(NJ):
                r = 88 + 20*ks + 4*j
                if glu:
                    for h in range(2): a(f"ds_read_b64_tr_b16 {vr(r+2*h,2)}, v18 offset:{off + (8*h + 32*ks)*160 + 32*j}")
                else:
                    a(f"ds_read_b128 {vr(r,4)}, v{18 if ks == 0 else 16} offset:{off + j*2048 + (1024 if j >= 2 else 0)}")
            if ks == 0 and glu: a("s_waitcnt lgkmcnt(2)")
        for ks in range(2):
            a(f"s_waitcnt lgkmcnt({(2*NJ if glu else NJ) if ks == 0 else 0})")
            for j in range(NJ):
                a(f"v_mfma_f32_16x16x32_bf16 {vr(dst+4*j,4)}, v[56:59], {vr(88+20*ks+4*j,4)}, {vr(dst+4*j,4)}")
    def pick(dst):
        a(f"s_nop 7\nv_mov_b32 v24, v{dst}")
        for g in range(1, 4):
            a(f"v_cmp_eq_u32 vcc, {g}, v30\ns_nop 1\nv_cndmask_b32 v24, v24, v{dst+4*g}, vcc")
        if glu: a(f"v_mov_b32 v25, v{dst+16}")
    def remote_colsum(s):
        l4 = a.newlabel("K1_LC")
        a(f"s_cmp_lg_u32 s62, {s}\ns_cbranch_scc1 {l4}")
        colsum(s, 128); pick(128)
        a("v_mov_b32 v22, v24\nv_mov_b32 v23, s95\nbuffer_store_dwordx2 v[22:23], v17, s[28:31], s93 offen sc1")
        if glu: a("v_mov_b32 v28, v25\nv_mov_b32 v29, s95\ns_mov_b64 exec, 0xffff\nbuffer_store_dwordx2 v[28:29], v17, s[28:31], s93 offen offset:512 sc1\ns_mov_b64 exec, -1")
        a.label(l4)
    def red16(v):
        for r in (8, 4, 2, 1):
            a(f"s_nop 1\nv_add_f32_dpp v{v}, v{v}, v{v} row_ror:{r} row_mask:0xf bank_mask:0xf")
    inv640 = 0x3acccccd
    U = 148
    def stats_a():
        a("s_waitcnt vmcnt(0)")
        for k in range(20):
            a(f"v_lshlrev_b32 v{U+2*k}, 16, v{60+k}\nv_and_b32 v{U+1+2*k}, 0xffff0000, v{60+k}")
        a(f"v_pk_add_f32 v[22:23], {vr(U,2)}, {vr(U+2,2)}\nv_pk_add_f32 v[28:29], {vr(U+4,2)}, {vr(U+6,2)}")
        for k in range(U+8, U+40, 4):
            a(f"v_pk_add_f32 v[22:23], v[22:23], v[{k}:{k+1}]\nv_pk_add_f32 v[28:29], v[28:29], v[{k+2}:{k+3}]")
        a("v_pk_add_f32 v[22:23], v[22:23], v[28:29]\ns_nop 0\nv_add_f32 v22, v22, v23")
        red16(22)
        a(f"v_mul_f32 v80, {inv640:#x}, v22\nbuffer_load_dword v52, v55, s[20:23], 0 offen sc1")
    def stats_b():
        for k in range(U, U+40, 2):
            a(f"v_pk_add_f32 v[{k}:{k+1}], v[{k}:{k+1}], v[80:81] op_sel_hi:[1,0] neg_lo:[0,1] neg_hi:[0,1]")
        a(f"v_pk_mul_f32 v[22:23], {vr(U,2)}, {vr(U,2)}\nv_pk_mul_f32 v[28:29], {vr(U+2,2)}, {vr(U+2,2)}")
        for k in range(U+4, U+40, 4):
            a(f"v_pk_fma_f32 v[22:23], v[{k}:{k+1}], v[{k}:{k+1}], v[22:23]\nv_pk_fma_f32 v[28:29], v[{k+2}:{k+3}], v[{k+2}:{k+3}], v[28:29]")
        a("v_pk_add_f32 v[22:23], v[22:23], v[28:29]\ns_nop 0\nv_add_f32 v25, v22, v23")
        red16(25)
        a(f"v_mul_f32 v25, {inv640:#x}, v25")
        bf16r(a, 25, 25)
        a("v_add_f32 v25, 0x3727c5ac, v25")
        bf16r(a, 25, 25)
        a("""
        v_sqrt_f32 v25, v25
        s_nop 0
        v_cvt_pk_bf16_f32 v24, v25, v80
        v_mov_b32 v25, s95
        s_mov_b32 exec_lo, 0x10001
        s_mov_b32 exec_hi, 0x10001
        buffer_store_dwordx2 v[24:25], v26, s[24:27], 0 offen sc1
        s_mov_b64 exec, -1
        """)
    def gather_issue():
        a("buffer_load_dwordx2 v[26:27], v53, s[24:27], 0 offen sc1")
        a("buffer_load_dwordx2 v[28:29], v53, s[24:27], 0 offen offset:512 sc1")
        for r in range(6):
            a(f"s_add_u32 s66, s92, {r*1280}")
            a(f"buffer_load_dwordx2 {vr(60+2*r,2)}, v17, s[28:31], s66 offen sc1")
            if glu: a(f"buffer_load_dwordx2 {vr(72+2*r,2)}, v17, s[28:31], s66 offen offset:512 sc1")
    def get_epoch():
        lp = a.newlabel("K1_EP"); lo = a.newlabel("K1_EO")
        a("s_mov_b32 s67, 0")
        a.label(lp)
        a(f"""
        s_waitcnt vmcnt(0)
        v_readfirstlane_b32 s95, v52
        s_add_u32 s67, s67, 1
        s_cmp_lg_u32 s95, 0
        s_cbranch_scc1 {lo}
        s_sleep 4
        buffer_load_dword v52, v55, s[20:23], 0 offen sc1
        s_cmp_lt_u32 s67, 100000
        s_cbranch_scc1 {lp}
        """)
        a.label(lo)
    a(f"""
    s_lshl_b32 s66, s62, 8
    s_lshl_b32 s67, s35, 3
    s_add_u32 s66, s66, s67
    s_lshl_b32 s67, s43, 2
    s_add_u32 s66, s66, s67
    s_mul_i32 s94, s66, 1280
    v_mul_u32_u24 v54, 1280, v30
    v_lshl_add_u32 v54, v31, 4, v54
    v_add_u32 v26, s66, v30
    v_lshlrev_b32 v26, 3, v26
    """)
    for q in range(5):
        a(f"buffer_load_dwordx4 {vr(60+4*q,4)}, v54, s[8:11], s94 offen offset:{256*q}")
    if "preload" in hooks: hooks["preload"]()
    srd(a, 20, 54, 256)
    le = a.newlabel("K1_E0")
    a(f"""
    v_mov_b32 v55, 0
    s_or_b32 s66, s2, s43
    s_cmp_lg_u32 s66, 0
    s_cbranch_scc1 {le}
    s_memrealtime s[66:67]
    s_waitcnt lgkmcnt(0)
    s_or_b32 s66, s66, 1
    v_mov_b32 v52, s66
    s_mov_b64 exec, 1
    buffer_store_dword v52, v55, s[20:23], 0 offen sc1
    s_mov_b64 exec, -1
    """)
    a.label(le)
    srd(a, 24, 4, L*8, WS_STAT); srd(a, 28, 4, CSP_BYTES, WS_CSP)
    for r in range(32, 52): a(f"v_mov_b32 v{r}, 0")
    for r in range(128, 148): a(f"v_mov_b32 v{r}, 0")
    for r in range(56, 60): a(f"v_mov_b32 v{r}, 0x3f803f80")
    a(f"""
    s_lshl_b32 s92, s35, 3
    s_add_u32 s93, s92, s62
    s_lshl_b32 s93, s93, 1
    s_add_u32 s93, s93, s43
    s_mul_i32 s93, s93, 640
    s_lshl_b32 s92, s92, 1
    s_add_u32 s92, s92, s43
    s_mul_i32 s92, s92, 640
    v_lshlrev_b32 v19, 2, v1
    v_lshlrev_b32 v17, 3, v1
    """)
    stats_a()
    for s in range(10):
        a.stamp(2 + s)
        a("s_barrier")
        a.stamp(16 + s)
        if s == 0: get_epoch(); stats_b()
        if s <= 5 and "norc" not in EXP: remote_colsum(s)
        if ("side", s) in hooks: hooks[("side", s)]()
        if s == 8: gather_issue(); hooks["w_issue"](); hooks["c_issue"]()
        if s >= 6: colsum(s, 32)
    pick(32)
    a.stamp(12)
    a(f"""
    s_mov_b64 s[32:33], 0xffff
    s_mul_i32 s65, s43, {NJ*64}
    v_add_u32 v22, s65, v19
    v_add_u32 v22, {LDS_CS}, v22
    s_lshl_b32 s65, s43, 9
    v_add_u32 v23, s65, v19
    v_add_u32 v23, {LDS_STA}, v23
    s_mov_b32 s67, 0
    s_waitcnt vmcnt(16)
    """)
    lp = a.newlabel("K1_GP"); lo = a.newlabel("K1_GO")
    a.label(lp)
    tags = [27, 29] + [61+2*r for r in range(6)]
    a(f"v_cmp_eq_u32 s[68:69], s95, v{tags[0]}")
    for t in tags[1:]: a(f"v_cmp_eq_u32 vcc, s95, v{t}\ns_and_b64 s[68:69], s[68:69], vcc")
    if glu:
        for r in range(6): a(f"v_cmp_eq_u32 vcc, s95, v{73+2*r}\ns_or_b64 vcc, vcc, 0xffffffffffff0000\ns_and_b64 s[68:69], s[68:69], vcc" if False else
                             f"v_cmp_eq_u32 vcc, s95, v{73+2*r}\ns_orn2_b64 vcc, vcc, s[32:33]\ns_and_b64 s[68:69], s[68:69], vcc")
    a(f"""
    s_cmp_eq_u64 s[68:69], -1
    s_cbranch_scc1 {lo}
    s_add_u32 s67, s67, 1
    s_cmp_ge_u32 s67, 100000
    s_cbranch_scc1 {lo}
    s_sleep 4
    """)
    gather_issue()
    a(f"s_waitcnt vmcnt(0)\ns_branch {lp}")
    a.label(lo)
    a("""
    v_lshlrev_b32 v27, 16, v26
    v_lshlrev_b32 v29, 16, v28
    v_and_b32 v26, 0xffff0000, v26
    v_and_b32 v28, 0xffff0000, v28
    v_rcp_f32 v27, v27
    v_rcp_f32 v29, v29
    ds_write_b32 v23, v26 offset:1024
    ds_write_b32 v23, v28 offset:1280
    ds_write_b32 v23, v27
    ds_write_b32 v23, v29 offset:256
    """)
    for r in range(6):
        a(f"v_add_f32 v24, v24, v{60+2*r}")
        if glu: a(f"v_add_f32 v25, v25, v{72+2*r}")
    a("ds_write_b32 v22, v24")
    if glu: a("s_mov_b64 exec, 0xffff\nds_write_b32 v22, v25 offset:256\ns_mov_b64 exec, -1")
    a.stamp(13)
    a("s_waitcnt lgkmcnt(0)\ns_barrier")
    a.stamp(14)

PFD = int(os.environ.get("PFD", "4"))
PF0 = int(os.environ.get("PF0", "2"))
def prefetch_setup(a, glu):
    if not PF: return {}
    KADV = 64*3456 if glu else 128
    p0, p1 = (56, 58) if glu else (48, 50)
    a(f"""
    s_cmp_eq_u32 s3, 0
    s_cselect_b32 s12, s{p0}, s{p1}
    s_cselect_b32 s13, s{p0+1}, s{p1+1}
    s_mov_b32 s14, {D*F*2 if glu else P*D*2}
    s_mov_b32 s15, 0x20000
    s_mov_b32 s81, {KADV}
    s_lshr_b32 s82, s61, 3
    s_lshl_b32 s82, s82, 4
    """)
    if glu:
        a(f"""
        s_mul_i32 s80, s82, 3456
        s_mul_i32 s82, s63, 160
        s_add_u32 s80, s80, s82
        v_mul_u32_u24 v14, 3456, v31
        v_bfe_u32 v15, v1, 4, 1
        v_mul_u32_u24 v15, 156, v15
        v_add_u32 v14, v14, v15
        s_mov_b32 s83, 32
        """)
    else:
        a(f"""
        s_lshl_b32 s80, s63, 6
        s_add_u32 s80, s80, s82
        s_mul_i32 s80, s80, 1280
        v_mul_u32_u24 v14, 1280, v31
        s_mov_b32 s83, 16
        """)
    a(f"""
    s_lshl_b32 s82, s62, 8
    s_and_b32 s84, s61, 7
    s_lshl_b32 s84, s84, 5
    s_add_u32 s82, s82, s84
    s_mul_i32 s82, s82, 1280
    v_mul_u32_u24 v15, 1280, v1
    s_cmp_eq_u32 s3, 2
    s_cselect_b32 s12, s8, s12
    s_cselect_b32 s13, s9, s13
    s_cselect_b32 s14, s10, s14
    s_cselect_b32 s80, s82, s80
    s_cselect_b32 s81, 128, s81
    s_cselect_b32 s83, 32, s83
    s_cselect_b64 vcc, -1, 0
    s_cmp_eq_u32 s3, 3
    s_cselect_b32 s83, 0, s83
    v_cndmask_b32 v14, v14, v15, vcc
    v_cmp_gt_u32 vcc, s83, v1
    v_mov_b32 v15, 0x40000000
    s_nop 0
    v_cndmask_b32 v14, v15, v14, vcc
    """)
    def touch():
        a("s_add_u32 s80, s80, s81\nbuffer_load_dword v16, v14, s[12:15], s80 offen")
    for _ in range(LT - 1): a("s_add_u32 s80, s80, s81")
    for _ in range(PFD - LT): touch()
    return {"touch": touch}

def repack_hooks(a):
    def c_issue():
        a(f"""
        s_waitcnt lgkmcnt(0)
        v_mul_u32_u24 v23, 1280, v31
        v_bfe_u32 v24, v1, 4, 1
        v_lshl_add_u32 v23, v24, 4, v23
        s_mov_b32 s22, {D*P*2}
        s_mov_b32 s23, 0x20000
        """)
        for k in range(2):
            a(f"""
            s_lshl_b32 s66, s2, 1
            s_add_u32 s66, s66, s43
            s_add_u32 s66, s66, {512*k}
            s_mul_i32 s72, s66, 52429
            s_lshr_b32 s72, s72, 20
            s_mul_i32 s73, s72, 20
            s_sub_u32 s73, s66, s73
            s_mul_i32 s74, s72, {16*1280}
            s_lshl_b32 s75, s73, 6
            s_add_u32 s74, s74, s75
            s_mul_i32 s72, s72, {NS2}
            s_lshl_b32 s73, s73, 1
            s_add_u32 s72, s72, s73
            s_lshl_b32 s72, s72, 10
            s_cmp_lt_u32 s66, 800
            s_cselect_b32 s74, s74, 0x40000000
            s_cselect_b32 s{88+k}, s72, 0x40000000
            s_mov_b32 s20, s80
            s_mov_b32 s21, s81
            s_mov_b32 exec_hi, 0
            buffer_load_dwordx4 {vr(128+8*k,4)}, v23, s[20:23], s74 offen
            buffer_load_dwordx4 {vr(132+8*k,4)}, v23, s[20:23], s74 offen offset:32
            s_mov_b32 s20, s82
            s_mov_b32 s21, s83
            s_mov_b32 exec_hi, -1
            s_mov_b32 exec_lo, 0
            buffer_load_dwordx4 {vr(128+8*k,4)}, v23, s[20:23], s74 offen
            buffer_load_dwordx4 {vr(132+8*k,4)}, v23, s[20:23], s74 offen offset:32
            s_mov_b32 exec_lo, -1
            """)
    def c_finish():
        for k in range(2):
            a(f"buffer_store_dwordx4 {vr(128+8*k,4)}, v4, s[16:19], s{88+k} offen sc1")
            a(f"buffer_store_dwordx4 {vr(132+8*k,4)}, v4, s[16:19], s{88+k} offen offset:1024 sc1")
    def w_issue():
        a("v_mul_u32_u24 v22, 1280, v20\nv_lshl_add_u32 v22, v21, 4, v22")
        srd(a, 20, 84, F*D*2)
        for b in range(2):
            a(f"""
            s_lshl_b32 s66, s2, 1
            s_add_u32 s66, s66, s43
            s_add_u32 s66, s66, {512*b}
            s_mul_i32 s67, s66, 6554
            s_lshr_b32 s67, s67, 16
            s_mul_i32 s68, s67, 10
            s_sub_u32 s68, s66, s68
            s_mul_i32 s69, s67, {32*1280}
            s_lshl_b32 s70, s68, 7
            s_add_u32 s69, s69, s70
            s_cmp_lt_u32 s66, 540
            s_cselect_b32 s69, s69, 0x40000000
            """)
            for k in range(4):
                a(f"s_add_u32 s72, s69, {k*8*1280}")
                a(f"buffer_load_dwordx4 {vr(148+16*b+4*k,4)}, v22, s[20:23], s72 offen")
            a(f"""
            s_mul_i32 s70, s67, 52429
            s_lshr_b32 s70, s70, 18
            s_mul_i32 s73, s70, 5
            s_sub_u32 s73, s67, s73
            s_add_u32 s72, s67, 2
            s_mul_i32 s72, s72, 52429
            s_lshr_b32 s72, s72, 18
            s_sub_u32 s72, s67, s72
            s_add_u32 s72, s72, 40
            s_add_u32 s70, s70, 84
            s_cmp_eq_u32 s73, 2
            s_cselect_b32 s70, s70, s72
            s_mul_i32 s73, s68, {4*NS2}
            s_add_u32 s70, s70, s73
            s_lshl_b32 s70, s70, 10
            s_cmp_lt_u32 s66, 540
            s_cselect_b32 s{86+b}, s70, 0x40000000
            """)
    def w_finish():
        a(f"""
        s_mul_i32 s72, s43, 9216
        s_add_u32 s72, s72, {LDS_RP}
        v_mul_u32_u24 v2, 144, v20
        v_lshl_add_u32 v2, v21, 4, v2
        v_add_u32 v2, s72, v2
        v_bfe_u32 v3, v1, 2, 2
        v_lshl_add_u32 v3, v30, 2, v3
        v_mul_u32_u24 v3, 144, v3
        v_and_b32 v4, 3, v1
        v_lshl_add_u32 v3, v4, 3, v3
        v_add_u32 v3, s72, v3
        v_lshlrev_b32 v4, 4, v1
        s_waitcnt vmcnt(0)
        """)
        for k in range(8):
            a(f"ds_write_b128 v2, {vr(148+4*k,4)} offset:{k*8*144}")
        c_finish()
        a("s_waitcnt lgkmcnt(0)")
        for b in range(2):
            for dd in range(4):
                r = 148 + 16*b + 4*dd
                a(f"ds_read_b64_tr_b16 {vr(r,2)}, v3 offset:{b*4608 + 32*dd}")
                a(f"ds_read_b64_tr_b16 {vr(r+2,2)}, v3 offset:{b*4608 + 16*144+32*dd}")
            a("s_waitcnt lgkmcnt(0)")
            for dd in range(4):
                a(f"s_add_u32 s72, s{86+b}, {dd*NS2*1024}")
                a(f"buffer_store_dwordx4 {vr(148+16*b+4*dd,4)}, v4, s[16:19], s72 offen sc1")
    return {"c_issue": c_issue, "c_finish": c_finish, "w_issue": w_issue}, w_finish

def gen_k1():
    a = Asm()
    a.raw(".p2align 8\n.type gemm1_kernel,@function\ngemm1_kernel:")
    a(f"""
    s_cmp_ge_u32 s2, 256
    s_cbranch_scc1 K1_END
    s_load_dwordx2 s[4:5], s[0:1], {KA['ws']}
    s_load_dwordx2 s[6:7], s[0:1], {KA['x']}
    s_load_dwordx4 s[44:47], s[0:1], {KA['lre']}
    s_load_dwordx4 s[48:51], s[0:1], {KA['bre']}
    s_load_dwordx2 s[52:53], s[0:1], {KA['ldt']}
    s_load_dwordx2 s[54:55], s[0:1], {KA['dbg']}
    s_load_dwordx4 s[56:59], s[0:1], {KA['wg']}
    v_and_b32 v1, 63, v0
    v_lshrrev_b32 v2, 6, v0
    s_nop 0
    v_readfirstlane_b32 s3, v2
    s_and_b32 s60, s2, 7
    s_lshr_b32 s61, s2, 3
    s_lshr_b32 s62, s60, 2
    s_lshl_b32 s62, s62, 2
    s_lshr_b32 s63, s61, 3
    s_add_u32 s62, s62, s63
    s_and_b32 s63, s60, 3
    s_lshl_b32 s63, s63, 3
    s_and_b32 s64, s61, 7
    s_add_u32 s63, s63, s64
    s_mov_b32 s35, s63
    s_waitcnt lgkmcnt(0)
    """)
    srd(a, 8, 6, XN_BYTES)
    a("""
    s_sub_u32 s65, s3, 4
    s_cmp_ge_u32 s65, 2
    s_cbranch_scc1 K1_NOTLOADER
    """)
    loader_code(a)
    a.label("K1_NOTLOADER")
    if os.environ.get("CPF", "1") == "1":
        a(f"""
        s_cmp_lg_u32 s3, 3
        s_cbranch_scc1 K1_NOCPF
        s_getpc_b64 s[66:67]
        K1_PCREF:
        s_sub_u32 s66, s66, K1_PCREF-gemm1_kernel
        s_subb_u32 s67, s67, 0
        s_lshl_b32 s65, s61, 11
        v_lshlrev_b32 v14, 7, v1
        v_add_u32 v14, s65, v14
        v_cmp_gt_u32 vcc, CODE_END-gemm1_kernel, v14
        s_and_b64 exec, vcc, 0xffff
        s_cbranch_execz K1_CPFSKIP
        global_load_dword v15, v14, s[66:67]
        K1_CPFSKIP:
        s_mov_b64 exec, -1
        K1_NOCPF:
        """)
    srd(a, 16, 4, HP_BYTES, WS_HP)
    srd(a, 76, 4, AGG_BYTES, WS_AGG)
    a(f"""
    v_lshrrev_b32 v30, 4, v1
    v_and_b32 v31, 15, v1
    v_lshrrev_b32 v10, 1, v31
    v_xor_b32 v10, v10, v30
    v_lshlrev_b32 v11, 7, v31
    v_lshl_add_u32 v10, v10, 4, v11
    v_bfe_u32 v14, v1, 2, 2
    v_bfe_u32 v15, v1, 4, 1
    v_lshl_add_u32 v14, v15, 2, v14
    v_bfe_u32 v15, v1, 5, 1
    v_lshl_add_u32 v14, v15, 4, v14
    v_mul_u32_u24 v14, 160, v14
    v_and_b32 v15, 3, v1
    v_lshl_add_u32 v11, v15, 3, v14
    s_cmp_ge_u32 s3, 4
    s_cbranch_scc1 K1_HELPER
    """)
    a(f"""
    s_lshl_b32 s65, s3, 13
    v_add_u32 v2, s65, v10
    v_xor_b32 v3, 64, v2
    v_add_u32 v4, 32768, v2
    v_add_u32 v5, 32768, v3
    v_add_u32 v6, 65536, v2
    v_add_u32 v7, 65536, v3
    s_lshl_b32 s64, s62, 4
    s_lshl_b32 s65, s3, 2
    s_add_u32 s64, s64, s65
    s_mul_i32 s64, s64, {NS2*1024}
    v_lshlrev_b32 v12, 4, v1
    s_cmp_lt_u32 s63, 10
    s_cbranch_scc1 K1_SSM
    """)
    a(f"""
    s_sub_u32 s63, s63, 10
    v_add_u32 v8, {WBASE}, v11
    s_lshr_b32 s65, s63, 1
    s_and_b32 s66, s63, 1
    s_lshl_b32 s67, s65, 2
    s_lshl_b32 s68, s66, 1
    s_add_u32 s67, s67, s68
    s_add_u32 s67, s67, 40
    s_lshl_b32 s67, s67, 10
    s_add_u32 s70, s67, s64
    s_add_u32 s71, s70, 1024
    s_cmp_eq_u32 s63, 21
    s_cselect_b32 s71, 0x40000000, s71
    s_add_u32 s67, s65, 84
    s_lshl_b32 s67, s67, 10
    s_lshl_b32 s68, s66, 9
    s_add_u32 s67, s67, s68
    s_add_u32 s72, s67, s64
    v_lshlrev_b32 v13, 3, v1
    """)
    consumer_loop(a, True, prefetch_setup(a, True))
    a(f"""
    s_lshl_b32 s65, s3, 8
    v_lshlrev_b32 v2, 2, v31
    v_add_u32 v2, s65, v2
    v_add_u32 v2, {LDS_STA}, v2
    v_lshlrev_b32 v3, 4, v30
    v_add_u32 v3, {LDS_CS}, v3
    """)
    for i in range(4):
        a(f"ds_read_b32 v{4+i}, v2 offset:{64*i}")
        a(f"ds_read_b32 v{8+i}, v2 offset:{1024+64*i}")
    a("s_cmp_eq_u32 s66, 1\ns_waitcnt lgkmcnt(0)")
    for i in range(4): a(f"v_mul_f32 v{4+i}, v{4+i}, v{4+i}")
    a("s_cbranch_scc1 K1_GLU_ODD")
    for odd in range(2):
        if odd: a.label("K1_GLU_ODD")
        groups = [(4,), (0, 1), (2, 3)] if not odd else [(0,), (1, 2), (3, 4)]
        k = 0
        for gi, grp in enumerate(groups):
            for x, j in enumerate(grp):
                a(f"ds_read_b128 {vr(14+8*x,4)}, v3 offset:{64*j}")
                a(f"ds_read_b128 {vr(18+8*x,4)}, v3 offset:{320+64*j}")
            a("s_waitcnt lgkmcnt(0)")
            for i in range(4):
                mi = 8 + (i & ~1); msel = i & 1
                ai = 4 + (i & ~1)
                sel = f"op_sel:[0,{msel},0] op_sel_hi:[1,{msel},1] neg_lo:[0,1,0] neg_hi:[0,1,0]"
                sel2 = f"op_sel:[0,{msel}] op_sel_hi:[1,{msel}]"
                for x, j in enumerate(grp):
                    G = acc(i, j); U = acc(i, 5+j)
                    for h in range(2):
                        a(f"v_pk_fma_f32 {vr(G+2*h,2)}, {vr(14+8*x+2*h,2)}, {vr(mi,2)}, {vr(G+2*h,2)} {sel}")
                        a(f"v_pk_fma_f32 {vr(U+2*h,2)}, {vr(18+8*x+2*h,2)}, {vr(mi,2)}, {vr(U+2*h,2)} {sel}")
                    for h in range(2):
                        a(f"v_pk_mul_f32 {vr(G+2*h,2)}, {vr(G+2*h,2)}, {vr(U+2*h,2)}")
                    for h in range(2):
                        a(f"v_pk_mul_f32 {vr(G+2*h,2)}, {vr(G+2*h,2)}, {vr(ai,2)} {sel2}")
                T = acc(i, 5+grp[0])
                for x, j in enumerate(grp):
                    G = acc(i, j)
                    a(f"v_cvt_pk_bf16_f32 v{T+2*x}, v{G}, v{G+1}")
                    a(f"v_cvt_pk_bf16_f32 v{T+2*x+1}, v{G+2}, v{G+3}")
                a(f"s_add_u32 s75, s{72 if gi == 0 else 69+gi}, {i*NS2*1024}")
                if gi == 0: a(f"buffer_store_dwordx2 {vr(T,2)}, v13, s[16:19], s75 offen{ST}")
                else: a(f"buffer_store_dwordx4 {vr(T,4)}, v12, s[16:19], s75 offen{ST}")
        a("s_endpgm")
    a.label("K1_SSM")
    a.lg = []
    a(f"""
    v_add_u32 v8, {WBASE}, v10
    v_xor_b32 v9, 64, v8
    s_lshl_b32 s65, s63, 12
    s_add_u32 s64, s64, s65
    """)
    consumer_loop(a, False, prefetch_setup(a, False))
    LAM = 14
    a(f"""
    v_lshlrev_b32 v13, 4, v31
    v_add_u32 v13, {LDS_LAM}, v13
    s_lshl_b32 s65, s3, 8
    v_lshlrev_b32 v2, 4, v30
    v_add_u32 v2, s65, v2
    v_add_u32 v2, {LDS_STA}, v2
    v_lshlrev_b32 v3, 2, v31
    v_add_u32 v3, {LDS_CS}, v3
    """)
    for i in range(4):
        a(f"ds_read_b128 {vr(160+4*i,4)}, v2 offset:{64*i}")
        a(f"ds_read_b128 {vr(176+4*i,4)}, v2 offset:{1024+64*i}")
    for jj in range(8):
        a(f"ds_read_b32 v{4+jj}, v3 offset:{64*jj}")
    a("s_waitcnt lgkmcnt(0)")
    for j in range(4):
        a(f"ds_read_b128 {vr(LAM+4*j,4)}, v13 offset:{256*j}")
    for j in range(4):
        for jj in (j, 4+j):
            cs = 4 + (jj & ~1); sl = jj & 1
            for i in range(4):
                A = acc(i, jj)
                for h in range(2):
                    a(f"v_pk_fma_f32 {vr(A+2*h,2)}, {vr(176+4*i+2*h,2)}, {vr(cs,2)}, {vr(A+2*h,2)} op_sel:[0,{sl},0] op_sel_hi:[1,{sl},1] neg_lo:[0,1,0] neg_hi:[0,1,0]")
            for i in range(4):
                A = acc(i, jj)
                for h in range(2):
                    a(f"v_pk_mul_f32 {vr(A+2*h,2)}, {vr(A+2*h,2)}, {vr(160+4*i+2*h,2)}")
    a(f"""
    s_lshl_b32 s65, s3, 2
    v_add_u32 v10, s65, v30
    v_lshlrev_b32 v10, 9, v10
    v_lshl_add_u32 v10, v31, 3, v10
    v_add_u32 v10, {LDS_E16}, v10
    s_waitcnt lgkmcnt(0)
    """)
    def BR(j, sg): return acc(sg >> 1, j) + 2*(sg & 1)
    def BI(j, sg): return acc(sg >> 1, 4+j) + 2*(sg & 1)
    E = 160
    def ER(q, j): return E + 16*q + 4*j
    def EI(q, j): return E + 16*q + 4*j + 2
    def step(dR, dI, pR, pI, bR, bI, lam):
        return [
          f"v_pk_fma_f32 {vr(dR,2)}, {vr(lam,2)}, {vr(pR,2)}, {vr(bR,2)} op_sel_hi:[0,1,1]",
          f"v_pk_fma_f32 {vr(dI,2)}, {vr(lam,2)}, {vr(pI,2)}, {vr(bI,2)} op_sel_hi:[0,1,1]",
          f"v_pk_fma_f32 {vr(dR,2)}, {vr(lam,2)}, {vr(pI,2)}, {vr(dR,2)} op_sel:[1,0,0] op_sel_hi:[1,1,1] neg_lo:[1,0,0] neg_hi:[1,0,0]",
          f"v_pk_fma_f32 {vr(dI,2)}, {vr(lam,2)}, {vr(pR,2)}, {vr(dI,2)} op_sel:[1,0,0] op_sel_hi:[1,1,1]"]
    for sg in range(1, 8):
        q = sg & 1
        cols = []
        for j in range(4):
            pR, pI = (BR(j, 0), BI(j, 0)) if sg == 1 else (ER(q ^ 1, j), EI(q ^ 1, j))
            cols.append(step(ER(q, j), EI(q, j), pR, pI, BR(j, sg), BI(j, sg), LAM+4*j))
        for k in range(4):
            for j in range(4): a(cols[j][k])
    for j in range(4):
        c = ER(0, j); r = ER(1, j); im = EI(1, j); l8 = LAM+4*j+2
        a(f"""
        v_fma_f32 v{c}, v{l8}, v{r}, v{r+1}
        v_fma_f32 v{c+1}, v{l8}, v{im}, v{im+1}
        v_fma_f32 v{c}, -v{l8+1}, v{im}, v{c}
        v_fma_f32 v{c+1}, v{l8+1}, v{r}, v{c+1}
        ds_write_b64 v10, {vr(c,2)} offset:{128*j}
        """)
    a(f"""
    s_mul_i32 s65, s3, 18432
    v_mul_u32_u24 v2, 144, v31
    v_lshl_add_u32 v2, v30, 5, v2
    v_add_u32 v2, s65, v2
    v_bfe_u32 v3, v1, 2, 2
    v_lshl_add_u32 v3, v30, 3, v3
    v_mul_u32_u24 v3, 144, v3
    v_and_b32 v4, 3, v1
    v_lshl_add_u32 v3, v4, 3, v3
    v_add_u32 v3, s65, v3
    s_waitcnt lgkmcnt(0)
    s_barrier
    """)
    a.stamp(13)
    a(f"v_lshlrev_b32 v13, 3, v31\nv_add_u32 v13, {LDS_UV}, v13")
    for j in range(4):
        a(f"ds_read_b64 {vr([4,6,8,170][j],2)}, v13 offset:{128*j}")
    a("s_waitcnt lgkmcnt(0)")
    for j in range(4):
        U = [4,6,8,170][j]
        allp = [(acc(i, j)+2*h, acc(i, 4+j)+2*h) for i in range(4) for h in range(2)] + [(ER(1, j), EI(1, j))]
        for prs in (allp[:5], allp[5:]):
            for k, (R, I) in enumerate(prs):
                a(f"v_pk_mul_f32 {vr(160+2*k,2)}, {vr(R,2)}, {vr(U,2)} op_sel:[0,1] op_sel_hi:[1,1]")
            for k, (R, I) in enumerate(prs):
                a(f"v_pk_mul_f32 {vr(R,2)}, {vr(R,2)}, {vr(U,2)} op_sel:[0,0] op_sel_hi:[1,0]")
            for k, (R, I) in enumerate(prs):
                a(f"v_pk_fma_f32 {vr(R,2)}, {vr(I,2)}, {vr(U,2)}, {vr(R,2)} op_sel:[0,1,0] op_sel_hi:[1,1,1] neg_lo:[0,1,0] neg_hi:[0,1,0]")
            for k, (R, I) in enumerate(prs):
                a(f"v_pk_fma_f32 {vr(I,2)}, {vr(I,2)}, {vr(U,2)}, {vr(160+2*k,2)} op_sel:[0,0,0] op_sel_hi:[1,0,1]")
    a.stamp(15)
    a("s_barrier")
    a.stamp(14)
    for j in range(4):
        h = ER(0, j)
        a(f"ds_read_b32 v{h}, v10 offset:{LDS_S-LDS_E16+128*j}")
        a(f"ds_read_b32 v{h+2}, v10 offset:{LDS_S-LDS_E16+128*j+4}")
    a("s_waitcnt lgkmcnt(0)")
    for j in range(4):
        h = ER(0, j); l8 = LAM+4*j+2
        a(f"""
        v_fma_f32 v{h+1}, v{l8}, v{h}, v{ER(1,j)}
        v_fma_f32 v{h+3}, v{l8}, v{h+2}, v{EI(1,j)}
        v_fma_f32 v{h+1}, -v{l8+1}, v{h+2}, v{h+1}
        v_fma_f32 v{h+3}, v{l8+1}, v{h}, v{h+3}
        """)
    for sg in range(8):
        cols = []
        for j in range(4):
            pR, pI = (ER(0, j), EI(0, j)) if sg == 0 else (BR(j, sg-1), BI(j, sg-1))
            cols.append(step(BR(j, sg), BI(j, sg), pR, pI, BR(j, sg), BI(j, sg), LAM+4*j))
        for k in range(4):
            for j in range(4): a(cols[j][k])
    for jj in range(8):
        im, j = divmod(jj, 4)
        t = 160 + 8*(jj % 4)
        for i in range(4):
            A = acc(i, jj)
            ng = "-" if im else ""
            a(f"v_cvt_pk_bf16_f32 v{t+i}, {ng}v{A}, {ng}v{A+2}")
            a(f"v_cvt_pk_bf16_f32 v{t+4+i}, {ng}v{A+1}, {ng}v{A+3}")
        o = (32*j + 16*im)*144
        a(f"ds_write_b128 v2, {vr(t,4)} offset:{o}")
        a(f"ds_write_b128 v2, {vr(t+4,4)} offset:{o+16}")
    a("s_waitcnt lgkmcnt(0)")
    for i in range(4):
        for j in range(4):
            d = ACC + 4*(i*4+j)
            for h in range(2):
                a(f"ds_read_b64_tr_b16 {vr(d+2*h,2)}, v3 offset:{(32*j+4*h)*144 + 32*i}")
    k = 0
    for i in range(4):
        for j in range(4):
            d = ACC + 4*(i*4+j)
            k += 1
            a(f"s_waitcnt lgkmcnt({min(15, 32-2*k)})")
            a(f"s_add_u32 s65, s64, {(i*NS2 + j)*1024}")
            a(f"buffer_store_dwordx4 {vr(d,4)}, v12, s[16:19], s65 offen{ST}")
    a("s_endpgm")
    a.label("K1_HELPER")
    a(f"""
    s_and_b32 s43, s3, 1
    s_lshl_b32 s64, s62, 8
    s_lshl_b32 s65, s43, 7
    s_add_u32 s64, s64, s65
    v_lshrrev_b32 v20, 3, v1
    v_and_b32 v21, 7, v1
    """)
    a(f"s_load_dwordx4 s[80:83], s[0:1], {KA['cre']}\ns_load_dwordx2 s[84:85], s[0:1], {KA['wd']}")
    srd(a, 16, 4, WP_BYTES, WS_WP)
    a(f"""
    s_cmp_lt_u32 s63, 10
    s_cbranch_scc1 K1_HSSM
    s_mul_i32 s66, s43, 10240
    s_add_u32 s66, s66, {WBASE}
    v_add_u32 v18, s66, v11
    v_add_u32 v53, s64, v1
    v_lshlrev_b32 v53, 3, v53
    """)
    rh, finish = repack_hooks(a)
    helper_loop(a, True, rh)
    finish()
    a("s_endpgm")
    a.label("K1_HSSM")
    LR = 85
    def preload():
        srd(a, 20, 44, P*2); srd(a, 24, 46, P*2); srd(a, 28, 52, P*2)
        a(f"""
        s_lshl_b32 s65, s63, 7
        v_lshlrev_b32 v22, 1, v1
        v_add_u32 v22, s65, v22
        s_lshl_b32 s90, s63, 13
        s_lshl_b32 s91, s62, 10
        s_add_u32 s91, s91, s90
        buffer_load_ushort v{LR}, v22, s[20:23], 0 offen
        buffer_load_ushort v{LR+1}, v22, s[24:27], 0 offen
        buffer_load_ushort v{LR+2}, v22, s[28:31], 0 offen
        """)
    LM = 8; L16 = 188; L256 = 190
    def csq(d, s, t=22):
        a(f"""
        v_mul_f32 v{t}, v{s+1}, v{s+1}
        v_mul_f32 v{t+1}, v{s}, v{s+1}
        v_fma_f32 v{d}, v{s}, v{s}, -v{t}
        v_add_f32 v{d+1}, v{t+1}, v{t+1}
        """)
    def pre():
        lam_calc(a, LR, LR+1, LR+2, 148, LM, LM+1, coef=(6, 7))
        a(f"""
        v_add_f32 v6, v6, v6
        v_add_f32 v7, v7, v7
        v_lshlrev_b32 v22, 3, v1
        v_add_u32 v22, {LDS_UV}, v22
        ds_write_b64 v22, v[6:7]
        """)
    def pre2():
        csq(LM+2, LM); csq(LM+2, LM+2); csq(LM+2, LM+2)
        csq(L16, LM+2)
        csq(L256, L16); csq(L256, L256); csq(L256, L256); csq(L256, L256)
        a(f"""
        v_lshlrev_b32 v22, 4, v1
        v_add_u32 v23, {LDS_LAM}, v22
        ds_write_b128 v23, {vr(LM,4)}
        s_waitcnt lgkmcnt(0)
        """)
    a(f"""
    s_mul_i32 s67, s43, 10240
    s_add_u32 s67, s67, {WBASE}
    v_add_u32 v18, s67, v10
    v_xor_b32 v16, 64, v18
    v_bfe_u32 v53, v1, 2, 2
    v_lshlrev_b32 v53, 4, v53
    v_and_b32 v22, 1, v1
    v_lshl_add_u32 v53, v22, 3, v53
    v_bfe_u32 v22, v1, 1, 1
    v_add_u32 v53, v53, v22
    v_lshl_add_u32 v53, v30, 1, v53
    v_add_u32 v53, s64, v53
    v_lshlrev_b32 v53, 3, v53
    """)
    rh, finish = repack_hooks(a)
    helper_loop(a, False, {"preload": preload, ("side", 1): pre, ("side", 4): pre2, **rh})
    a("s_cmp_eq_u32 s43, 0\ns_cbranch_scc1 K1_LEVEL2")
    a("s_barrier")
    finish()
    a("s_barrier\ns_endpgm")
    a.label("K1_LEVEL2")
    a(f"""
    v_lshlrev_b32 v22, 4, v1
    v_lshlrev_b32 v23, 3, v1
    v_add_u32 v23, {LDS_E16}, v23
    v_add_u32 v24, 4096, v22
    s_barrier
    """)
    EV = 32
    def ev(R): return EV + 2*R
    for R in range(16):
        a(f"ds_read_b64 {vr(ev(R),2)}, v23 offset:{512*R}")
    def cfma(d, lam, s, add):
        a(f"""
        v_fma_f32 v{d}, v{lam}, v{s}, v{add}
        v_fma_f32 v{d+1}, v{lam}, v{s+1}, v{add+1}
        v_fma_f32 v{d}, -v{lam+1}, v{s+1}, v{d}
        v_fma_f32 v{d+1}, v{lam+1}, v{s}, v{d+1}
        """)
    A0, A1 = 96, 100
    a(f"v_mov_b32 v{A0+2}, s95\nv_mov_b32 v{A0+3}, 0")
    a("s_waitcnt lgkmcnt(0)")
    cur = ev(0)
    for R in range(1, 16):
        d = A0 if (R & 1) else A1
        cfma(d, L16, cur, ev(R)); cur = d
    assert cur == A0
    a(f"""
    buffer_store_dwordx4 {vr(A0,4)}, v22, s[76:79], s91 offen sc1
    s_mov_b32 s67, 0
    s_cmp_eq_u32 s62, 0
    s_cbranch_scc1 K1_POLLOK
    """)
    PV = 64
    a.label("K1_POLL")
    for rb in range(7):
        a(f"buffer_load_dwordx4 {vr(PV+4*rb,4)}, v{22 if rb < 4 else 24}, s[76:79], s90 offen offset:{1024*(rb%4)} sc1")
    a("s_waitcnt vmcnt(0)\ns_mov_b64 s[68:69], -1")
    lab = a.newlabel("K1_CHK")
    for rb in range(7):
        a(f"""
        s_cmp_le_u32 s62, {rb}
        s_cbranch_scc1 {lab}
        v_cmp_eq_u32 vcc, s95, v{PV+4*rb+2}
        s_and_b64 s[68:69], s[68:69], vcc
        """)
    a.label(lab)
    a(f"""
    s_cmp_eq_u64 s[68:69], -1
    s_cbranch_scc1 K1_POLLOK
    s_add_u32 s67, s67, 1
    s_cmp_lt_u32 s67, 100000
    s_sleep 1
    s_cbranch_scc1 K1_POLL
    """)
    a.label("K1_POLLOK")
    a("v_mov_b32 v104, 0\nv_mov_b32 v105, 0")
    lab = a.newlabel("K1_CAR")
    for rb in range(7):
        a(f"s_cmp_le_u32 s62, {rb}\ns_cbranch_scc1 {lab}")
        cfma(106, L256, 104, PV+4*rb)
        a("v_mov_b32 v104, v106\nv_mov_b32 v105, v107")
    a.label(lab)
    cur = 104
    for R in range(16):
        t = 108 + 2*(R & 1)
        a(f"""
        v_mul_f32 v{t}, v6, v{cur}
        v_mul_f32 v{t+1}, v6, v{cur+1}
        v_fma_f32 v{t}, -v7, v{cur+1}, v{t}
        v_fma_f32 v{t+1}, v7, v{cur}, v{t+1}
        """)
        if R < 15:
            d = A0 if (R & 1) else A1
            cfma(d, L16, cur, ev(R)); cur = d
        a(f"ds_write_b64 v23, {vr(t,2)} offset:{LDS_S-LDS_E16+512*R}")
    a("s_waitcnt lgkmcnt(0)\ns_barrier")
    finish()
    a.label("K1_END")
    a("s_endpgm")
    return a.text(), kd("gemm1_kernel", 192+56, 96, 192), f"; @launch kernel=gemm1_kernel grid=(256,1,1) block=(512,1,1) lds={LDS_TOTAL}"
```

```python
from gen_common import *
import os

def gen_k2(NB=int(os.environ.get("NB", "4"))):
    a = Asm()
    a.raw(".p2align 8\n.type gemm2_kernel,@function\ngemm2_kernel:")
    ACC = 16
    def acc(jd, i): return ACC + 4*(jd*4+i)
    EX = 96
    T = 130
    a(f"""
    s_cmp_ge_u32 s2, 256
    s_cbranch_scc1 K2_END
    s_load_dwordx2 s[4:5], s[0:1], {KA['ws']}
    s_load_dwordx2 s[6:7], s[0:1], {KA['x']}
    s_load_dwordx2 s[42:43], s[0:1], {KA['dsk']}
    s_load_dwordx2 s[44:45], s[0:1], {KA['out']}
    v_lshrrev_b32 v2, 6, v0
    v_lshlrev_b32 v3, 4, v0
    v_and_b32 v1, 63, v0
    v_readfirstlane_b32 s3, v2
    s_and_b32 s46, s2, 7
    s_lshr_b32 s47, s2, 3
    s_lshr_b32 s48, s46, 1
    s_lshl_b32 s48, s48, 3
    s_lshr_b32 s49, s47, 2
    s_add_u32 s48, s48, s49
    s_and_b32 s49, s46, 1
    s_lshl_b32 s49, s49, 2
    s_and_b32 s50, s47, 3
    s_add_u32 s49, s49, s50
    s_mul_i32 s32, s48, {4*NS2*1024}
    s_add_u32 s33, s32, {NS2*1024}
    s_add_u32 s34, s32, {2*NS2*1024}
    s_add_u32 s35, s32, {3*NS2*1024}
    s_mul_i32 s36, s49, {5*NS2*1024}
    s_add_u32 s37, s36, {NS2*1024}
    s_add_u32 s38, s36, {2*NS2*1024}
    s_add_u32 s39, s36, {3*NS2*1024}
    s_add_u32 s40, s36, {4*NS2*1024}
    s_mov_b32 s10, {HP_BYTES}
    s_mov_b32 s11, 0x20000
    s_mov_b32 s14, {WP_BYTES}
    s_mov_b32 s15, 0x20000
    v_mov_b32 v4, v3
    s_waitcnt lgkmcnt(0)
    s_add_u32 s8, s4, {WS_HP}
    s_addc_u32 s9, s5, 0
    s_add_u32 s12, s4, {WS_WP}
    s_addc_u32 s13, s5, 0
    """)
    def bufH(b, i): return 36*b + 4*i
    def bufW(b, j): return 36*b + 16 + 4*j
    NK = 24
    def loadH(n):
        if n == 21: a("v_lshlrev_b32 v3, 3, v1\ns_lshl_b32 s53, s3, 10\nv_add_u32 v3, s53, v3\nv_add_u32 v3, 86016, v3")
        for i in range(4):
            if n < 21:
                a.vmem(f"buffer_load_dwordx4 {ar(bufH(n%NB,i),4)}, v3, s[8:11], s{32+i} offen", ("H", n))
            else:
                a.vmem(f"buffer_load_dwordx2 {ar(bufH(n%NB,i),2)}, v3, s[8:11], s{32+i} offen", ("H", n))
                a.vmem(f"buffer_load_dwordx2 {ar(bufH(n%NB,i)+2,2)}, v3, s[8:11], s{32+i} offen offset:512", ("H", n))
        a("v_add_u32 v3, 4096, v3")
    def loadW(n, j):
        a.vmem(f"buffer_load_dwordx4 {ar(bufW(n%NB,j),4)}, v4, s[12:15], s{36+j} offen", ("W", n))
        if j == 4: a("v_add_u32 v4, 4096, v4")
    P0 = int(os.environ.get("K2P0", "2"))
    for n in range(P0):
        loadH(n)
        for j in range(5): loadW(n, j)
    nxt = P0
    def e_issue():
        srd(a, 16, 6, XN_BYTES)
        srd(a, 20, 4, L*8, WS_STAT)
        srd(a, 24, 42, D*2)
        srd(a, 28, 44, L*D*4)
        a(f"""
        s_lshl_b32 s51, s48, 6
        s_lshl_b32 s52, s3, 4
        s_add_u32 s51, s51, s52
        v_and_b32 v5, 15, v1
        v_add_u32 v5, s51, v5
        v_lshrrev_b32 v6, 4, v1
        v_lshlrev_b32 v6, 2, v6
        s_mul_i32 s52, s49, 80
        v_add_u32 v6, s52, v6
        v_mul_u32_u24 v7, 640, v5
        v_add_u32 v7, v7, v6
        v_lshlrev_b32 v8, 1, v7
        v_lshlrev_b32 v7, 2, v7
        v_lshlrev_b32 v6, 1, v6
        v_lshlrev_b32 v5, 3, v5
        """)
        a.vmem(f"buffer_load_dword v{EX+10}, v5, s[20:23], 0 offen", "E")
        for jd in range(5):
            a.vmem(f"buffer_load_dwordx2 {vr(EX+2*jd,2)}, v8, s[16:19], 0 offen offset:{32*jd}", "E")
            a.vmem(f"buffer_load_dwordx2 {vr(EX+20+2*jd,2)}, v6, s[24:27], 0 offen offset:{32*jd}", "E")
    def e_compute(jd):
        ops = []
        if jd == 0:
            ops += [f"v_lshlrev_b32 v{EX+11}, 16, v{EX+10}", f"v_and_b32 v{EX+10}, 0xffff0000, v{EX+10}", f"v_rcp_f32 v{EX+11}, v{EX+11}"]
        for h in range(2):
            x = EX+2*jd+h; ds = EX+20+2*jd+h
            ops += f"""v_lshlrev_b32 v14, 16, v{x}
            v_and_b32 v15, 0xffff0000, v{x}
            v_sub_f32 v12, v14, v{EX+10}
            v_sub_f32 v13, v15, v{EX+10}
            v_cvt_pk_bf16_f32 v12, v12, v13
            v_and_b32 v13, 0xffff0000, v12
            v_lshlrev_b32 v12, 16, v12
            v_mul_f32 v12, v12, v{EX+11}
            v_mul_f32 v13, v13, v{EX+11}
            v_cvt_pk_bf16_f32 v12, v12, v13
            v_and_b32 v13, 0xffff0000, v12
            v_lshlrev_b32 v12, 16, v12
            v_lshlrev_b32 v2, 16, v{ds}
            v_and_b32 v5, 0xffff0000, v{ds}
            v_mul_f32 v12, v12, v2
            v_mul_f32 v13, v13, v5
            v_cvt_pk_bf16_f32 v12, v12, v13
            v_and_b32 v13, 0xffff0000, v12
            v_lshlrev_b32 v12, 16, v12
            v_add_f32 v{T+4*jd+2*h}, v12, v14
            v_add_f32 v{T+4*jd+2*h+1}, v13, v15""".split("\n")
        return [o.strip() for o in ops]
    for n in range(NK):
        b = n % NB
        while nxt < min(NK, n + NB) and nxt <= n + P0:
            loadH(nxt)
            for j in range(5): loadW(nxt, j)
            nxt += 1
        if n == 6: e_issue()
        a.vmwait([("H", n), ("W", n)] + (["E"] if n == 12 else []))
        if n % 4 == 0: a.stamp(1 + n//4)
        if n == NK-1:
            a("s_cmp_eq_u32 s3, 3\ns_cbranch_scc1 K2_RED")
        if n == 20:
            a("s_cmp_eq_u32 s3, 3\ns_cbranch_scc1 K2_SKIP20")
        extra = e_compute(n - 12) if 12 <= n < 17 else []
        inl = nxt == n + NB and nxt < NK and n != 20
        for j in range(5):
            for i in range(4):
                c = "0" if n == 0 else vr(acc(j,i),4)
                a(f"v_mfma_f32_16x16x32_bf16 {vr(acc(j,i),4)}, {ar(bufW(b,j),4)}, {ar(bufH(b,i),4)}, {c}")
                for _ in range(3):
                    if extra: a(extra.pop(0))
            if inl: loadW(nxt, j)
        assert not extra
        if n == 20:
            a.label("K2_SKIP20")
            if nxt == n + NB and nxt < NK:
                for j in range(5): loadW(nxt, j)
                loadH(nxt); nxt += 1
        elif inl:
            loadH(nxt); nxt += 1
    a.label("K2_RED")
    a.stamp(8)
    a(f"""
    s_mul_i32 s52, s3, 20480
    v_lshlrev_b32 v9, 4, v1
    v_add_u32 v10, s52, v9
    s_mul_i32 s52, s3, 5120
    v_add_u32 v11, s52, v9
    v_add_u32 v9, 40960, v11
    s_nop 4
    """)
    for j in range(5):
        for i in range(4):
            a(f"ds_write_b128 v10, {vr(acc(j,i),4)} offset:{(i*5+j)*1024}")
    a("s_waitcnt lgkmcnt(0)\ns_barrier")
    a.stamp(9)
    for j in range(5):
        for sw in range(4):
            a(f"ds_read_b128 {vr(ACC+4*(j*4+sw),4)}, v{11 if sw < 2 else 9} offset:{(sw%2)*20480+j*1024}")
    for j in range(5):
        a(f"s_waitcnt lgkmcnt({min(15, 16-4*j)})")
        for h in range(2):
            a(f"v_pk_add_f32 {vr(ACC+16*j+2*h,2)}, {vr(ACC+16*j+2*h,2)}, {vr(ACC+16*j+4+2*h,2)}")
            a(f"v_pk_add_f32 {vr(ACC+16*j+8+2*h,2)}, {vr(ACC+16*j+8+2*h,2)}, {vr(ACC+16*j+12+2*h,2)}")
        for h in range(2):
            a(f"v_pk_add_f32 {vr(T+4*j+2*h,2)}, {vr(T+4*j+2*h,2)}, {vr(ACC+16*j+2*h,2)}")
        for h in range(2):
            a(f"v_pk_add_f32 {vr(T+4*j+2*h,2)}, {vr(T+4*j+2*h,2)}, {vr(ACC+16*j+8+2*h,2)}")
        a(f"buffer_store_dwordx4 {vr(T+4*j,4)}, v7, s[28:31], 0 offen offset:{64*j} sc1")
    a.stamp(10)
    a.label("K2_END")
    a("s_endpgm")
    return a.text(), kd("gemm2_kernel", 152 + 36*NB, 72, 152), "; @launch kernel=gemm2_kernel grid=(256,1,1) block=(256,1,1) lds=81920"
```

```python
from gen_common import *
import os
EXP = os.environ.get('EXP', '')
PF = os.environ.get('PF', '1') == '1'

ACC = 32
XBASE = 0
WBASE = 98304
SPARE = 159744
LDS_TOTAL = 163840
LDS_E16 = 73728
LDS_S = LDS_E16
LDS_LAM = SPARE
LDS_STA = SPARE + 1024
LDS_STM = SPARE + 2048
LDS_CS = SPARE + 3072
LDS_UV = SPARE + 3584
LDS_SYNC = 158720
WS_FLG = 0x1760000
FLG_BYTES = 16384
NH = int(os.environ.get("NH", "4")); NW = int(os.environ.get("NW", "4")); NL = int(os.environ.get("NL", "3"))
RPS = int(os.environ.get("RPS", "6"))
TAG = 0x5ca1ab1e
DBG_RB = 0
DBG_CT = 8
ST = " sc1"
WRN = 6

def acc(i, jj): return ACC + 4*(jj*4 + i)
def XF(par, i): return 16*par + 4*i
def WR(phi): return 32 + 4*(phi % WRN)

def consumer_loop(a, glu, hooks={}):
    NJ = 5 if glu else 4
    NJ2 = 2*NJ
    SLOT = 20480
    P3 = 6*NJ2
    def wread(phi, last=False):
        n, jj = divmod(phi, NJ2)
        if last and n >= 2: return
        s, ks = (n >> 1) % 3, n & 1
        mat, j = divmod(jj, NJ)
        off = s*SLOT
        if glu:
            for h in range(2):
                o = off + mat*10240 + (8*h + 32*ks)*160 + 32*j
                a.lds(f"ds_read_b64_tr_b16 {ar(WR(phi) + 2*h, 2)}, v8 offset:{o}", ("W", phi % P3))
        else:
            a.lds(f"ds_read_b128 {ar(WR(phi), 4)}, v{8+ks} offset:{off + mat*10240 + j*2048 + (1024 if j >= 2 else 0)}", ("W", phi % P3))
    def xread(n, i, last=False):
        if last and n >= 2: return
        s, ks = (n >> 1) % 3, n & 1
        a.lds(f"ds_read_b128 {ar(XF(n & 1, i), 4)}, v{2 + s*2 + ks} offset:{i*2048}", ("X", n % 6))
    BJ = NJ2 - 3
    def kstep(n, last=False):
        ks = n & 1
        for jj in range(NJ2):
            phi = n*NJ2 + jj
            if ks == 1 and jj == BJ and not last:
                a.lgwait_all()
                a("s_mul_i32 s86, s87, 3") if os.environ.get("CST") else None
                a.dstamp(17 + (n >> 1), "s86") if os.environ.get("CST") else None
                a("s_barrier")
                if "touch" in hooks:
                    lt = a.newlabel("K1_CT")
                    a(f"s_cmp_ge_u32 s87, {(9 - PFD - (n >> 1) - 1)//3 + 1}\ns_cbranch_scc1 {lt}")
                    hooks["touch"]()
                    a.label(lt)
            a.lgwait([("W", phi % P3), ("X", n % 6)])
            todo = []
            if ks == 0:
                todo.append(("w", phi + 4))
                if 2 <= jj < 6: todo.append(("x", n + 1, jj - 2))
            else:
                if jj + 4 < NJ2: todo.append(("w", phi + 4))
                elif jj == BJ: todo += [("w", phi + 3), ("x", n+1, 0), ("w", phi + 4), ("x", n+1, 1)]
                elif jj == BJ + 1: todo += [("w", phi + 4), ("x", n+1, 2), ("x", n+1, 3)]
                elif jj == BJ + 2: todo.append(("w", phi + 4))
            for i in range(4):
                c = vr(acc(i, jj), 4)
                xa = ar(XF(n & 1, i), 4); wa = ar(WR(phi), 4)
                if glu: a(f"v_mfma_f32_16x16x32_bf16 {c}, {wa}, {xa}, {c}")
                else:   a(f"v_mfma_f32_16x16x32_bf16 {c}, {xa}, {wa}, {c}")
                if todo:
                    t = todo.pop(0)
                    if t[0] == "w": wread(t[1], last)
                    else: xread(t[1], t[2], last)
            assert not todo
    a.stamp(1)
    for r in range(ACC, ACC + 16*NJ2): a(f"v_mov_b32 v{r}, 0")
    a("s_mov_b32 s87, 0")
    a("s_barrier")
    a.stamp(2); a.lines.append("  ;@CSTAMP 26")
    if "touch" in hooks: hooks["touch"]()
    wread(0); xread(0, 0); wread(1); xread(0, 1); wread(2); xread(0, 2); xread(0, 3); wread(3)
    entry = list(a.lg)
    lab = a.newlabel("K1_CL")
    a.label(lab)
    for n in range(6): kstep(n)
    assert a.lg == entry, (a.lg, entry)
    a(f"s_add_u32 s87, s87, 1\ns_cmp_lt_u32 s87, 3\ns_cbranch_scc1 {lab}")
    a.stamp(11); a.lines.append("  ;@CSTAMP 27")
    kstep(0, True); kstep(1, True)
    a("s_waitcnt vmcnt(0)")
    a.stamp(12); a.lines.append("  ;@CSTAMP 28")
    a("s_barrier")

LT = int(os.environ.get("LT", "3"))
def loader_code(a):
    a(f"""
    s_and_b32 s43, s3, 1
    v_and_b32 v31, 15, v1
    s_lshr_b32 s65, s61, 3
    s_lshl_b32 s65, s65, 4
    s_mov_b32 s15, 0x20000
    s_cmp_lt_u32 s63, 10
    s_cselect_b64 vcc, -1, 0
    s_cbranch_scc1 K1_LT_SSM
    s_sub_u32 s63, s63, 10
    s_cmp_eq_u32 s43, 0
    s_cselect_b32 s12, s56, s58
    s_cselect_b32 s13, s57, s59
    s_mov_b32 s14, {D*F*2}
    s_mul_i32 s40, s63, 160
    s_mov_b32 s33, {64*3456}
    s_mul_i32 s65, s65, 3456
    v_mul_u32_u24 v22, 3456, v31
    v_bfe_u32 v23, v1, 4, 1
    v_mul_u32_u24 v23, 156, v23
    v_add_u32 v22, v22, v23
    s_mov_b32 exec_lo, -1
    s_branch K1_LT_GO
    """)
    a.label("K1_LT_SSM")
    a(f"""
    s_cmp_eq_u32 s43, 0
    s_cselect_b32 s12, s48, s50
    s_cselect_b32 s13, s49, s51
    s_mov_b32 s14, {P*D*2}
    s_mul_i32 s40, s63, {64*1280}
    s_mov_b32 s33, 128
    s_mul_i32 s65, s65, 1280
    v_mul_u32_u24 v22, 1280, v31
    s_mov_b32 exec_lo, 0xffff
    """)
    a.label("K1_LT_GO")
    a(f"""
    s_mov_b32 exec_hi, 0
    s_add_u32 s65, s65, s40
    s_lshl_b32 s66, s62, 8
    s_and_b32 s67, s61, 7
    s_lshl_b32 s67, s67, 5
    s_add_u32 s66, s66, s67
    s_lshl_b32 s67, s43, 4
    s_add_u32 s66, s66, s67
    s_mul_i32 s66, s66, 1280
    v_mul_u32_u24 v23, 1280, v31
    """)
    a.stamp(12)
    for t in range(LT):
        a(f"buffer_load_dword v{26+t}, v22, s[12:15], s65 offen\nbuffer_load_dword v{40+t}, v23, s[8:11], s66 offen offset:{128*t}\ns_add_u32 s65, s65, s33")
    a(f"""
    s_mov_b64 exec, -1
    s_lshl_b32 s64, s62, 8
    s_lshl_b32 s65, s43, 7
    s_add_u32 s64, s64, s65
    s_mul_i32 s20, s64, 1280
    s_lshl_b32 s41, s43, 14
    v_lshrrev_b32 v20, 3, v1
    v_and_b32 v21, 7, v1
    s_movk_i32 s66, {16*1280}
    s_movk_i32 s67, {8*1280}
    s_cmp_lg_u64 vcc, 0
    s_cselect_b32 s66, {2*1280}, s66
    v_lshrrev_b32 v23, 4, v1
    v_xor_b32 v23, v23, v21
    v_bfe_u32 v24, v1, 5, 1
    v_lshlrev_b32 v24, 4, v24
    v_bfe_u32 v25, v1, 3, 1
    v_lshl_add_u32 v24, v25, 3, v24
    v_bfe_u32 v25, v1, 4, 1
    v_add_u32 v24, v24, v25
    v_cndmask_b32 v24, v20, v24, vcc
    v_mul_u32_u24 v24, 1280, v24
    v_lshl_add_u32 v4, v23, 4, v24
    s_cselect_b32 s67, {32*1280}, s67
    v_xor_b32 v5, 64, v4
    v_add_u32 v5, s67, v5
    s_add_u32 s21, s20, s66
    s_add_u32 s22, s21, s66
    s_add_u32 s23, s22, s66
    s_add_u32 s24, s20, {64*1280}
    s_add_u32 s25, s21, {64*1280}
    s_add_u32 s26, s22, {64*1280}
    s_add_u32 s27, s23, {64*1280}
    s_mov_b32 s36, 0
    s_mov_b32 s37, s41
    s_mul_i32 s42, s43, 10240
    s_add_u32 s42, s42, {WBASE}
    s_mov_b32 s30, s42
    s_add_u32 s31, s30, 5120
    s_cbranch_vccnz K1_LW_SSM
    s_mov_b32 s39, {32*3456}
    s_mov_b32 s34, 0
    """)
    for n in range(5):
        a(f"""
        v_add_u32 v22, {64*n}, v1
        v_mul_u32_u24 v23, 6554, v22
        v_lshrrev_b32 v23, 16, v23
        v_mul_u32_u24 v24, 10, v23
        v_sub_u32 v24, v22, v24
        v_and_b32 v25, 0x33, v23
        v_bfe_u32 v6, v23, 2, 1
        v_lshl_or_b32 v25, v6, 3, v25
        v_bfe_u32 v6, v23, 3, 1
        v_lshl_or_b32 v25, v6, 2, v25
        v_mul_u32_u24 v25, 3456, v25
        v_lshl_add_u32 v{12+n}, v24, 4, v25
        """)
    a("s_branch K1_LW_GO")
    a.label("K1_LW_SSM")
    a(f"""
    s_mov_b32 s39, {32*1280}
    s_mov_b32 s34, 0x40000000
    v_mul_u32_u24 v24, 1280, v20
    v_lshl_add_u32 v12, v23, 4, v24
    v_xor_b32 v13, 64, v12
    v_add_u32 v13, {8*1280}, v13
    v_add_u32 v14, {16*1280}, v12
    v_add_u32 v15, {16*1280}, v13
    v_mov_b32 v16, v12
    """)
    a.label("K1_LW_GO")
    def xdma(lo, hi):
        for k in range(lo, hi):
            c, q = divmod(k, 8)
            a(f"s_add_u32 m0, s37, {c*8192 + q*1024}\ns_add_u32 s68, s{20 + 4*c + (q >> 1)}, s36\nbuffer_load_dwordx4 v{4+(q & 1)}, s[8:11], s68 offen lds")
    def wdma(c):
        a(f"s_add_u32 s69, s40, s39" if c else "s_mov_b32 s69, s40")
        for n in range(5):
            if n == 4: a("s_add_u32 s69, s69, s34")
            a(f"s_add_u32 m0, s{30+c}, {n*1024}\ns_nop 0\nbuffer_load_dwordx4 v{12+n}, s[12:15], s69 offen lds")
    def adv():
        a(f"""
        s_add_u32 s40, s40, s33
        s_add_u32 s36, s36, 128
        s_add_u32 s37, s37, 32768
        s_add_u32 s30, s30, 20480
        s_cmp_ge_u32 s37, 98304
        s_cselect_b32 s37, s41, s37
        s_cselect_b32 s30, s42, s30
        s_add_u32 s31, s30, 5120
        """)
    NV = 26
    a(f"s_load_dwordx4 s[80:83], s[0:1], {KA['cre']}\ns_load_dwordx2 s[84:85], s[0:1], {KA['wd']}")
    a(f"s_waitcnt vmcnt({2*LT-2})")
    a.stamp(1)
    xdma(0, 16); wdma(0); wdma(1); adv()
    a(f"s_waitcnt vmcnt({NV//2})")
    xdma(0, 13)
    a(f"s_waitcnt vmcnt(13)\ns_mov_b32 s87, 0")
    a.stamp(2)
    a("s_barrier")
    a.stamp(16)
    xdma(13, 16); wdma(0); wdma(1); adv()
    a.label("K1_LL")
    if RPS < 8:
        a(f"s_cmp_lg_u32 s87, {RPS}\ns_cbranch_scc1 K1_LNR")
        repack_issue(a)
        a.label("K1_LNR")
    xdma(0, 16); wdma(0); wdma(1); adv()
    a(f"s_add_u32 s87, s87, 1\ns_waitcnt vmcnt({NV})")
    a.dstamp(2, "s87")
    a("s_barrier")
    a.dstamp(16, "s87")
    a("s_cmp_lt_u32 s87, 8\ns_cbranch_scc1 K1_LL")
    assert RPS <= 6
    repack_finish(a)
    a("s_waitcnt vmcnt(10)")
    a.stamp(11)
    a("s_barrier")
    a.stamp(25)
    a("""
    s_mov_b64 exec, 1
    s_waitcnt vmcnt(0)
    buffer_store_dword v46, v2, s[20:23], s66 offen sc1
    s_mov_b64 exec, -1
    """)
    a.stamp(13)
    a("s_cmp_lt_u32 s35, 10\ns_cselect_b32 s47, 3, 1\ns_branch K1_P2")

def repack_issue(a):
    a(f"""
    s_waitcnt lgkmcnt(0)
    s_lshl_b32 s70, s35, 1
    s_add_u32 s70, s70, s43
    s_mul_i32 s65, s70, 40960
    s_mul_i32 s66, s62, 160
    s_add_u32 s65, s65, s66
    """)
    srd(a, 72, 54, 256)
    a("v_mov_b32 v40, 0\nbuffer_load_dword v46, v40, s[72:75], 0 offen sc1")
    srd(a, 72, 84, F*D*2)
    for n in range(5):
        a(f"""
        v_add_u32 v40, {64*n}, v1
        v_mul_u32_u24 v41, 6554, v40
        v_lshrrev_b32 v41, 16, v41
        v_mul_u32_u24 v42, 10, v41
        v_sub_u32 v42, v40, v42
        v_mul_u32_u24 v41, 1280, v41
        v_lshl_add_u32 v40, v42, 4, v41
        buffer_load_dwordx4 {vr(48+4*n,4)}, v40, s[72:75], s65 offen
        """)
    a(f"""
    s_sub_u32 s71, 63, s70
    s_bitcmp1_b32 s71, 1
    s_cselect_b32 s76, s82, s80
    s_cselect_b32 s77, s83, s81
    s_mov_b32 s78, {D*P*2}
    s_mov_b32 s79, 0x20000
    s_lshr_b32 s65, s71, 2
    s_lshl_b32 s65, s65, 7
    s_and_b32 s66, s71, 1
    s_lshl_b32 s66, s66, 6
    s_add_u32 s65, s65, s66
    s_mul_i32 s66, s62, {80*1280}
    s_add_u32 s65, s65, s66
    s_cmp_lt_u32 s71, 40
    s_cselect_b32 s65, s65, 0x40000000
    v_mul_u32_u24 v40, 1280, v31
    v_lshrrev_b32 v41, 4, v1
    v_lshl_add_u32 v40, v41, 4, v40
    """)
    for dt in range(5):
        a(f"buffer_load_dwordx4 {vr(68+4*dt,4)}, v40, s[76:79], s65 offen\ns_add_u32 s65, s65, {16*1280}")

def repack_finish(a):
    srd(a, 16, 4, WP_BYTES, WS_WP)
    srd(a, 20, 4, FLG_BYTES, WS_FLG)
    a(f"""
    s_mul_i32 s65, s43, 5120
    s_add_u32 s65, s65, {WBASE + 20480}
    v_lshlrev_b32 v2, 4, v1
    v_add_u32 v3, s65, v2
    v_lshrrev_b32 v6, 4, v1
    v_bfe_u32 v4, v1, 2, 2
    v_lshl_add_u32 v4, v6, 2, v4
    v_mul_u32_u24 v4, 160, v4
    v_and_b32 v5, 3, v1
    v_lshl_add_u32 v4, v5, 3, v4
    v_add_u32 v4, s65, v4
    """)
    for n in range(5): a(f"ds_write_b128 v3, {vr(48+4*n,4)} offset:{1024*n}")
    a(f"""
    s_mul_i32 s68, s62, {5*NS2*1024}
    s_lshl_b32 s65, s71, 10
    s_add_u32 s65, s65, s68
    s_cmp_lt_u32 s71, 40
    s_cselect_b32 s65, s65, 0x40000000
    s_waitcnt lgkmcnt(0)
    """)
    for dt in range(5):
        for h in range(2): a(f"ds_read_b64_tr_b16 {vr(88+4*dt+2*h,2)}, v4 offset:{2560*h + 32*dt}")
    for dt in range(5):
        a(f"buffer_store_dwordx4 {vr(68+4*dt,4)}, v2, s[16:19], s65 offen sc1\ns_add_u32 s65, s65, {NS2*1024}")
    a(f"""
    s_mul_i32 s65, s70, 52429
    s_lshr_b32 s65, s65, 18
    s_mul_i32 s66, s65, 5
    s_sub_u32 s66, s70, s66
    s_add_u32 s67, s70, 2
    s_mul_i32 s67, s67, 52429
    s_lshr_b32 s67, s67, 18
    s_sub_u32 s67, s70, s67
    s_add_u32 s67, s67, 40
    s_add_u32 s65, s65, 84
    s_cmp_eq_u32 s66, 2
    s_cselect_b32 s65, s65, s67
    s_lshl_b32 s65, s65, 10
    s_add_u32 s65, s65, s68
    s_cmp_lt_u32 s70, 54
    s_cselect_b32 s65, s65, 0x40000000
    s_waitcnt lgkmcnt(0)
    """)
    for dt in range(5):
        a(f"buffer_store_dwordx4 {vr(88+4*dt,4)}, v2, s[16:19], s65 offen sc1\ns_add_u32 s65, s65, {NS2*1024}")
    a(f"""
    s_lshl_b32 s66, s70, 2
    s_lshl_b32 s67, s62, 8
    s_add_u32 s66, s66, s67
    s_add_u32 s66, s66, 8192
    v_mov_b32 v2, 0
    """)

def helper_loop(a, glu, hooks={}):
    NJ = 5 if glu else 4
    SLOT = 20480
    NG = 14 if glu else 8
    def colsum(s, dst):
        off = (s % 3)*SLOT
        for ks in range(2):
            for j in range(NJ):
                r = 88 + 20*ks + 4*j
                if glu:
                    for h in range(2): a(f"ds_read_b64_tr_b16 {vr(r+2*h,2)}, v18 offset:{off + (8*h + 32*ks)*160 + 32*j}")
                else:
                    a(f"ds_read_b128 {vr(r,4)}, v{18 if ks == 0 else 16} offset:{off + j*2048 + (1024 if j >= 2 else 0)}")
            if ks == 0 and glu: a("s_waitcnt lgkmcnt(2)")
        for ks in range(2):
            a(f"s_waitcnt lgkmcnt({(2*NJ if glu else NJ) if ks == 0 else 0})")
            for j in range(NJ):
                a(f"v_mfma_f32_16x16x32_bf16 {vr(dst+4*j,4)}, v[56:59], {vr(88+20*ks+4*j,4)}, {vr(dst+4*j,4)}")
    def pick(dst):
        a(f"s_nop 7\nv_mov_b32 v24, v{dst}")
        for g in range(1, 4):
            a(f"v_cmp_eq_u32 vcc, {g}, v30\ns_nop 1\nv_cndmask_b32 v24, v24, v{dst+4*g}, vcc")
        if glu: a(f"v_mov_b32 v25, v{dst+16}")
    def remote_colsum(s):
        l4 = a.newlabel("K1_LC")
        a(f"s_cmp_lg_u32 s62, {s}\ns_cbranch_scc1 {l4}")
        colsum(s, 128); pick(128)
        a("v_mov_b32 v22, v24\nv_mov_b32 v23, s95\nbuffer_store_dwordx2 v[22:23], v17, s[28:31], s93 offen sc1")
        if glu: a("v_mov_b32 v28, v25\nv_mov_b32 v29, s95\ns_mov_b64 exec, 0xffff\nbuffer_store_dwordx2 v[28:29], v17, s[28:31], s93 offen offset:512 sc1\ns_mov_b64 exec, -1")
        a.label(l4)
    def red16(v):
        for r in (8, 4, 2, 1):
            a(f"s_nop 1\nv_add_f32_dpp v{v}, v{v}, v{v} row_ror:{r} row_mask:0xf bank_mask:0xf")
    inv640 = 0x3acccccd
    U = 148
    def stats_a():
        a("s_waitcnt vmcnt(0)")
        for k in range(20):
            a(f"v_lshlrev_b32 v{U+2*k}, 16, v{60+k}\nv_and_b32 v{U+1+2*k}, 0xffff0000, v{60+k}")
        a(f"v_pk_add_f32 v[22:23], {vr(U,2)}, {vr(U+2,2)}\nv_pk_add_f32 v[28:29], {vr(U+4,2)}, {vr(U+6,2)}")
        for k in range(U+8, U+40, 4):
            a(f"v_pk_add_f32 v[22:23], v[22:23], v[{k}:{k+1}]\nv_pk_add_f32 v[28:29], v[28:29], v[{k+2}:{k+3}]")
        a("v_pk_add_f32 v[22:23], v[22:23], v[28:29]\ns_nop 0\nv_add_f32 v22, v22, v23")
        red16(22)
        a(f"v_mul_f32 v80, {inv640:#x}, v22\nbuffer_load_dword v52, v55, s[20:23], 0 offen sc1")
    def stats_b():
        for k in range(U, U+40, 2):
            a(f"v_pk_add_f32 v[{k}:{k+1}], v[{k}:{k+1}], v[80:81] op_sel_hi:[1,0] neg_lo:[0,1] neg_hi:[0,1]")
        a(f"v_pk_mul_f32 v[22:23], {vr(U,2)}, {vr(U,2)}\nv_pk_mul_f32 v[28:29], {vr(U+2,2)}, {vr(U+2,2)}")
        for k in range(U+4, U+40, 4):
            a(f"v_pk_fma_f32 v[22:23], v[{k}:{k+1}], v[{k}:{k+1}], v[22:23]\nv_pk_fma_f32 v[28:29], v[{k+2}:{k+3}], v[{k+2}:{k+3}], v[28:29]")
        a("v_pk_add_f32 v[22:23], v[22:23], v[28:29]\ns_nop 0\nv_add_f32 v25, v22, v23")
        red16(25)
        a(f"v_mul_f32 v25, {inv640:#x}, v25")
        bf16r(a, 25, 25)
        a("v_add_f32 v25, 0x3727c5ac, v25")
        bf16r(a, 25, 25)
        a("""
        v_sqrt_f32 v25, v25
        s_nop 0
        v_cvt_pk_bf16_f32 v24, v25, v80
        v_mov_b32 v25, s95
        s_mov_b32 exec_lo, 0x10001
        s_mov_b32 exec_hi, 0x10001
        buffer_store_dwordx2 v[24:25], v26, s[24:27], 0 offen sc1
        s_mov_b64 exec, -1
        """)
    def gather_issue():
        a("buffer_load_dwordx2 v[26:27], v53, s[24:27], 0 offen sc1")
        a("buffer_load_dwordx2 v[28:29], v53, s[24:27], 0 offen offset:512 sc1")
        for r in range(6):
            a(f"s_add_u32 s66, s92, {r*1280}")
            a(f"buffer_load_dwordx2 {vr(60+2*r,2)}, v17, s[28:31], s66 offen sc1")
            if glu: a(f"buffer_load_dwordx2 {vr(72+2*r,2)}, v17, s[28:31], s66 offen offset:512 sc1")
    def get_epoch():
        lp = a.newlabel("K1_EP"); lo = a.newlabel("K1_EO")
        a("s_mov_b32 s67, 0")
        a.label(lp)
        a(f"""
        s_waitcnt vmcnt(0)
        v_readfirstlane_b32 s95, v52
        s_add_u32 s67, s67, 1
        s_cmp_lg_u32 s95, 0
        s_cbranch_scc1 {lo}
        s_sleep 4
        buffer_load_dword v52, v55, s[20:23], 0 offen sc1
        s_cmp_lt_u32 s67, 100000
        s_cbranch_scc1 {lp}
        """)
        a.label(lo)
    a(f"""
    s_lshl_b32 s66, s62, 8
    s_lshl_b32 s67, s35, 3
    s_add_u32 s66, s66, s67
    s_lshl_b32 s67, s43, 2
    s_add_u32 s66, s66, s67
    s_mul_i32 s94, s66, 1280
    v_mul_u32_u24 v54, 1280, v30
    v_lshl_add_u32 v54, v31, 4, v54
    v_add_u32 v26, s66, v30
    v_lshlrev_b32 v26, 3, v26
    """)
    for q in range(5):
        a(f"buffer_load_dwordx4 {vr(60+4*q,4)}, v54, s[8:11], s94 offen offset:{256*q}")
    if "preload" in hooks: hooks["preload"]()
    srd(a, 20, 54, 256)
    le = a.newlabel("K1_E0")
    a(f"""
    v_mov_b32 v55, 0
    s_or_b32 s66, s2, s43
    s_cmp_lg_u32 s66, 0
    s_cbranch_scc1 {le}
    s_memrealtime s[66:67]
    s_waitcnt lgkmcnt(0)
    s_or_b32 s66, s66, 1
    v_mov_b32 v52, s66
    s_mov_b64 exec, 1
    buffer_store_dword v52, v55, s[20:23], 0 offen sc1
    s_mov_b64 exec, -1
    """)
    a.label(le)
    srd(a, 24, 4, L*8, WS_STAT); srd(a, 28, 4, CSP_BYTES, WS_CSP)
    for r in range(32, 52): a(f"v_mov_b32 v{r}, 0")
    for r in range(128, 148): a(f"v_mov_b32 v{r}, 0")
    for r in range(56, 60): a(f"v_mov_b32 v{r}, 0x3f803f80")
    a(f"""
    s_lshl_b32 s92, s35, 3
    s_add_u32 s93, s92, s62
    s_lshl_b32 s93, s93, 1
    s_add_u32 s93, s93, s43
    s_mul_i32 s93, s93, 640
    s_lshl_b32 s92, s92, 1
    s_add_u32 s92, s92, s43
    s_mul_i32 s92, s92, 640
    v_lshlrev_b32 v19, 2, v1
    v_lshlrev_b32 v17, 3, v1
    """)
    stats_a()
    for s in range(10):
        a.stamp(2 + s)
        a("s_barrier")
        a.stamp(16 + s)
        if s == 0: get_epoch(); stats_b()
        if s <= 5 and "norc" not in EXP: remote_colsum(s)
        if ("side", s) in hooks: hooks[("side", s)]()
        if s == 8: gather_issue()
        if s >= 6: colsum(s, 32)
    pick(32)
    a.stamp(12)
    a(f"""
    s_mov_b64 s[32:33], 0xffff
    s_mul_i32 s65, s43, {NJ*64}
    v_add_u32 v22, s65, v19
    v_add_u32 v22, {LDS_CS}, v22
    s_lshl_b32 s65, s43, 9
    v_add_u32 v23, s65, v19
    v_add_u32 v23, {LDS_STA}, v23
    s_mov_b32 s67, 0
    v_mov_b32 v84, s95
    v_mov_b32 v85, 0
    v_mov_b32 v86, 0
    v_mov_b32 v87, 0
    v_mov_b32 v88, {LDS_SYNC}
    ds_write_b128 v88, v[84:87]
    ds_write_b32 v88, v85 offset:16
    s_waitcnt vmcnt(0)
    """)
    lp = a.newlabel("K1_GP"); lo = a.newlabel("K1_GO")
    a.label(lp)
    tags = [27, 29] + [61+2*r for r in range(6)]
    a(f"v_cmp_eq_u32 s[68:69], s95, v{tags[0]}")
    for t in tags[1:]: a(f"v_cmp_eq_u32 vcc, s95, v{t}\ns_and_b64 s[68:69], s[68:69], vcc")
    if glu:
        for r in range(6): a(f"v_cmp_eq_u32 vcc, s95, v{73+2*r}\ns_or_b64 vcc, vcc, 0xffffffffffff0000\ns_and_b64 s[68:69], s[68:69], vcc" if False else
                             f"v_cmp_eq_u32 vcc, s95, v{73+2*r}\ns_orn2_b64 vcc, vcc, s[32:33]\ns_and_b64 s[68:69], s[68:69], vcc")
    a(f"""
    s_cmp_eq_u64 s[68:69], -1
    s_cbranch_scc1 {lo}
    s_add_u32 s67, s67, 1
    s_cmp_ge_u32 s67, 100000
    s_cbranch_scc1 {lo}
    s_sleep 4
    """)
    gather_issue()
    a(f"s_waitcnt vmcnt(0)\ns_branch {lp}")
    a.label(lo)
    a("""
    v_lshlrev_b32 v27, 16, v26
    v_lshlrev_b32 v29, 16, v28
    v_and_b32 v26, 0xffff0000, v26
    v_and_b32 v28, 0xffff0000, v28
    v_rcp_f32 v27, v27
    v_rcp_f32 v29, v29
    ds_write_b32 v23, v26 offset:1024
    ds_write_b32 v23, v28 offset:1280
    ds_write_b32 v23, v27
    ds_write_b32 v23, v29 offset:256
    """)
    for r in range(6):
        a(f"v_add_f32 v24, v24, v{60+2*r}")
        if glu: a(f"v_add_f32 v25, v25, v{72+2*r}")
    a("ds_write_b32 v22, v24")
    if glu: a("s_mov_b64 exec, 0xffff\nds_write_b32 v22, v25 offset:256\ns_mov_b64 exec, -1")
    a.stamp(13)
    a("s_waitcnt lgkmcnt(0)\ns_barrier")
    a.stamp(14)

PFD = int(os.environ.get("PFD", "4"))
PF0 = int(os.environ.get("PF0", "2"))
def prefetch_setup(a, glu):
    if not PF: return {}
    KADV = 64*3456 if glu else 128
    p0, p1 = (56, 58) if glu else (48, 50)
    a(f"""
    s_cmp_eq_u32 s3, 0
    s_cselect_b32 s12, s{p0}, s{p1}
    s_cselect_b32 s13, s{p0+1}, s{p1+1}
    s_mov_b32 s14, {D*F*2 if glu else P*D*2}
    s_mov_b32 s15, 0x20000
    s_mov_b32 s81, {KADV}
    s_lshr_b32 s82, s61, 3
    s_lshl_b32 s82, s82, 4
    """)
    if glu:
        a(f"""
        s_mul_i32 s80, s82, 3456
        s_mul_i32 s82, s63, 160
        s_add_u32 s80, s80, s82
        v_mul_u32_u24 v14, 3456, v31
        v_bfe_u32 v15, v1, 4, 1
        v_mul_u32_u24 v15, 156, v15
        v_add_u32 v14, v14, v15
        s_mov_b32 s83, 32
        """)
    else:
        a(f"""
        s_lshl_b32 s80, s63, 6
        s_add_u32 s80, s80, s82
        s_mul_i32 s80, s80, 1280
        v_mul_u32_u24 v14, 1280, v31
        s_mov_b32 s83, 16
        """)
    a(f"""
    s_lshl_b32 s82, s62, 8
    s_and_b32 s84, s61, 7
    s_lshl_b32 s84, s84, 5
    s_add_u32 s82, s82, s84
    s_mul_i32 s82, s82, 1280
    v_mul_u32_u24 v15, 1280, v1
    s_cmp_eq_u32 s3, 2
    s_cselect_b32 s12, s8, s12
    s_cselect_b32 s13, s9, s13
    s_cselect_b32 s14, s10, s14
    s_cselect_b32 s80, s82, s80
    s_cselect_b32 s81, 128, s81
    s_cselect_b32 s83, 32, s83
    s_cselect_b64 vcc, -1, 0
    s_cmp_eq_u32 s3, 3
    s_cselect_b32 s83, 0, s83
    v_cndmask_b32 v14, v14, v15, vcc
    v_cmp_gt_u32 vcc, s83, v1
    v_mov_b32 v15, 0x40000000
    s_nop 0
    v_cndmask_b32 v14, v15, v14, vcc
    """)
    def touch():
        a("s_add_u32 s80, s80, s81\nbuffer_load_dword v16, v14, s[12:15], s80 offen")
    for _ in range(LT - 1): a("s_add_u32 s80, s80, s81")
    for _ in range(PFD - LT): touch()
    return {"touch": touch}

def consumer_flag(a):
    srd(a, 20, 4, FLG_BYTES, WS_FLG)
    a(f"""
    s_lshl_b32 s66, s62, 2
    s_add_u32 s66, s66, s3
    s_lshl_b32 s66, s66, 8
    s_lshl_b32 s67, s35, 2
    s_add_u32 s66, s66, s67
    v_mov_b32 v2, 0
    v_mov_b32 v3, s95
    v_mov_b32 v4, {LDS_SYNC}
    v_mov_b32 v5, 1
    s_mov_b64 exec, 1
    s_mov_b32 s47, 0
    s_mov_b32 s67, 0
    """)
    a.stamp(16)
    a("""
    s_waitcnt vmcnt(0)
    buffer_store_dword v3, v2, s[20:23], s66 offen sc1
    ds_add_u32 v4, v5 offset:12
    s_mov_b64 exec, -1
    """)
    a.stamp(17)
    a.label("K1_CW")
    a("""
    ds_read_b32 v6, v4 offset:12
    s_add_u32 s67, s67, 1
    s_waitcnt lgkmcnt(0)
    v_readfirstlane_b32 s66, v6
    s_and_b32 s66, s66, 15
    s_cmp_ge_u32 s66, 4
    s_cbranch_scc1 K1_P2
    s_cmp_ge_u32 s67, 1000000
    s_cbranch_scc1 K1_P2
    s_sleep 1
    s_branch K1_CW
    """)

def phase2(a):
    PA = 16
    def pacc(j, i): return PA + 4*(j*4 + i)
    HB = 96
    def hreg(n, i): return HB + 16*(n % NH) + 4*i
    def bH(n, i): return vr(hreg(n, i), 4)
    WV = HB + 16*NH; nwv = (192 - WV)//20
    assert 20*(NW - nwv) <= 60
    def wreg(n, j):
        b = n % NW
        return vr(WV + 20*b + 4*j, 4) if b < nwv else ar(20*(b - nwv) + 4*j, 4)
    NK = 12
    a.label("K1_P2")
    a.vm = []
    a(f"""
    s_and_b32 s46, s3, 3
    s_mov_b32 s50, s35
    s_bfe_u32 s49, s50, 0x10003
    s_lshl_b32 s49, s49, 2
    s_bfe_u32 s65, s50, 0x20001
    s_add_u32 s49, s49, s65
    s_lshr_b32 s48, s50, 4
    s_lshl_b32 s48, s48, 1
    s_and_b32 s65, s50, 1
    s_add_u32 s48, s48, s65
    s_lshl_b32 s51, s48, 6
    s_lshl_b32 s65, s62, 2
    s_add_u32 s48, s48, s65
    s_mul_i32 s52, s49, {5*NS2*1024}
    s_add_u32 s53, s52, {NS2*1024}
    s_add_u32 s54, s52, {2*NS2*1024}
    s_add_u32 s55, s52, {3*NS2*1024}
    s_add_u32 s56, s52, {4*NS2*1024}
    s_xor_b32 s65, s3, 2
    s_cmp_ge_u32 s3, 4
    s_cselect_b32 s65, s65, s3
    s_mul_i32 s36, s65, 20480
    s_movk_i32 s41, 4096
    s_cselect_b32 s40, s41, {(-81920) & 0xffffffff}
    s_cselect_b32 s41, 12288, s41
    s_mov_b32 s66, {76*1024}
    s_cselect_b32 s66, {40*1024}, s66
    s_lshl_b32 s65, s46, 10
    s_add_u32 s65, s65, s66
    v_lshlrev_b32 v2, 4, v1
    v_add_u32 v3, s65, v2
    v_mov_b32 v4, v3
    v_add_u32 v13, s36, v2
    v_and_b32 v5, 15, v1
    v_lshrrev_b32 v6, 4, v1
    v_mov_b32 v9, {LDS_SYNC}
    """)
    srd(a, 8, 4, HP_BYTES, WS_HP)
    srd(a, 12, 4, WP_BYTES, WS_WP)
    srd(a, 20, 4, FLG_BYTES, WS_FLG)
    for i in range(4):
        a(f"s_xor_b32 s65, s46, {i}\ns_lshl_b32 s66, s48, 2\ns_add_u32 s65, s65, s66\ns_mul_i32 s{32+i}, s65, {NS2*1024}")
    a(f"""
    s_lshl_b32 s65, s48, 6
    s_lshl_b32 s66, s46, 4
    s_add_u32 s65, s65, s66
    v_add_u32 v7, s65, v5
    v_lshlrev_b32 v12, 2, v6
    s_mul_i32 s66, s49, 80
    v_add_u32 v12, s66, v12
    v_mul_u32_u24 v7, 640, v7
    v_add_u32 v7, v7, v12
    v_lshlrev_b32 v8, 1, v7
    v_lshlrev_b32 v7, 2, v7
    v_lshlrev_b32 v12, 1, v12
    """)
    srd(a, 28, 100, L*D*4)
    def dma(n):
        for j in range(5):
            a(f"s_add_u32 m0, s36, {(n - NW)*5120 + j*1024}\ns_nop 0")
            a.vmem(f"buffer_load_dwordx4 v4, s[12:15], s{52+j} offen sc1 lds", ("W", n))
        a(f"v_add_u32 v4, {'s40' if n == 1 else 's41' if n == 8 else '4096'}, v4")
    def loadW(n, j):
        if NW <= n < NW + NL:
            a(f"ds_read_b128 {wreg(n, j)}, v13 offset:{(n - NW)*5120 + j*1024}")
            return
        a.vmem(f"buffer_load_dwordx4 {wreg(n, j)}, v4, s[12:15], s{52+j} offen sc1", ("W", n))
        if j == 4: a(f"v_add_u32 v4, {'s40' if n == 1 else 's41' if n == 8 else '4096'}, v4")
    def loadH(n):
        for i in range(4):
            a.vmem(f"buffer_load_dwordx4 {bH(n,i)}, v3, s[8:11], s{32+i} offen sc1", ("H", n))
        a(f"v_add_u32 v3, {'s40' if n == 1 else 's41' if n == 8 else '4096'}, v3")
    def wait_flags(tag, poller, off, mask, word):
        a(f"s_mov_b32 s67, 0\n{poller}\ns_cbranch_scc0 K1_P2SPIN{tag}")
        a.label(f"K1_P2POLL{tag}")
        a(f"""
        buffer_load_dword v6, v5, s[20:23], {off} offen sc1
        s_waitcnt vmcnt(0)
        v_cmp_eq_u32 vcc, s95, v6
        s_add_u32 s67, s67, 1
        {mask}
        s_cbranch_scc1 K1_P2SET{tag}
        s_cmp_ge_u32 s67, 100000
        s_cbranch_scc1 K1_P2SET{tag}
        s_sleep 1
        s_branch K1_P2POLL{tag}
        """)
        a.label(f"K1_P2SET{tag}")
        a(f"v_mov_b32 v6, 1\nds_write_b32 {word}, v6\ns_branch K1_P2GO{tag}".replace("@", ""))
        a.label(f"K1_P2SPIN{tag}")
        a(f"""
        ds_read_b32 v6, {word}
        s_add_u32 s67, s67, 1
        s_waitcnt lgkmcnt(0)
        v_readfirstlane_b32 s66, v6
        s_cmp_lg_u32 s66, 0
        s_cbranch_scc1 K1_P2GO{tag}
        s_cmp_ge_u32 s67, 1000000
        s_cbranch_scc1 K1_P2GO{tag}
        s_sleep 1
        s_branch K1_P2SPIN{tag}
        """)
        a.label(f"K1_P2GO{tag}")
    a("s_cmp_lt_u32 s3, 4\ns_cbranch_scc1 K1_P2W")
    EX = HB
    srd(a, 16, 6, XN_BYTES)
    srd(a, 24, 96, D*2)
    for jd in range(5):
        a(f"buffer_load_dwordx2 {vr(EX+2*jd,2)}, v8, s[16:19], 0 offen offset:{32*jd}")
        a(f"buffer_load_dwordx2 {vr(EX+10+2*jd,2)}, v12, s[24:27], 0 offen offset:{32*jd}")
    a(f"""
    v_bfe_u32 v14, v1, 1, 2
    v_lshlrev_b32 v14, 4, v14
    v_and_b32 v10, 1, v1
    v_lshl_add_u32 v14, v10, 1, v14
    v_bfe_u32 v10, v1, 3, 1
    v_add_u32 v14, v14, v10
    s_lshl_b32 s65, s46, 2
    v_add_u32 v14, s65, v14
    s_lshl_b32 s65, s46, 4
    v_add_u32 v10, s65, v5
    s_cmp_lt_u32 s50, 10
    s_cselect_b64 vcc, -1, 0
    v_cndmask_b32 v14, v10, v14, vcc
    v_add_u32 v14, s51, v14
    v_lshlrev_b32 v14, 2, v14
    v_add_u32 v14, {LDS_STA}, v14
    """)
    a.label("K1_P2BAR")
    a("""
    s_cmp_eq_u32 s47, 0
    s_cbranch_scc1 K1_P2E
    s_barrier
    s_sub_u32 s47, s47, 1
    s_branch K1_P2BAR
    """)
    a.label("K1_P2E")
    a(f"""
    ds_read_b32 v11, v14
    ds_read_b32 v10, v14 offset:1024
    ds_read_b32 v12, v9
    v_mov_b32 v14, 16
    s_waitcnt lgkmcnt(0)
    v_readfirstlane_b32 s95, v12
    s_mov_b64 exec, 1
    ds_add_u32 v9, v14 offset:12
    s_mov_b64 exec, -1
    """)
    a.label("K1_P2W")
    a(f"""
    v_lshlrev_b32 v5, 2, v1
    s_lshl_b32 s65, s49, 8
    s_add_u32 s65, s65, 8192
    v_add_u32 v14, 16, v9
    """)
    a.stamp(21)
    wait_flags("W", "s_cmp_eq_u32 s3, 4", "s65", "s_cmp_eq_u64 vcc, -1", "v14")
    a.stamp(22)
    for n in range(NW):
        for j in range(5): loadW(n, j)
    for n in range(NW, NW + NL): dma(n)
    for r in range(PA, PA + 80): a(f"v_mov_b32 v{r}, 0")
    a(f"s_cmp_lt_u32 s3, 4\ns_cbranch_scc1 K1_P2W2\ns_waitcnt vmcnt({5*(NW + NL)})")
    for jd in range(5):
        for h in range(2):
            x = EX+2*jd+h; ds = EX+10+2*jd+h; T = pacc(jd, 0) + 2*h
            a(f"""
            v_lshlrev_b32 v14, 16, v{x}
            v_and_b32 v15, 0xffff0000, v{x}
            v_sub_f32 v12, v14, v10
            v_sub_f32 v8, v15, v10
            v_cvt_pk_bf16_f32 v12, v12, v8
            v_and_b32 v8, 0xffff0000, v12
            v_lshlrev_b32 v12, 16, v12
            v_mul_f32 v12, v12, v11
            v_mul_f32 v8, v8, v11
            v_cvt_pk_bf16_f32 v12, v12, v8
            v_and_b32 v8, 0xffff0000, v12
            v_lshlrev_b32 v12, 16, v12
            v_lshlrev_b32 v5, 16, v{ds}
            v_and_b32 v6, 0xffff0000, v{ds}
            v_mul_f32 v12, v12, v5
            v_mul_f32 v8, v8, v6
            v_cvt_pk_bf16_f32 v12, v12, v8
            v_and_b32 v8, 0xffff0000, v12
            v_lshlrev_b32 v12, 16, v12
            v_add_f32 v{T}, v12, v14
            v_add_f32 v{T+1}, v8, v15
            """)
    a.label("K1_P2W2")
    a(f"""
    v_add_u32 v10, 4, v9
    v_add_u32 v11, 8, v9
    v_and_b32 v5, 31, v1
    v_lshlrev_b32 v5, 2, v5
    s_lshl_b32 s65, s48, 8
    """)
    a.stamp(26)
    wait_flags("H", "s_cmp_eq_u32 s3, 4", "s65", "s_or_b32 s66, vcc_lo, 0x3ff\ns_cmp_eq_u32 s66, -1", "v10")
    a.stamp(27)
    loadH(0); loadH(1)
    a("s_cmp_ge_u32 s3, 4\ns_cbranch_scc1 K1_P2GOS")
    wait_flags("S", "s_cmp_eq_u32 s3, 0", "s65", "s_and_b32 s66, vcc_lo, 0x3ff\ns_cmp_eq_u32 s66, 0x3ff", "v11")
    a.stamp(23)
    for n in range(2, NH): loadH(n)
    for n in range(NK):
        a.vmwait([("H", n), ("W", n)], "lgkmcnt(0)" if NW <= n < NW + NL else "")
        if n in (1, 5, 9): a.stamp(18 + n//4)
        sk = None
        if n in (1, 11):
            sk = a.newlabel("K1_P2SK")
            a(f"s_cmp_eq_u32 s3, {3 if n == 1 else 7}\ns_cbranch_scc1 {sk}")
        if n >= 9:
            lo = a.newlabel("K1_P2O"); le = a.newlabel("K1_P2X")
            h0 = hreg(n, 0)
            a(f"s_cmp_lt_u32 s3, 4\ns_cbranch_scc1 {le}\ns_bitcmp1_b32 s3, 0\ns_cbranch_scc1 {lo}")
            for p in range(2):
                for e in range(2): a(f"v_swap_b32 v{h0+8*p+2+e}, v{h0+8*p+4+e}")
            a(f"s_branch {le}")
            a.label(lo)
            for p in range(2):
                for e in range(2): a(f"v_swap_b32 v{h0+8*p+e}, v{h0+8*p+6+e}")
            a.label(le)
            a("s_nop 1")
        for j in range(5):
            for i in range(4):
                a(f"v_mfma_f32_16x16x32_bf16 {vr(pacc(j,i),4)}, {wreg(n, j)}, {bH(n,i)}, {vr(pacc(j,i),4)}")
            if n + NW < NK and j >= 1 and sk is None: loadW(n + NW, j - 1)
        if sk:
            a.label(sk)
            if n + NW < NK:
                for j in range(4): loadW(n + NW, j)
        if n + NH < NK: loadH(n + NH)
        if n + NW < NK: loadW(n + NW, 4)
    a.label("K1_P2FIN")
    a.stamp(28)
    a(f"""
    v_add_u32 v10, s36, v2
    s_mov_b32 s67, 0
    """)
    a.label("K1_P2G")
    a(f"""
    ds_read_b32 v6, v9 offset:12
    s_add_u32 s67, s67, 1
    s_waitcnt vmcnt(0) lgkmcnt(0)
    v_readfirstlane_b32 s66, v6
    s_cmp_ge_u32 s66, 68
    s_cbranch_scc1 K1_P2GD
    s_cmp_ge_u32 s67, 1000000
    s_cbranch_scc1 K1_P2GD
    s_sleep 1
    s_branch K1_P2G
    """)
    a.label("K1_P2GD")
    for i in range(1, 4):
        for j in range(5):
            a(f"ds_write_b128 v10, {vr(pacc(j,i),4)} offset:{((i-1)*5 + j)*1024}")
    RA = HB
    for m in range(1, 8):
        a(f"""
        s_xor_b32 s65, s3, {m}
        s_xor_b32 s66, s65, 2
        s_cmp_ge_u32 s65, 4
        s_cselect_b32 s65, s66, s65
        s_mul_i32 s65, s65, 20480
        s_add_u32 s65, s65, {(((m & 3) + 3) & 3)*5120}
        v_add_u32 v{RA+m-1}, s65, v2
        """)
    a("s_cmp_lt_u32 s3, 4\ns_cbranch_scc1 K1_P2FB")
    for grp in range(2):
        own = [0, 1, 2] if grp == 0 else [3, 4]
        oth = [3, 4] if grp == 0 else [0, 1, 2]
        if grp: a.label("K1_P2FB")
        for j in oth: a(f"ds_write_b128 v10, {vr(pacc(j,0),4)} offset:{(15 + j)*1024}")
        a("s_waitcnt lgkmcnt(0)\ns_barrier")
        a.stamp(29)
        D0 = HB + 8
        for x, j in enumerate(own):
            for m in range(7):
                a(f"ds_read_b128 {vr(D0+28*x+4*m,4)}, v{RA+m} offset:{j*1024}")
        for x, j in enumerate(own):
            rem = 7*(len(own) - 1 - x)
            d = D0 + 28*x; T = pacc(j, 0)
            a(f"s_waitcnt lgkmcnt({min(15, rem + 3)})")
            for h in range(2):
                a(f"v_pk_add_f32 {vr(d+2*h,2)}, {vr(d+2*h,2)}, {vr(d+4+2*h,2)}")
                a(f"v_pk_add_f32 {vr(d+8+2*h,2)}, {vr(d+8+2*h,2)}, {vr(d+12+2*h,2)}")
            for h in range(2): a(f"v_pk_add_f32 {vr(T+2*h,2)}, {vr(T+2*h,2)}, {vr(d+2*h,2)}")
            for h in range(2): a(f"v_pk_add_f32 {vr(T+2*h,2)}, {vr(T+2*h,2)}, {vr(d+8+2*h,2)}")
            a(f"s_waitcnt lgkmcnt({min(15, rem)})")
            for h in range(2): a(f"v_pk_add_f32 {vr(d+16+2*h,2)}, {vr(d+16+2*h,2)}, {vr(d+20+2*h,2)}")
            for h in range(2): a(f"v_pk_add_f32 {vr(T+2*h,2)}, {vr(T+2*h,2)}, {vr(d+24+2*h,2)}")
            for h in range(2): a(f"v_pk_add_f32 {vr(T+2*h,2)}, {vr(T+2*h,2)}, {vr(d+16+2*h,2)}")
            a(f"buffer_store_dwordx4 {vr(T,4)}, v7, s[28:31], 0 offen offset:{64*j} sc1")
        a.stamp(30)
        a("s_endpgm")

def gen_k1():
    a = Asm()
    a.raw(".p2align 8\n.type gemm1_kernel,@function\ngemm1_kernel:")
    a(f"""
    s_cmp_ge_u32 s2, 256
    s_cbranch_scc1 K1_END
    s_load_dwordx2 s[4:5], s[0:1], {KA['ws']}
    s_load_dwordx2 s[6:7], s[0:1], {KA['x']}
    s_load_dwordx4 s[44:47], s[0:1], {KA['lre']}
    s_load_dwordx4 s[48:51], s[0:1], {KA['bre']}
    s_load_dwordx2 s[52:53], s[0:1], {KA['ldt']}
    s_load_dwordx2 s[54:55], s[0:1], {KA['dbg']}
    s_load_dwordx4 s[56:59], s[0:1], {KA['wg']}
    s_load_dwordx2 s[96:97], s[0:1], {KA['dsk']}
    s_load_dwordx2 s[100:101], s[0:1], {KA['out']}
    v_and_b32 v1, 63, v0
    v_lshrrev_b32 v2, 6, v0
    s_nop 0
    v_readfirstlane_b32 s3, v2
    s_and_b32 s60, s2, 7
    s_lshr_b32 s61, s2, 3
    s_lshr_b32 s62, s60, 2
    s_lshl_b32 s62, s62, 2
    s_lshr_b32 s63, s61, 3
    s_add_u32 s62, s62, s63
    s_and_b32 s63, s60, 3
    s_lshl_b32 s63, s63, 3
    s_and_b32 s64, s61, 7
    s_add_u32 s63, s63, s64
    s_mov_b32 s35, s63
    s_waitcnt lgkmcnt(0)
    """)
    srd(a, 8, 6, XN_BYTES)
    a("""
    s_sub_u32 s65, s3, 4
    s_cmp_ge_u32 s65, 2
    s_cbranch_scc1 K1_NOTLOADER
    """)
    loader_code(a)
    a.label("K1_NOTLOADER")
    if os.environ.get("CPF", "1") == "1":
        a(f"""
        s_cmp_lg_u32 s3, 3
        s_cbranch_scc1 K1_NOCPF
        s_getpc_b64 s[66:67]
        K1_PCREF:
        s_sub_u32 s66, s66, K1_PCREF-gemm1_kernel
        s_subb_u32 s67, s67, 0
        s_lshl_b32 s65, s61, 11
        v_lshlrev_b32 v14, 7, v1
        v_add_u32 v14, s65, v14
        v_cmp_gt_u32 vcc, CODE_END-gemm1_kernel, v14
        s_and_b64 exec, vcc, 0xffff
        s_cbranch_execz K1_CPFSKIP
        global_load_dword v15, v14, s[66:67]
        K1_CPFSKIP:
        s_mov_b64 exec, -1
        K1_NOCPF:
        """)
    srd(a, 16, 4, HP_BYTES, WS_HP)
    srd(a, 76, 4, AGG_BYTES, WS_AGG)
    a(f"""
    v_lshrrev_b32 v30, 4, v1
    v_and_b32 v31, 15, v1
    v_lshrrev_b32 v10, 1, v31
    v_xor_b32 v10, v10, v30
    v_lshlrev_b32 v11, 7, v31
    v_lshl_add_u32 v10, v10, 4, v11
    v_bfe_u32 v14, v1, 2, 2
    v_bfe_u32 v15, v1, 4, 1
    v_lshl_add_u32 v14, v15, 2, v14
    v_bfe_u32 v15, v1, 5, 1
    v_lshl_add_u32 v14, v15, 4, v14
    v_mul_u32_u24 v14, 160, v14
    v_and_b32 v15, 3, v1
    v_lshl_add_u32 v11, v15, 3, v14
    s_cmp_ge_u32 s3, 4
    s_cbranch_scc1 K1_HELPER
    """)
    a(f"""
    s_lshl_b32 s65, s3, 13
    v_add_u32 v2, s65, v10
    v_xor_b32 v3, 64, v2
    v_add_u32 v4, 32768, v2
    v_add_u32 v5, 32768, v3
    v_add_u32 v6, 65536, v2
    v_add_u32 v7, 65536, v3
    s_lshl_b32 s64, s62, 4
    s_lshl_b32 s65, s3, 2
    s_add_u32 s64, s64, s65
    s_mul_i32 s64, s64, {NS2*1024}
    v_lshlrev_b32 v12, 4, v1
    s_cmp_lt_u32 s63, 10
    s_cbranch_scc1 K1_SSM
    """)
    a(f"""
    s_sub_u32 s63, s63, 10
    v_add_u32 v8, {WBASE}, v11
    s_lshr_b32 s65, s63, 1
    s_and_b32 s66, s63, 1
    s_lshl_b32 s67, s65, 2
    s_lshl_b32 s68, s66, 1
    s_add_u32 s67, s67, s68
    s_add_u32 s67, s67, 40
    s_lshl_b32 s67, s67, 10
    s_add_u32 s70, s67, s64
    s_add_u32 s71, s70, 1024
    s_cmp_eq_u32 s63, 21
    s_cselect_b32 s71, 0x40000000, s71
    s_add_u32 s67, s65, 84
    s_lshl_b32 s67, s67, 10
    s_mul_i32 s68, s66, {NS2*1024}
    s_add_u32 s67, s67, s68
    s_add_u32 s72, s67, s64
    """)
    consumer_loop(a, True, prefetch_setup(a, True))
    a(f"""
    s_lshl_b32 s65, s3, 8
    v_lshlrev_b32 v2, 2, v31
    v_add_u32 v2, s65, v2
    v_add_u32 v2, {LDS_STA}, v2
    v_lshlrev_b32 v3, 4, v30
    v_add_u32 v3, {LDS_CS}, v3
    """)
    for i in range(4):
        a(f"ds_read_b32 v{4+i}, v2 offset:{64*i}")
        a(f"ds_read_b32 v{8+i}, v2 offset:{1024+64*i}")
    a(f"v_mov_b32 v15, {LDS_SYNC}\nds_read_b32 v14, v15")
    a("s_cmp_eq_u32 s66, 1\ns_waitcnt lgkmcnt(0)\nv_readfirstlane_b32 s95, v14")
    for i in range(4): a(f"v_mul_f32 v{4+i}, v{4+i}, v{4+i}")
    a("s_cbranch_scc1 K1_GLU_ODD")
    for odd in range(2):
        if odd: a.label("K1_GLU_ODD")
        groups = [(4,), (0, 1), (2, 3)] if not odd else [(0,), (1, 2), (3, 4)]
        k = 0
        for gi, grp in enumerate(groups):
            for x, j in enumerate(grp):
                a(f"ds_read_b128 {vr(14+8*x,4)}, v3 offset:{64*j}")
                a(f"ds_read_b128 {vr(18+8*x,4)}, v3 offset:{320+64*j}")
            a("s_waitcnt lgkmcnt(0)")
            for i in range(4):
                mi = 8 + (i & ~1); msel = i & 1
                ai = 4 + (i & ~1)
                sel = f"op_sel:[0,{msel},0] op_sel_hi:[1,{msel},1] neg_lo:[0,1,0] neg_hi:[0,1,0]"
                sel2 = f"op_sel:[0,{msel}] op_sel_hi:[1,{msel}]"
                for x, j in enumerate(grp):
                    G = acc(i, j); U = acc(i, 5+j)
                    for h in range(2):
                        a(f"v_pk_fma_f32 {vr(G+2*h,2)}, {vr(14+8*x+2*h,2)}, {vr(mi,2)}, {vr(G+2*h,2)} {sel}")
                        a(f"v_pk_fma_f32 {vr(U+2*h,2)}, {vr(18+8*x+2*h,2)}, {vr(mi,2)}, {vr(U+2*h,2)} {sel}")
                    for h in range(2):
                        a(f"v_pk_mul_f32 {vr(G+2*h,2)}, {vr(G+2*h,2)}, {vr(U+2*h,2)}")
                    for h in range(2):
                        a(f"v_pk_mul_f32 {vr(G+2*h,2)}, {vr(G+2*h,2)}, {vr(ai,2)} {sel2}")
                if gi == 0:
                    T = acc(i & ~1, 5+grp[0]); G = acc(i, grp[0]); o = 2*(i & 1)
                    a(f"v_cvt_pk_bf16_f32 v{T+o}, v{G}, v{G+1}")
                    a(f"v_cvt_pk_bf16_f32 v{T+o+1}, v{G+2}, v{G+3}")
                    if i & 1:
                        a(f"s_add_u32 s75, s72, {(i-1)*NS2*1024}")
                        a(f"buffer_store_dwordx4 {vr(T,4)}, v12, s[16:19], s75 offen{ST}")
                    continue
                T = acc(i, 5+grp[0])
                for x, j in enumerate(grp):
                    G = acc(i, j)
                    a(f"v_cvt_pk_bf16_f32 v{T+2*x}, v{G}, v{G+1}")
                    a(f"v_cvt_pk_bf16_f32 v{T+2*x+1}, v{G+2}, v{G+3}")
                a(f"s_add_u32 s75, s{69+gi}, {i*NS2*1024}")
                a(f"buffer_store_dwordx4 {vr(T,4)}, v12, s[16:19], s75 offen{ST}")
        if odd == 0: a("s_branch K1_CFLAG")
    a.label("K1_CFLAG")
    consumer_flag(a)
    a.label("K1_SSM")
    a.lg = []
    a(f"""
    v_add_u32 v8, {WBASE}, v10
    v_xor_b32 v9, 64, v8
    s_lshl_b32 s65, s63, 12
    s_add_u32 s64, s64, s65
    """)
    consumer_loop(a, False, prefetch_setup(a, False))
    LAM = 14
    a(f"""
    v_lshlrev_b32 v13, 4, v31
    v_add_u32 v13, {LDS_LAM}, v13
    s_lshl_b32 s65, s3, 8
    v_lshlrev_b32 v2, 4, v30
    v_add_u32 v2, s65, v2
    v_add_u32 v2, {LDS_STA}, v2
    v_lshlrev_b32 v3, 2, v31
    v_add_u32 v3, {LDS_CS}, v3
    """)
    for i in range(4):
        a(f"ds_read_b128 {vr(160+4*i,4)}, v2 offset:{64*i}")
        a(f"ds_read_b128 {vr(176+4*i,4)}, v2 offset:{1024+64*i}")
    for jj in range(8):
        a(f"ds_read_b32 v{4+jj}, v3 offset:{64*jj}")
    a(f"v_mov_b32 v15, {LDS_SYNC}\nds_read_b32 v14, v15")
    a("s_waitcnt lgkmcnt(0)\nv_readfirstlane_b32 s95, v14")
    for j in range(4):
        a(f"ds_read_b128 {vr(LAM+4*j,4)}, v13 offset:{256*j}")
    for j in range(4):
        for jj in (j, 4+j):
            cs = 4 + (jj & ~1); sl = jj & 1
            for i in range(4):
                A = acc(i, jj)
                for h in range(2):
                    a(f"v_pk_fma_f32 {vr(A+2*h,2)}, {vr(176+4*i+2*h,2)}, {vr(cs,2)}, {vr(A+2*h,2)} op_sel:[0,{sl},0] op_sel_hi:[1,{sl},1] neg_lo:[0,1,0] neg_hi:[0,1,0]")
            for i in range(4):
                A = acc(i, jj)
                for h in range(2):
                    a(f"v_pk_mul_f32 {vr(A+2*h,2)}, {vr(A+2*h,2)}, {vr(160+4*i+2*h,2)}")
    a(f"""
    s_lshl_b32 s65, s3, 2
    v_add_u32 v10, s65, v30
    v_lshlrev_b32 v10, 9, v10
    v_lshl_add_u32 v10, v31, 3, v10
    v_add_u32 v10, {LDS_E16}, v10
    s_waitcnt lgkmcnt(0)
    """)
    def BR(j, sg): return acc(sg >> 1, j) + 2*(sg & 1)
    def BI(j, sg): return acc(sg >> 1, 4+j) + 2*(sg & 1)
    E = 160
    def ER(q, j): return E + 16*q + 4*j
    def EI(q, j): return E + 16*q + 4*j + 2
    def step(dR, dI, pR, pI, bR, bI, lam):
        return [
          f"v_pk_fma_f32 {vr(dR,2)}, {vr(lam,2)}, {vr(pR,2)}, {vr(bR,2)} op_sel_hi:[0,1,1]",
          f"v_pk_fma_f32 {vr(dI,2)}, {vr(lam,2)}, {vr(pI,2)}, {vr(bI,2)} op_sel_hi:[0,1,1]",
          f"v_pk_fma_f32 {vr(dR,2)}, {vr(lam,2)}, {vr(pI,2)}, {vr(dR,2)} op_sel:[1,0,0] op_sel_hi:[1,1,1] neg_lo:[1,0,0] neg_hi:[1,0,0]",
          f"v_pk_fma_f32 {vr(dI,2)}, {vr(lam,2)}, {vr(pR,2)}, {vr(dI,2)} op_sel:[1,0,0] op_sel_hi:[1,1,1]"]
    for sg in range(1, 8):
        q = sg & 1
        cols = []
        for j in range(4):
            pR, pI = (BR(j, 0), BI(j, 0)) if sg == 1 else (ER(q ^ 1, j), EI(q ^ 1, j))
            cols.append(step(ER(q, j), EI(q, j), pR, pI, BR(j, sg), BI(j, sg), LAM+4*j))
        for k in range(4):
            for j in range(4): a(cols[j][k])
    for j in range(4):
        c = ER(0, j); r = ER(1, j); im = EI(1, j); l8 = LAM+4*j+2
        a(f"""
        v_fma_f32 v{c}, v{l8}, v{r}, v{r+1}
        v_fma_f32 v{c+1}, v{l8}, v{im}, v{im+1}
        v_fma_f32 v{c}, -v{l8+1}, v{im}, v{c}
        v_fma_f32 v{c+1}, v{l8+1}, v{r}, v{c+1}
        ds_write_b64 v10, {vr(c,2)} offset:{128*j}
        """)
    a(f"""
    s_mul_i32 s65, s3, 18432
    v_mul_u32_u24 v2, 144, v31
    v_lshl_add_u32 v2, v30, 5, v2
    v_add_u32 v2, s65, v2
    v_bfe_u32 v3, v1, 2, 2
    v_lshl_add_u32 v3, v30, 3, v3
    v_mul_u32_u24 v3, 144, v3
    v_and_b32 v4, 3, v1
    v_lshl_add_u32 v3, v4, 3, v3
    v_add_u32 v3, s65, v3
    s_waitcnt lgkmcnt(0)
    s_barrier
    """)
    a.stamp(13)
    a(f"v_lshlrev_b32 v13, 3, v31\nv_add_u32 v13, {LDS_UV}, v13")
    for j in range(4):
        a(f"ds_read_b64 {vr([4,6,8,170][j],2)}, v13 offset:{128*j}")
    a("s_waitcnt lgkmcnt(0)")
    for j in range(4):
        U = [4,6,8,170][j]
        allp = [(acc(i, j)+2*h, acc(i, 4+j)+2*h) for i in range(4) for h in range(2)] + [(ER(1, j), EI(1, j))]
        for prs in (allp[:5], allp[5:]):
            for k, (R, I) in enumerate(prs):
                a(f"v_pk_mul_f32 {vr(160+2*k,2)}, {vr(R,2)}, {vr(U,2)} op_sel:[0,1] op_sel_hi:[1,1]")
            for k, (R, I) in enumerate(prs):
                a(f"v_pk_mul_f32 {vr(R,2)}, {vr(R,2)}, {vr(U,2)} op_sel:[0,0] op_sel_hi:[1,0]")
            for k, (R, I) in enumerate(prs):
                a(f"v_pk_fma_f32 {vr(R,2)}, {vr(I,2)}, {vr(U,2)}, {vr(R,2)} op_sel:[0,1,0] op_sel_hi:[1,1,1] neg_lo:[0,1,0] neg_hi:[0,1,0]")
            for k, (R, I) in enumerate(prs):
                a(f"v_pk_fma_f32 {vr(I,2)}, {vr(I,2)}, {vr(U,2)}, {vr(160+2*k,2)} op_sel:[0,0,0] op_sel_hi:[1,0,1]")
    a.stamp(15)
    a("s_barrier")
    a.stamp(14)
    for j in range(4):
        h = ER(0, j)
        a(f"ds_read_b32 v{h}, v10 offset:{LDS_S-LDS_E16+128*j}")
        a(f"ds_read_b32 v{h+2}, v10 offset:{LDS_S-LDS_E16+128*j+4}")
    a("s_waitcnt lgkmcnt(0)")
    for j in range(4):
        h = ER(0, j); l8 = LAM+4*j+2
        a(f"""
        v_fma_f32 v{h+1}, v{l8}, v{h}, v{ER(1,j)}
        v_fma_f32 v{h+3}, v{l8}, v{h+2}, v{EI(1,j)}
        v_fma_f32 v{h+1}, -v{l8+1}, v{h+2}, v{h+1}
        v_fma_f32 v{h+3}, v{l8+1}, v{h}, v{h+3}
        """)
    for sg in range(8):
        cols = []
        for j in range(4):
            pR, pI = (ER(0, j), EI(0, j)) if sg == 0 else (BR(j, sg-1), BI(j, sg-1))
            cols.append(step(BR(j, sg), BI(j, sg), pR, pI, BR(j, sg), BI(j, sg), LAM+4*j))
        for k in range(4):
            for j in range(4): a(cols[j][k])
    for jj in range(8):
        im, j = divmod(jj, 4)
        t = 160 + 8*(jj % 4)
        for i in range(4):
            A = acc(i, jj)
            ng = "-" if im else ""
            a(f"v_cvt_pk_bf16_f32 v{t+i}, {ng}v{A}, {ng}v{A+2}")
            a(f"v_cvt_pk_bf16_f32 v{t+4+i}, {ng}v{A+1}, {ng}v{A+3}")
        o = (32*(2*im + (j >> 1)) + 16*(j & 1))*144
        a(f"ds_write_b128 v2, {vr(t,4)} offset:{o}")
        a(f"ds_write_b128 v2, {vr(t+4,4)} offset:{o+16}")
    a("s_waitcnt lgkmcnt(0)")
    for i in range(4):
        for j in range(4):
            d = ACC + 4*(i*4+j)
            for h in range(2):
                a(f"ds_read_b64_tr_b16 {vr(d+2*h,2)}, v3 offset:{(32*j+4*h)*144 + 32*i}")
    k = 0
    for i in range(4):
        for j in range(4):
            d = ACC + 4*(i*4+j)
            k += 1
            a(f"s_waitcnt lgkmcnt({min(15, 32-2*k)})")
            a(f"s_add_u32 s65, s64, {(i*NS2 + j)*1024}")
            a(f"buffer_store_dwordx4 {vr(d,4)}, v12, s[16:19], s65 offen{ST}")
    a("s_branch K1_CFLAG")
    a.label("K1_HELPER")
    a(f"""
    s_and_b32 s43, s3, 1
    s_lshl_b32 s64, s62, 8
    s_lshl_b32 s65, s43, 7
    s_add_u32 s64, s64, s65
    v_lshrrev_b32 v20, 3, v1
    v_and_b32 v21, 7, v1
    """)
    a(f"""
    s_cmp_lt_u32 s63, 10
    s_cbranch_scc1 K1_HSSM
    s_mul_i32 s66, s43, 10240
    s_add_u32 s66, s66, {WBASE}
    v_add_u32 v18, s66, v11
    v_add_u32 v53, s64, v1
    v_lshlrev_b32 v53, 3, v53
    """)
    helper_loop(a, True, {})
    a("s_mov_b32 s47, 0\ns_branch K1_P2")
    a.label("K1_HSSM")
    LR = 85
    def preload():
        srd(a, 20, 44, P*2); srd(a, 24, 46, P*2); srd(a, 28, 52, P*2)
        a(f"""
        s_lshl_b32 s65, s63, 7
        v_lshlrev_b32 v22, 1, v1
        v_add_u32 v22, s65, v22
        s_lshl_b32 s90, s63, 13
        s_lshl_b32 s91, s62, 10
        s_add_u32 s91, s91, s90
        buffer_load_ushort v{LR}, v22, s[20:23], 0 offen
        buffer_load_ushort v{LR+1}, v22, s[24:27], 0 offen
        buffer_load_ushort v{LR+2}, v22, s[28:31], 0 offen
        """)
    LM = 8; L16 = 188; L256 = 190
    def csq(d, s, t=22):
        a(f"""
        v_mul_f32 v{t}, v{s+1}, v{s+1}
        v_mul_f32 v{t+1}, v{s}, v{s+1}
        v_fma_f32 v{d}, v{s}, v{s}, -v{t}
        v_add_f32 v{d+1}, v{t+1}, v{t+1}
        """)
    def pre():
        lam_calc(a, LR, LR+1, LR+2, 148, LM, LM+1, coef=(6, 7))
        a(f"""
        v_add_f32 v6, v6, v6
        v_add_f32 v7, v7, v7
        v_lshlrev_b32 v22, 3, v1
        v_add_u32 v22, {LDS_UV}, v22
        ds_write_b64 v22, v[6:7]
        """)
    def pre2():
        csq(LM+2, LM); csq(LM+2, LM+2); csq(LM+2, LM+2)
        csq(L16, LM+2)
        csq(L256, L16); csq(L256, L256); csq(L256, L256); csq(L256, L256)
        a(f"""
        v_lshlrev_b32 v22, 4, v1
        v_add_u32 v23, {LDS_LAM}, v22
        ds_write_b128 v23, {vr(LM,4)}
        s_waitcnt lgkmcnt(0)
        """)
    a(f"""
    s_mul_i32 s67, s43, 10240
    s_add_u32 s67, s67, {WBASE}
    v_add_u32 v18, s67, v10
    v_xor_b32 v16, 64, v18
    v_bfe_u32 v53, v1, 2, 2
    v_lshlrev_b32 v53, 4, v53
    v_and_b32 v22, 1, v1
    v_lshl_add_u32 v53, v22, 3, v53
    v_bfe_u32 v22, v1, 1, 1
    v_add_u32 v53, v53, v22
    v_lshl_add_u32 v53, v30, 1, v53
    v_add_u32 v53, s64, v53
    v_lshlrev_b32 v53, 3, v53
    """)
    helper_loop(a, False, {"preload": preload, ("side", 1): pre, ("side", 4): pre2})
    a("s_mov_b32 s47, 2\ns_cmp_lg_u32 s43, 0\ns_cbranch_scc1 K1_P2")
    a(f"""
    v_lshlrev_b32 v22, 4, v1
    v_lshlrev_b32 v23, 3, v1
    v_add_u32 v23, {LDS_E16}, v23
    v_add_u32 v24, 4096, v22
    s_barrier
    """)
    EV = 32
    def ev(R): return EV + 2*R
    for R in range(16):
        a(f"ds_read_b64 {vr(ev(R),2)}, v23 offset:{512*R}")
    def cfma(d, lam, s, add):
        a(f"""
        v_fma_f32 v{d}, v{lam}, v{s}, v{add}
        v_fma_f32 v{d+1}, v{lam}, v{s+1}, v{add+1}
        v_fma_f32 v{d}, -v{lam+1}, v{s+1}, v{d}
        v_fma_f32 v{d+1}, v{lam+1}, v{s}, v{d+1}
        """)
    A0, A1 = 96, 100
    a(f"v_mov_b32 v{A0+2}, s95\nv_mov_b32 v{A0+3}, 0")
    a("s_waitcnt lgkmcnt(0)")
    cur = ev(0)
    for R in range(1, 16):
        d = A0 if (R & 1) else A1
        cfma(d, L16, cur, ev(R)); cur = d
    assert cur == A0
    a(f"""
    buffer_store_dwordx4 {vr(A0,4)}, v22, s[76:79], s91 offen sc1
    s_mov_b32 s67, 0
    s_cmp_eq_u32 s62, 0
    s_cbranch_scc1 K1_POLLOK
    """)
    PV = 64
    a.label("K1_POLL")
    for rb in range(7):
        a(f"buffer_load_dwordx4 {vr(PV+4*rb,4)}, v{22 if rb < 4 else 24}, s[76:79], s90 offen offset:{1024*(rb%4)} sc1")
    a("s_waitcnt vmcnt(0)\ns_mov_b64 s[68:69], -1")
    lab = a.newlabel("K1_CHK")
    for rb in range(7):
        a(f"""
        s_cmp_le_u32 s62, {rb}
        s_cbranch_scc1 {lab}
        v_cmp_eq_u32 vcc, s95, v{PV+4*rb+2}
        s_and_b64 s[68:69], s[68:69], vcc
        """)
    a.label(lab)
    a(f"""
    s_cmp_eq_u64 s[68:69], -1
    s_cbranch_scc1 K1_POLLOK
    s_add_u32 s67, s67, 1
    s_cmp_lt_u32 s67, 100000
    s_sleep 1
    s_cbranch_scc1 K1_POLL
    """)
    a.label("K1_POLLOK")
    a("v_mov_b32 v104, 0\nv_mov_b32 v105, 0")
    lab = a.newlabel("K1_CAR")
    for rb in range(7):
        a(f"s_cmp_le_u32 s62, {rb}\ns_cbranch_scc1 {lab}")
        cfma(106, L256, 104, PV+4*rb)
        a("v_mov_b32 v104, v106\nv_mov_b32 v105, v107")
    a.label(lab)
    cur = 104
    for R in range(16):
        t = 108 + 2*(R & 1)
        a(f"""
        v_mul_f32 v{t}, v6, v{cur}
        v_mul_f32 v{t+1}, v6, v{cur+1}
        v_fma_f32 v{t}, -v7, v{cur+1}, v{t}
        v_fma_f32 v{t+1}, v7, v{cur}, v{t+1}
        """)
        if R < 15:
            d = A0 if (R & 1) else A1
            cfma(d, L16, cur, ev(R)); cur = d
        a(f"ds_write_b64 v23, {vr(t,2)} offset:{LDS_S-LDS_E16+512*R}")
    a("s_waitcnt lgkmcnt(0)\ns_barrier\ns_mov_b32 s47, 0")
    phase2(a)
    a.label("K1_END")
    a("s_endpgm")
    return a.text(), kd("gemm1_kernel", 192+60, 102, 192), f"; @launch kernel=gemm1_kernel grid=(256,1,1) block=(512,1,1) lds={LDS_TOTAL}"
```

```python
import sys
sys.path.insert(0, "dev")
from gen_common import *
import gen_k0, gen_k2
OUT = "parallel_sum__ssm_conv_s5__glu_gated_bilinear__prompt.s"
def build(parts, path):
    hdr = "\n".join(p[2] for p in parts) + "\n"
    txt = hdr + '.amdgcn_target "amdgcn-amd-amdhsa--gfx950"\n.text\n' + "".join(p[0] for p in parts) + "CODE_END:\n"
    txt += '.section .rodata,"a"\n' + "".join(p[1] for p in parts)
    open(path, "w").write(txt)
if __name__ == "__main__":
    import gen_f
    parts = [gen_f.gen_k1()]
    build(parts, sys.argv[1] if len(sys.argv) > 1 else OUT)
```

```python
from gen_common import *
import os
EXP = os.environ.get('EXP', '')
PF = os.environ.get('PF', '1') == '1'

ACC = 32
XBASE = 0
WBASE = 98304
SPARE = 159744
LDS_TOTAL = 163840
LDS_E16 = 73728
LDS_S = LDS_E16
LDS_LAM = SPARE
LDS_STA = SPARE + 1024
LDS_STM = SPARE + 2048
LDS_CS = SPARE + 3072
LDS_UV = SPARE + 3584
LDS_SYNC = 158720
WS_FLG = 0x1760000
FLG_BYTES = 16384
NH = int(os.environ.get("NH", "4")); NW = int(os.environ.get("NW", "4")); NL = int(os.environ.get("NL", "3"))
RPS = int(os.environ.get("RPS", "6"))
TAG = 0x5ca1ab1e
DBG_RB = 0
DBG_CT = 8
ST = " sc1"
WRN = 6

def acc(i, jj): return ACC + 4*(jj*4 + i)
def XF(par, i): return 16*par + 4*i
def WR(phi): return 32 + 4*(phi % WRN)

def consumer_loop(a, glu, hooks={}):
    NJ = 5 if glu else 4
    NJ2 = 2*NJ
    SLOT = 20480
    P3 = 6*NJ2
    def wread(phi, last=False):
        n, jj = divmod(phi, NJ2)
        if last and n >= 2: return
        s, ks = (n >> 1) % 3, n & 1
        mat, j = divmod(jj, NJ)
        off = s*SLOT
        if glu:
            for h in range(2):
                o = off + mat*10240 + (8*h + 32*ks)*160 + 32*j
                a.lds(f"ds_read_b64_tr_b16 {ar(WR(phi) + 2*h, 2)}, v8 offset:{o}", ("W", phi % P3))
        else:
            a.lds(f"ds_read_b128 {ar(WR(phi), 4)}, v{8+ks} offset:{off + mat*10240 + j*2048 + (1024 if j >= 2 else 0)}", ("W", phi % P3))
    def xread(n, i, last=False):
        if last and n >= 2: return
        s, ks = (n >> 1) % 3, n & 1
        a.lds(f"ds_read_b128 {ar(XF(n & 1, i), 4)}, v{2 + s*2 + ks} offset:{i*2048}", ("X", n % 6))
    BJ = NJ2 - 3
    def kstep(n, last=False):
        ks = n & 1
        for jj in range(NJ2):
            phi = n*NJ2 + jj
            if ks == 1 and jj == BJ and not last:
                a.lgwait_all()
                a("s_mul_i32 s86, s87, 3") if os.environ.get("CST") else None
                a.dstamp(17 + (n >> 1), "s86") if os.environ.get("CST") else None
                a("s_barrier")
                if "touch" in hooks:
                    lt = a.newlabel("K1_CT")
                    a(f"s_cmp_ge_u32 s87, {(9 - PFD - (n >> 1) - 1)//3 + 1}\ns_cbranch_scc1 {lt}")
                    hooks["touch"]()
                    a.label(lt)
            a.lgwait([("W", phi % P3), ("X", n % 6)])
            todo = []
            if ks == 0:
                todo.append(("w", phi + 4))
                if 2 <= jj < 6: todo.append(("x", n + 1, jj - 2))
            else:
                if jj + 4 < NJ2: todo.append(("w", phi + 4))
                elif jj == BJ: todo += [("w", phi + 3), ("x", n+1, 0), ("w", phi + 4), ("x", n+1, 1)]
                elif jj == BJ + 1: todo += [("w", phi + 4), ("x", n+1, 2), ("x", n+1, 3)]
                elif jj == BJ + 2: todo.append(("w", phi + 4))
            for i in range(4):
                c = vr(acc(i, jj), 4)
                xa = ar(XF(n & 1, i), 4); wa = ar(WR(phi), 4)
                if glu: a(f"v_mfma_f32_16x16x32_bf16 {c}, {wa}, {xa}, {c}")
                else:   a(f"v_mfma_f32_16x16x32_bf16 {c}, {xa}, {wa}, {c}")
                if todo:
                    t = todo.pop(0)
                    if t[0] == "w": wread(t[1], last)
                    else: xread(t[1], t[2], last)
            assert not todo
    a.stamp(1)
    for r in range(ACC, ACC + 16*NJ2): a(f"v_mov_b32 v{r}, 0")
    a("s_mov_b32 s87, 0")
    a("s_barrier")
    a.stamp(2); a.lines.append("  ;@CSTAMP 26")
    if "touch" in hooks: hooks["touch"]()
    wread(0); xread(0, 0); wread(1); xread(0, 1); wread(2); xread(0, 2); xread(0, 3); wread(3)
    entry = list(a.lg)
    lab = a.newlabel("K1_CL")
    a.label(lab)
    for n in range(6): kstep(n)
    assert a.lg == entry, (a.lg, entry)
    a(f"s_add_u32 s87, s87, 1\ns_cmp_lt_u32 s87, 3\ns_cbranch_scc1 {lab}")
    a.stamp(11); a.lines.append("  ;@CSTAMP 27")
    kstep(0, True); kstep(1, True)
    a("s_waitcnt vmcnt(0)")
    a.stamp(12); a.lines.append("  ;@CSTAMP 28")
    a("s_barrier")

LT = int(os.environ.get("LT", "3"))
def loader_code(a):
    a(f"""
    s_and_b32 s43, s3, 1
    v_and_b32 v31, 15, v1
    s_lshr_b32 s65, s61, 3
    s_lshl_b32 s65, s65, 4
    s_mov_b32 s15, 0x20000
    s_cmp_lt_u32 s63, 10
    s_cselect_b64 vcc, -1, 0
    s_cbranch_scc1 K1_LT_SSM
    s_sub_u32 s63, s63, 10
    s_cmp_eq_u32 s43, 0
    s_cselect_b32 s12, s56, s58
    s_cselect_b32 s13, s57, s59
    s_mov_b32 s14, {D*F*2}
    s_mul_i32 s40, s63, 160
    s_mov_b32 s33, {64*3456}
    s_mul_i32 s65, s65, 3456
    v_mul_u32_u24 v22, 3456, v31
    v_bfe_u32 v23, v1, 4, 1
    v_mul_u32_u24 v23, 156, v23
    v_add_u32 v22, v22, v23
    s_mov_b32 exec_lo, -1
    s_branch K1_LT_GO
    """)
    a.label("K1_LT_SSM")
    a(f"""
    s_cmp_eq_u32 s43, 0
    s_cselect_b32 s12, s48, s50
    s_cselect_b32 s13, s49, s51
    s_mov_b32 s14, {P*D*2}
    s_mul_i32 s40, s63, {64*1280}
    s_mov_b32 s33, 128
    s_mul_i32 s65, s65, 1280
    v_mul_u32_u24 v22, 1280, v31
    s_mov_b32 exec_lo, 0xffff
    """)
    a.label("K1_LT_GO")
    a(f"""
    s_mov_b32 exec_hi, 0
    s_add_u32 s65, s65, s40
    s_lshl_b32 s66, s62, 8
    s_and_b32 s67, s61, 7
    s_lshl_b32 s67, s67, 5
    s_add_u32 s66, s66, s67
    s_lshl_b32 s67, s43, 4
    s_add_u32 s66, s66, s67
    s_mul_i32 s66, s66, 1280
    v_mul_u32_u24 v23, 1280, v31
    """)
    a.stamp(12)
    for t in range(LT):
        a(f"buffer_load_dword v{26+t}, v22, s[12:15], s65 offen\nbuffer_load_dword v{40+t}, v23, s[8:11], s66 offen offset:{128*t}\ns_add_u32 s65, s65, s33")
    a(f"""
    s_mov_b64 exec, -1
    s_lshl_b32 s64, s62, 8
    s_lshl_b32 s65, s43, 7
    s_add_u32 s64, s64, s65
    s_mul_i32 s20, s64, 1280
    s_lshl_b32 s41, s43, 14
    v_lshrrev_b32 v20, 3, v1
    v_and_b32 v21, 7, v1
    s_movk_i32 s66, {16*1280}
    s_movk_i32 s67, {8*1280}
    s_cmp_lg_u64 vcc, 0
    s_cselect_b32 s66, {2*1280}, s66
    v_lshrrev_b32 v23, 4, v1
    v_xor_b32 v23, v23, v21
    v_bfe_u32 v24, v1, 5, 1
    v_lshlrev_b32 v24, 4, v24
    v_bfe_u32 v25, v1, 3, 1
    v_lshl_add_u32 v24, v25, 3, v24
    v_bfe_u32 v25, v1, 4, 1
    v_add_u32 v24, v24, v25
    v_cndmask_b32 v24, v20, v24, vcc
    v_mul_u32_u24 v24, 1280, v24
    v_lshl_add_u32 v4, v23, 4, v24
    s_cselect_b32 s67, {32*1280}, s67
    v_xor_b32 v5, 64, v4
    v_add_u32 v5, s67, v5
    s_add_u32 s21, s20, s66
    s_add_u32 s22, s21, s66
    s_add_u32 s23, s22, s66
    s_add_u32 s24, s20, {64*1280}
    s_add_u32 s25, s21, {64*1280}
    s_add_u32 s26, s22, {64*1280}
    s_add_u32 s27, s23, {64*1280}
    s_mov_b32 s36, 0
    s_mov_b32 s37, s41
    s_mul_i32 s42, s43, 10240
    s_add_u32 s42, s42, {WBASE}
    s_mov_b32 s30, s42
    s_add_u32 s31, s30, 5120
    s_cbranch_vccnz K1_LW_SSM
    s_mov_b32 s39, {32*3456}
    s_mov_b32 s34, 0
    """)
    for n in range(5):
        a(f"""
        v_add_u32 v22, {64*n}, v1
        v_mul_u32_u24 v23, 6554, v22
        v_lshrrev_b32 v23, 16, v23
        v_mul_u32_u24 v24, 10, v23
        v_sub_u32 v24, v22, v24
        v_and_b32 v25, 0x33, v23
        v_bfe_u32 v6, v23, 2, 1
        v_lshl_or_b32 v25, v6, 3, v25
        v_bfe_u32 v6, v23, 3, 1
        v_lshl_or_b32 v25, v6, 2, v25
        v_mul_u32_u24 v25, 3456, v25
        v_lshl_add_u32 v{12+n}, v24, 4, v25
        """)
    a("s_branch K1_LW_GO")
    a.label("K1_LW_SSM")
    a(f"""
    s_mov_b32 s39, {32*1280}
    s_mov_b32 s34, 0x40000000
    v_mul_u32_u24 v24, 1280, v20
    v_lshl_add_u32 v12, v23, 4, v24
    v_xor_b32 v13, 64, v12
    v_add_u32 v13, {8*1280}, v13
    v_add_u32 v14, {16*1280}, v12
    v_add_u32 v15, {16*1280}, v13
    v_mov_b32 v16, v12
    """)
    a.label("K1_LW_GO")
    def xdma(lo, hi):
        for k in range(lo, hi):
            c, q = divmod(k, 8)
            a(f"s_add_u32 m0, s37, {c*8192 + q*1024}\ns_add_u32 s68, s{20 + 4*c + (q >> 1)}, s36\nbuffer_load_dwordx4 v{4+(q & 1)}, s[8:11], s68 offen lds")
    def wdma(c):
        a(f"s_add_u32 s69, s40, s39" if c else "s_mov_b32 s69, s40")
        for n in range(5):
            if n == 4: a("s_add_u32 s69, s69, s34")
            a(f"s_add_u32 m0, s{30+c}, {n*1024}\ns_nop 0\nbuffer_load_dwordx4 v{12+n}, s[12:15], s69 offen lds")
    def adv():
        a(f"""
        s_add_u32 s40, s40, s33
        s_add_u32 s36, s36, 128
        s_add_u32 s37, s37, 32768
        s_add_u32 s30, s30, 20480
        s_cmp_ge_u32 s37, 98304
        s_cselect_b32 s37, s41, s37
        s_cselect_b32 s30, s42, s30
        s_add_u32 s31, s30, 5120
        """)
    NV = 26
    a(f"s_load_dwordx4 s[80:83], s[0:1], {KA['cre']}\ns_load_dwordx2 s[84:85], s[0:1], {KA['wd']}")
    a(f"s_waitcnt vmcnt({2*LT-2})")
    a.stamp(1)
    xdma(0, 16); wdma(0); wdma(1); adv()
    a(f"s_waitcnt vmcnt({NV//2})")
    xdma(0, 13)
    a(f"s_waitcnt vmcnt(13)\ns_mov_b32 s87, 0")
    a.stamp(2)
    a("s_barrier")
    a.stamp(16)
    xdma(13, 16); wdma(0); wdma(1); adv()
    a.label("K1_LL")
    if RPS < 8:
        a(f"s_cmp_lg_u32 s87, {RPS}\ns_cbranch_scc1 K1_LNR")
        repack_issue(a)
        a.label("K1_LNR")
    xdma(0, 16); wdma(0); wdma(1); adv()
    a(f"s_add_u32 s87, s87, 1\ns_waitcnt vmcnt({NV})")
    a.dstamp(2, "s87")
    a("s_barrier")
    a.dstamp(16, "s87")
    a("s_cmp_lt_u32 s87, 8\ns_cbranch_scc1 K1_LL")
    assert RPS <= 6
    repack_finish(a)
    a("s_waitcnt vmcnt(10)")
    a.stamp(11)
    a("s_barrier")
    a.stamp(25)
    a("""
    s_mov_b64 exec, 1
    s_waitcnt vmcnt(0)
    buffer_store_dword v46, v2, s[20:23], s66 offen sc1
    s_mov_b64 exec, -1
    """)
    a.stamp(13)
    a("s_cmp_lt_u32 s35, 10\ns_cselect_b32 s47, 3, 1\ns_branch K1_P2")

def repack_issue(a):
    a(f"""
    s_waitcnt lgkmcnt(0)
    s_lshl_b32 s70, s35, 1
    s_add_u32 s70, s70, s43
    s_mul_i32 s65, s70, 40960
    s_mul_i32 s66, s62, 160
    s_add_u32 s65, s65, s66
    """)
    srd(a, 72, 54, 256)
    a("v_mov_b32 v40, 0\nbuffer_load_dword v46, v40, s[72:75], 0 offen sc1")
    srd(a, 72, 84, F*D*2)
    for n in range(5):
        a(f"""
        v_add_u32 v40, {64*n}, v1
        v_mul_u32_u24 v41, 6554, v40
        v_lshrrev_b32 v41, 16, v41
        v_mul_u32_u24 v42, 10, v41
        v_sub_u32 v42, v40, v42
        v_mul_u32_u24 v41, 1280, v41
        v_lshl_add_u32 v40, v42, 4, v41
        buffer_load_dwordx4 {vr(48+4*n,4)}, v40, s[72:75], s65 offen
        """)
    a(f"""
    s_sub_u32 s71, 63, s70
    s_bitcmp1_b32 s71, 1
    s_cselect_b32 s76, s82, s80
    s_cselect_b32 s77, s83, s81
    s_mov_b32 s78, {D*P*2}
    s_mov_b32 s79, 0x20000
    s_lshr_b32 s65, s71, 2
    s_lshl_b32 s65, s65, 7
    s_and_b32 s66, s71, 1
    s_lshl_b32 s66, s66, 6
    s_add_u32 s65, s65, s66
    s_mul_i32 s66, s62, {80*1280}
    s_add_u32 s65, s65, s66
    s_cmp_lt_u32 s71, 40
    s_cselect_b32 s65, s65, 0x40000000
    v_mul_u32_u24 v40, 1280, v31
    v_lshrrev_b32 v41, 4, v1
    v_lshl_add_u32 v40, v41, 4, v40
    """)
    for dt in range(5):
        a(f"buffer_load_dwordx4 {vr(68+4*dt,4)}, v40, s[76:79], s65 offen\ns_add_u32 s65, s65, {16*1280}")

def repack_finish(a):
    srd(a, 16, 4, WP_BYTES, WS_WP)
    srd(a, 20, 4, FLG_BYTES, WS_FLG)
    a(f"""
    s_mul_i32 s65, s43, 5120
    s_add_u32 s65, s65, {WBASE + 20480}
    v_lshlrev_b32 v2, 4, v1
    v_add_u32 v3, s65, v2
    v_lshrrev_b32 v6, 4, v1
    v_bfe_u32 v4, v1, 2, 2
    v_lshl_add_u32 v4, v6, 2, v4
    v_mul_u32_u24 v4, 160, v4
    v_and_b32 v5, 3, v1
    v_lshl_add_u32 v4, v5, 3, v4
    v_add_u32 v4, s65, v4
    """)
    for n in range(5): a(f"ds_write_b128 v3, {vr(48+4*n,4)} offset:{1024*n}")
    a(f"""
    s_mul_i32 s68, s62, {5*NS2*1024}
    s_lshl_b32 s65, s71, 10
    s_add_u32 s65, s65, s68
    s_cmp_lt_u32 s71, 40
    s_cselect_b32 s65, s65, 0x40000000
    s_waitcnt lgkmcnt(0)
    """)
    for dt in range(5):
        for h in range(2): a(f"ds_read_b64_tr_b16 {vr(88+4*dt+2*h,2)}, v4 offset:{2560*h + 32*dt}")
    for dt in range(5):
        a(f"buffer_store_dwordx4 {vr(68+4*dt,4)}, v2, s[16:19], s65 offen sc1\ns_add_u32 s65, s65, {NS2*1024}")
    a(f"""
    s_mul_i32 s65, s70, 52429
    s_lshr_b32 s65, s65, 18
    s_mul_i32 s66, s65, 5
    s_sub_u32 s66, s70, s66
    s_add_u32 s67, s70, 2
    s_mul_i32 s67, s67, 52429
    s_lshr_b32 s67, s67, 18
    s_sub_u32 s67, s70, s67
    s_add_u32 s67, s67, 40
    s_add_u32 s65, s65, 84
    s_cmp_eq_u32 s66, 2
    s_cselect_b32 s65, s65, s67
    s_lshl_b32 s65, s65, 10
    s_add_u32 s65, s65, s68
    s_cmp_lt_u32 s70, 54
    s_cselect_b32 s65, s65, 0x40000000
    s_waitcnt lgkmcnt(0)
    """)
    for dt in range(5):
        a(f"buffer_store_dwordx4 {vr(88+4*dt,4)}, v2, s[16:19], s65 offen sc1\ns_add_u32 s65, s65, {NS2*1024}")
    a(f"""
    s_lshl_b32 s66, s70, 2
    s_lshl_b32 s67, s62, 8
    s_add_u32 s66, s66, s67
    s_add_u32 s66, s66, 8192
    v_mov_b32 v2, 0
    """)

def helper_loop(a, glu, hooks={}):
    NJ = 5 if glu else 4
    SLOT = 20480
    NG = 14 if glu else 8
    def colsum(s, dst):
        off = (s % 3)*SLOT
        for ks in range(2):
            for j in range(NJ):
                r = 88 + 20*ks + 4*j
                if glu:
                    for h in range(2): a(f"ds_read_b64_tr_b16 {vr(r+2*h,2)}, v18 offset:{off + (8*h + 32*ks)*160 + 32*j}")
                else:
                    a(f"ds_read_b128 {vr(r,4)}, v{18 if ks == 0 else 16} offset:{off + j*2048 + (1024 if j >= 2 else 0)}")
            if ks == 0 and glu: a("s_waitcnt lgkmcnt(2)")
        for ks in range(2):
            a(f"s_waitcnt lgkmcnt({(2*NJ if glu else NJ) if ks == 0 else 0})")
            for j in range(NJ):
                a(f"v_mfma_f32_16x16x32_bf16 {vr(dst+4*j,4)}, v[56:59], {vr(88+20*ks+4*j,4)}, {vr(dst+4*j,4)}")
    def pick(dst):
        a(f"s_nop 7\nv_mov_b32 v24, v{dst}")
        for g in range(1, 4):
            a(f"v_cmp_eq_u32 vcc, {g}, v30\ns_nop 1\nv_cndmask_b32 v24, v24, v{dst+4*g}, vcc")
        if glu: a(f"v_mov_b32 v25, v{dst+16}")
    def remote_colsum(s):
        l4 = a.newlabel("K1_LC")
        a(f"s_cmp_lg_u32 s62, {s}\ns_cbranch_scc1 {l4}")
        colsum(s, 128); pick(128)
        a("v_mov_b32 v22, v24\nv_mov_b32 v23, s95\nbuffer_store_dwordx2 v[22:23], v17, s[28:31], s93 offen sc1")
        if glu: a("v_mov_b32 v28, v25\nv_mov_b32 v29, s95\ns_mov_b64 exec, 0xffff\nbuffer_store_dwordx2 v[28:29], v17, s[28:31], s93 offen offset:512 sc1\ns_mov_b64 exec, -1")
        a.label(l4)
    def red16(v):
        for r in (8, 4, 2, 1):
            a(f"s_nop 1\nv_add_f32_dpp v{v}, v{v}, v{v} row_ror:{r} row_mask:0xf bank_mask:0xf")
    inv640 = 0x3acccccd
    U = 148
    def stats_a():
        a("s_waitcnt vmcnt(0)")
        for k in range(20):
            a(f"v_lshlrev_b32 v{U+2*k}, 16, v{60+k}\nv_and_b32 v{U+1+2*k}, 0xffff0000, v{60+k}")
        a(f"v_pk_add_f32 v[22:23], {vr(U,2)}, {vr(U+2,2)}\nv_pk_add_f32 v[28:29], {vr(U+4,2)}, {vr(U+6,2)}")
        for k in range(U+8, U+40, 4):
            a(f"v_pk_add_f32 v[22:23], v[22:23], v[{k}:{k+1}]\nv_pk_add_f32 v[28:29], v[28:29], v[{k+2}:{k+3}]")
        a("v_pk_add_f32 v[22:23], v[22:23], v[28:29]\ns_nop 0\nv_add_f32 v22, v22, v23")
        red16(22)
        a(f"v_mul_f32 v80, {inv640:#x}, v22\nbuffer_load_dword v52, v55, s[20:23], 0 offen sc1")
    def stats_b():
        for k in range(U, U+40, 2):
            a(f"v_pk_add_f32 v[{k}:{k+1}], v[{k}:{k+1}], v[80:81] op_sel_hi:[1,0] neg_lo:[0,1] neg_hi:[0,1]")
        a(f"v_pk_mul_f32 v[22:23], {vr(U,2)}, {vr(U,2)}\nv_pk_mul_f32 v[28:29], {vr(U+2,2)}, {vr(U+2,2)}")
        for k in range(U+4, U+40, 4):
            a(f"v_pk_fma_f32 v[22:23], v[{k}:{k+1}], v[{k}:{k+1}], v[22:23]\nv_pk_fma_f32 v[28:29], v[{k+2}:{k+3}], v[{k+2}:{k+3}], v[28:29]")
        a("v_pk_add_f32 v[22:23], v[22:23], v[28:29]\ns_nop 0\nv_add_f32 v25, v22, v23")
        red16(25)
        a(f"v_mul_f32 v25, {inv640:#x}, v25")
        bf16r(a, 25, 25)
        a("v_add_f32 v25, 0x3727c5ac, v25")
        bf16r(a, 25, 25)
        a("""
        v_sqrt_f32 v25, v25
        s_nop 0
        v_cvt_pk_bf16_f32 v24, v25, v80
        v_mov_b32 v25, s95
        s_mov_b32 exec_lo, 0x10001
        s_mov_b32 exec_hi, 0x10001
        buffer_store_dwordx2 v[24:25], v26, s[24:27], 0 offen sc1
        s_mov_b64 exec, -1
        """)
    def gather_issue():
        a("buffer_load_dwordx2 v[26:27], v53, s[24:27], 0 offen sc1")
        a("buffer_load_dwordx2 v[28:29], v53, s[24:27], 0 offen offset:512 sc1")
        for r in range(6):
            a(f"s_add_u32 s66, s92, {r*1280}")
            a(f"buffer_load_dwordx2 {vr(60+2*r,2)}, v17, s[28:31], s66 offen sc1")
            if glu: a(f"buffer_load_dwordx2 {vr(72+2*r,2)}, v17, s[28:31], s66 offen offset:512 sc1")
    def get_epoch():
        lp = a.newlabel("K1_EP"); lo = a.newlabel("K1_EO")
        a("s_mov_b32 s67, 0")
        a.label(lp)
        a(f"""
        s_waitcnt vmcnt(0)
        v_readfirstlane_b32 s95, v52
        s_add_u32 s67, s67, 1
        s_cmp_lg_u32 s95, 0
        s_cbranch_scc1 {lo}
        s_sleep 4
        buffer_load_dword v52, v55, s[20:23], 0 offen sc1
        s_cmp_lt_u32 s67, 100000
        s_cbranch_scc1 {lp}
        """)
        a.label(lo)
    a(f"""
    s_lshl_b32 s66, s62, 8
    s_lshl_b32 s67, s35, 3
    s_add_u32 s66, s66, s67
    s_lshl_b32 s67, s43, 2
    s_add_u32 s66, s66, s67
    s_mul_i32 s94, s66, 1280
    v_mul_u32_u24 v54, 1280, v30
    v_lshl_add_u32 v54, v31, 4, v54
    v_add_u32 v26, s66, v30
    v_lshlrev_b32 v26, 3, v26
    """)
    for q in range(5):
        a(f"buffer_load_dwordx4 {vr(60+4*q,4)}, v54, s[8:11], s94 offen offset:{256*q}")
    if "preload" in hooks: hooks["preload"]()
    srd(a, 20, 54, 256)
    le = a.newlabel("K1_E0")
    a(f"""
    v_mov_b32 v55, 0
    s_or_b32 s66, s2, s43
    s_cmp_lg_u32 s66, 0
    s_cbranch_scc1 {le}
    s_memrealtime s[66:67]
    s_waitcnt lgkmcnt(0)
    s_or_b32 s66, s66, 1
    v_mov_b32 v52, s66
    s_mov_b64 exec, 1
    buffer_store_dword v52, v55, s[20:23], 0 offen sc1
    s_mov_b64 exec, -1
    """)
    a.label(le)
    srd(a, 24, 4, L*8, WS_STAT); srd(a, 28, 4, CSP_BYTES, WS_CSP)
    for r in range(32, 52): a(f"v_mov_b32 v{r}, 0")
    for r in range(128, 148): a(f"v_mov_b32 v{r}, 0")
    for r in range(56, 60): a(f"v_mov_b32 v{r}, 0x3f803f80")
    a(f"""
    s_lshl_b32 s92, s35, 3
    s_add_u32 s93, s92, s62
    s_lshl_b32 s93, s93, 1
    s_add_u32 s93, s93, s43
    s_mul_i32 s93, s93, 640
    s_lshl_b32 s92, s92, 1
    s_add_u32 s92, s92, s43
    s_mul_i32 s92, s92, 640
    v_lshlrev_b32 v19, 2, v1
    v_lshlrev_b32 v17, 3, v1
    """)
    stats_a()
    for s in range(10):
        a.stamp(2 + s)
        a("s_barrier")
        a.stamp(16 + s)
        if s == 0: get_epoch(); stats_b()
        if s <= 5 and "norc" not in EXP: remote_colsum(s)
        if ("side", s) in hooks: hooks[("side", s)]()
        if s == 8: gather_issue()
        if s >= 6: colsum(s, 32)
    pick(32)
    a.stamp(12)
    a(f"""
    s_mov_b64 s[32:33], 0xffff
    s_mul_i32 s65, s43, {NJ*64}
    v_add_u32 v22, s65, v19
    v_add_u32 v22, {LDS_CS}, v22
    s_lshl_b32 s65, s43, 9
    v_add_u32 v23, s65, v19
    v_add_u32 v23, {LDS_STA}, v23
    s_mov_b32 s67, 0
    v_mov_b32 v84, s95
    v_mov_b32 v85, 0
    v_mov_b32 v86, 0
    v_mov_b32 v87, 0
    v_mov_b32 v88, {LDS_SYNC}
    ds_write_b128 v88, v[84:87]
    ds_write_b32 v88, v85 offset:16
    s_waitcnt vmcnt(0)
    """)
    lp = a.newlabel("K1_GP"); lo = a.newlabel("K1_GO")
    a.label(lp)
    tags = [27, 29] + [61+2*r for r in range(6)]
    a(f"v_cmp_eq_u32 s[68:69], s95, v{tags[0]}")
    for t in tags[1:]: a(f"v_cmp_eq_u32 vcc, s95, v{t}\ns_and_b64 s[68:69], s[68:69], vcc")
    if glu:
        for r in range(6): a(f"v_cmp_eq_u32 vcc, s95, v{73+2*r}\ns_or_b64 vcc, vcc, 0xffffffffffff0000\ns_and_b64 s[68:69], s[68:69], vcc" if False else
                             f"v_cmp_eq_u32 vcc, s95, v{73+2*r}\ns_orn2_b64 vcc, vcc, s[32:33]\ns_and_b64 s[68:69], s[68:69], vcc")
    a(f"""
    s_cmp_eq_u64 s[68:69], -1
    s_cbranch_scc1 {lo}
    s_add_u32 s67, s67, 1
    s_cmp_ge_u32 s67, 100000
    s_cbranch_scc1 {lo}
    s_sleep 4
    """)
    gather_issue()
    a(f"s_waitcnt vmcnt(0)\ns_branch {lp}")
    a.label(lo)
    a("""
    v_lshlrev_b32 v27, 16, v26
    v_lshlrev_b32 v29, 16, v28
    v_and_b32 v26, 0xffff0000, v26
    v_and_b32 v28, 0xffff0000, v28
    v_rcp_f32 v27, v27
    v_rcp_f32 v29, v29
    ds_write_b32 v23, v26 offset:1024
    ds_write_b32 v23, v28 offset:1280
    ds_write_b32 v23, v27
    ds_write_b32 v23, v29 offset:256
    """)
    for r in range(6):
        a(f"v_add_f32 v24, v24, v{60+2*r}")
        if glu: a(f"v_add_f32 v25, v25, v{72+2*r}")
    a("ds_write_b32 v22, v24")
    if glu: a("s_mov_b64 exec, 0xffff\nds_write_b32 v22, v25 offset:256\ns_mov_b64 exec, -1")
    a.stamp(13)
    a("s_waitcnt lgkmcnt(0)\ns_barrier")
    a.stamp(14)

PFD = int(os.environ.get("PFD", "4"))
PF0 = int(os.environ.get("PF0", "2"))
def prefetch_setup(a, glu):
    if not PF: return {}
    KADV = 64*3456 if glu else 128
    p0, p1 = (56, 58) if glu else (48, 50)
    a(f"""
    s_cmp_eq_u32 s3, 0
    s_cselect_b32 s12, s{p0}, s{p1}
    s_cselect_b32 s13, s{p0+1}, s{p1+1}
    s_mov_b32 s14, {D*F*2 if glu else P*D*2}
    s_mov_b32 s15, 0x20000
    s_mov_b32 s81, {KADV}
    s_lshr_b32 s82, s61, 3
    s_lshl_b32 s82, s82, 4
    """)
    if glu:
        a(f"""
        s_mul_i32 s80, s82, 3456
        s_mul_i32 s82, s63, 160
        s_add_u32 s80, s80, s82
        v_mul_u32_u24 v14, 3456, v31
        v_bfe_u32 v15, v1, 4, 1
        v_mul_u32_u24 v15, 156, v15
        v_add_u32 v14, v14, v15
        s_mov_b32 s83, 32
        """)
    else:
        a(f"""
        s_lshl_b32 s80, s63, 6
        s_add_u32 s80, s80, s82
        s_mul_i32 s80, s80, 1280
        v_mul_u32_u24 v14, 1280, v31
        s_mov_b32 s83, 16
        """)
    a(f"""
    s_lshl_b32 s82, s62, 8
    s_and_b32 s84, s61, 7
    s_lshl_b32 s84, s84, 5
    s_add_u32 s82, s82, s84
    s_mul_i32 s82, s82, 1280
    v_mul_u32_u24 v15, 1280, v1
    s_cmp_eq_u32 s3, 2
    s_cselect_b32 s12, s8, s12
    s_cselect_b32 s13, s9, s13
    s_cselect_b32 s14, s10, s14
    s_cselect_b32 s80, s82, s80
    s_cselect_b32 s81, 128, s81
    s_cselect_b32 s83, 32, s83
    s_cselect_b64 vcc, -1, 0
    s_cmp_eq_u32 s3, 3
    s_cselect_b32 s83, 0, s83
    v_cndmask_b32 v14, v14, v15, vcc
    v_cmp_gt_u32 vcc, s83, v1
    v_mov_b32 v15, 0x40000000
    s_nop 0
    v_cndmask_b32 v14, v15, v14, vcc
    """)
    def touch():
        a("s_add_u32 s80, s80, s81\nbuffer_load_dword v16, v14, s[12:15], s80 offen")
    for _ in range(LT - 1): a("s_add_u32 s80, s80, s81")
    for _ in range(PFD - LT): touch()
    return {"touch": touch}

def consumer_flag(a):
    srd(a, 20, 4, FLG_BYTES, WS_FLG)
    a(f"""
    s_lshl_b32 s66, s62, 2
    s_add_u32 s66, s66, s3
    s_lshl_b32 s66, s66, 8
    s_lshl_b32 s67, s35, 2
    s_add_u32 s66, s66, s67
    v_mov_b32 v2, 0
    v_mov_b32 v3, s95
    v_mov_b32 v4, {LDS_SYNC}
    v_mov_b32 v5, 1
    s_mov_b64 exec, 1
    s_mov_b32 s47, 0
    s_mov_b32 s67, 0
    """)
    a.stamp(16)
    a("""
    s_waitcnt vmcnt(0)
    buffer_store_dword v3, v2, s[20:23], s66 offen sc1
    ds_add_u32 v4, v5 offset:12
    s_mov_b64 exec, -1
    """)
    a.stamp(17)
    a.label("K1_CW")
    a("""
    ds_read_b32 v6, v4 offset:12
    s_add_u32 s67, s67, 1
    s_waitcnt lgkmcnt(0)
    v_readfirstlane_b32 s66, v6
    s_and_b32 s66, s66, 15
    s_cmp_ge_u32 s66, 4
    s_cbranch_scc1 K1_P2
    s_cmp_ge_u32 s67, 1000000
    s_cbranch_scc1 K1_P2
    s_sleep 1
    s_branch K1_CW
    """)

def phase2(a):
    PA = 16
    def pacc(j, i): return PA + 4*(j*4 + i)
    HB = 96
    def hreg(n, i): return HB + 16*(n % NH) + 4*i
    def bH(n, i): return vr(hreg(n, i), 4)
    WV = HB + 16*NH; nwv = (192 - WV)//20
    assert 20*(NW - nwv) <= 60
    def wreg(n, j):
        b = n % NW
        return vr(WV + 20*b + 4*j, 4) if b < nwv else ar(20*(b - nwv) + 4*j, 4)
    NK = 12
    a.label("K1_P2")
    a.vm = []
    a(f"""
    s_and_b32 s46, s3, 3
    s_mov_b32 s50, s35
    s_bfe_u32 s49, s50, 0x10003
    s_lshl_b32 s49, s49, 2
    s_bfe_u32 s65, s50, 0x20001
    s_add_u32 s49, s49, s65
    s_lshr_b32 s48, s50, 4
    s_lshl_b32 s48, s48, 1
    s_and_b32 s65, s50, 1
    s_add_u32 s48, s48, s65
    s_lshl_b32 s51, s48, 6
    s_lshl_b32 s65, s62, 2
    s_add_u32 s48, s48, s65
    s_mul_i32 s52, s49, {5*NS2*1024}
    s_add_u32 s53, s52, {NS2*1024}
    s_add_u32 s54, s52, {2*NS2*1024}
    s_add_u32 s55, s52, {3*NS2*1024}
    s_add_u32 s56, s52, {4*NS2*1024}
    s_xor_b32 s65, s3, 2
    s_cmp_ge_u32 s3, 4
    s_cselect_b32 s65, s65, s3
    s_mul_i32 s36, s65, 20480
    s_movk_i32 s41, 4096
    s_cselect_b32 s40, s41, {(-81920) & 0xffffffff}
    s_cselect_b32 s41, 12288, s41
    s_mov_b32 s66, {76*1024}
    s_cselect_b32 s66, {40*1024}, s66
    s_lshl_b32 s65, s46, 10
    s_add_u32 s65, s65, s66
    v_lshlrev_b32 v2, 4, v1
    v_add_u32 v3, s65, v2
    v_mov_b32 v4, v3
    v_add_u32 v13, s36, v2
    v_and_b32 v5, 15, v1
    v_lshrrev_b32 v6, 4, v1
    v_mov_b32 v9, {LDS_SYNC}
    """)
    srd(a, 8, 4, HP_BYTES, WS_HP)
    srd(a, 12, 4, WP_BYTES, WS_WP)
    srd(a, 20, 4, FLG_BYTES, WS_FLG)
    for i in range(4):
        a(f"s_xor_b32 s65, s46, {i}\ns_lshl_b32 s66, s48, 2\ns_add_u32 s65, s65, s66\ns_mul_i32 s{32+i}, s65, {NS2*1024}")
    a(f"""
    s_lshl_b32 s65, s48, 6
    s_lshl_b32 s66, s46, 4
    s_add_u32 s65, s65, s66
    v_add_u32 v7, s65, v5
    v_lshlrev_b32 v12, 2, v6
    s_mul_i32 s66, s49, 80
    v_add_u32 v12, s66, v12
    v_mul_u32_u24 v7, 640, v7
    v_add_u32 v7, v7, v12
    v_lshlrev_b32 v8, 1, v7
    v_lshlrev_b32 v7, 2, v7
    v_lshlrev_b32 v12, 1, v12
    """)
    srd(a, 28, 100, L*D*4)
    def dma(n):
        for j in range(5):
            a(f"s_add_u32 m0, s36, {(n - NW)*5120 + j*1024}\ns_nop 0")
            a.vmem(f"buffer_load_dwordx4 v4, s[12:15], s{52+j} offen sc1 lds", ("W", n))
        a(f"v_add_u32 v4, {'s40' if n == 1 else 's41' if n == 8 else '4096'}, v4")
    def loadW(n, j):
        if NW <= n < NW + NL:
            a(f"ds_read_b128 {wreg(n, j)}, v13 offset:{(n - NW)*5120 + j*1024}")
            return
        a.vmem(f"buffer_load_dwordx4 {wreg(n, j)}, v4, s[12:15], s{52+j} offen sc1", ("W", n))
        if j == 4: a(f"v_add_u32 v4, {'s40' if n == 1 else 's41' if n == 8 else '4096'}, v4")
    def loadH(n):
        for i in range(4):
            a.vmem(f"buffer_load_dwordx4 {bH(n,i)}, v3, s[8:11], s{32+i} offen sc1", ("H", n))
        a(f"v_add_u32 v3, {'s40' if n == 1 else 's41' if n == 8 else '4096'}, v3")
    def wait_flags(tag, poller, off, mask, word):
        a(f"s_mov_b32 s67, 0\n{poller}\ns_cbranch_scc0 K1_P2SPIN{tag}")
        a.label(f"K1_P2POLL{tag}")
        a(f"""
        buffer_load_dword v6, v5, s[20:23], {off} offen sc1
        s_waitcnt vmcnt(0)
        v_cmp_eq_u32 vcc, s95, v6
        s_add_u32 s67, s67, 1
        {mask}
        s_cbranch_scc1 K1_P2SET{tag}
        s_cmp_ge_u32 s67, 100000
        s_cbranch_scc1 K1_P2SET{tag}
        s_sleep 1
        s_branch K1_P2POLL{tag}
        """)
        a.label(f"K1_P2SET{tag}")
        a(f"v_mov_b32 v6, 1\nds_write_b32 {word}, v6\ns_branch K1_P2GO{tag}".replace("@", ""))
        a.label(f"K1_P2SPIN{tag}")
        a(f"""
        ds_read_b32 v6, {word}
        s_add_u32 s67, s67, 1
        s_waitcnt lgkmcnt(0)
        v_readfirstlane_b32 s66, v6
        s_cmp_lg_u32 s66, 0
        s_cbranch_scc1 K1_P2GO{tag}
        s_cmp_ge_u32 s67, 1000000
        s_cbranch_scc1 K1_P2GO{tag}
        s_sleep 1
        s_branch K1_P2SPIN{tag}
        """)
        a.label(f"K1_P2GO{tag}")
    a("s_cmp_lt_u32 s3, 4\ns_cbranch_scc1 K1_P2W")
    EX = HB
    srd(a, 16, 6, XN_BYTES)
    srd(a, 24, 96, D*2)
    for jd in range(5):
        a(f"buffer_load_dwordx2 {vr(EX+2*jd,2)}, v8, s[16:19], 0 offen offset:{32*jd}")
        a(f"buffer_load_dwordx2 {vr(EX+10+2*jd,2)}, v12, s[24:27], 0 offen offset:{32*jd}")
    a(f"""
    v_bfe_u32 v14, v1, 1, 2
    v_lshlrev_b32 v14, 4, v14
    v_and_b32 v10, 1, v1
    v_lshl_add_u32 v14, v10, 1, v14
    v_bfe_u32 v10, v1, 3, 1
    v_add_u32 v14, v14, v10
    s_lshl_b32 s65, s46, 2
    v_add_u32 v14, s65, v14
    s_lshl_b32 s65, s46, 4
    v_add_u32 v10, s65, v5
    s_cmp_lt_u32 s50, 10
    s_cselect_b64 vcc, -1, 0
    v_cndmask_b32 v14, v10, v14, vcc
    v_add_u32 v14, s51, v14
    v_lshlrev_b32 v14, 2, v14
    v_add_u32 v14, {LDS_STA}, v14
    """)
    a.label("K1_P2BAR")
    a("""
    s_cmp_eq_u32 s47, 0
    s_cbranch_scc1 K1_P2E
    s_barrier
    s_sub_u32 s47, s47, 1
    s_branch K1_P2BAR
    """)
    a.label("K1_P2E")
    a(f"""
    ds_read_b32 v11, v14
    ds_read_b32 v10, v14 offset:1024
    ds_read_b32 v12, v9
    v_mov_b32 v14, 16
    s_waitcnt lgkmcnt(0)
    v_readfirstlane_b32 s95, v12
    s_mov_b64 exec, 1
    ds_add_u32 v9, v14 offset:12
    s_mov_b64 exec, -1
    """)
    a.label("K1_P2W")
    a(f"""
    v_lshlrev_b32 v5, 2, v1
    s_lshl_b32 s65, s49, 8
    s_add_u32 s65, s65, 8192
    v_add_u32 v14, 16, v9
    """)
    a.stamp(21)
    wait_flags("W", "s_cmp_eq_u32 s3, 4", "s65", "s_cmp_eq_u64 vcc, -1", "v14")
    a.stamp(22)
    for n in range(NW):
        for j in range(5): loadW(n, j)
    for n in range(NW, NW + NL): dma(n)
    for r in range(PA, PA + 80): a(f"v_mov_b32 v{r}, 0")
    a(f"s_cmp_lt_u32 s3, 4\ns_cbranch_scc1 K1_P2W2\ns_waitcnt vmcnt({5*(NW + NL)})")
    for jd in range(5):
        for h in range(2):
            x = EX+2*jd+h; ds = EX+10+2*jd+h; T = pacc(jd, 0) + 2*h
            a(f"""
            v_lshlrev_b32 v14, 16, v{x}
            v_and_b32 v15, 0xffff0000, v{x}
            v_sub_f32 v12, v14, v10
            v_sub_f32 v8, v15, v10
            v_cvt_pk_bf16_f32 v12, v12, v8
            v_and_b32 v8, 0xffff0000, v12
            v_lshlrev_b32 v12, 16, v12
            v_mul_f32 v12, v12, v11
            v_mul_f32 v8, v8, v11
            v_cvt_pk_bf16_f32 v12, v12, v8
            v_and_b32 v8, 0xffff0000, v12
            v_lshlrev_b32 v12, 16, v12
            v_lshlrev_b32 v5, 16, v{ds}
            v_and_b32 v6, 0xffff0000, v{ds}
            v_mul_f32 v12, v12, v5
            v_mul_f32 v8, v8, v6
            v_cvt_pk_bf16_f32 v12, v12, v8
            v_and_b32 v8, 0xffff0000, v12
            v_lshlrev_b32 v12, 16, v12
            v_add_f32 v{T}, v12, v14
            v_add_f32 v{T+1}, v8, v15
            """)
    a.label("K1_P2W2")
    a(f"""
    v_add_u32 v10, 4, v9
    v_add_u32 v11, 8, v9
    v_and_b32 v5, 31, v1
    v_lshlrev_b32 v5, 2, v5
    s_lshl_b32 s65, s48, 8
    """)
    a.stamp(26)
    wait_flags("H", "s_cmp_eq_u32 s3, 4", "s65", "s_or_b32 s66, vcc_lo, 0x3ff\ns_cmp_eq_u32 s66, -1", "v10")
    a.stamp(27)
    loadH(0); loadH(1)
    a("s_cmp_ge_u32 s3, 4\ns_cbranch_scc1 K1_P2GOS")
    wait_flags("S", "s_cmp_eq_u32 s3, 0", "s65", "s_and_b32 s66, vcc_lo, 0x3ff\ns_cmp_eq_u32 s66, 0x3ff", "v11")
    a.stamp(23)
    for n in range(2, NH): loadH(n)
    PRI = os.environ.get("PRI", "")
    for n in range(NK):
        if PRI and n == 0:
            lp = a.newlabel("K1_PR"); a(f"s_cmp_lt_u32 s3, 4\ns_cbranch_scc1 {lp}\ns_setprio 2"); a.label(lp)
        if PRI and n == int(PRI): a("s_setprio 0")
        a.vmwait([("H", n), ("W", n)], "lgkmcnt(0)" if NW <= n < NW + NL else "")
        if n in (1, 5, 9): a.stamp(18 + n//4)
        sk = None
        if n in (1, 11):
            sk = a.newlabel("K1_P2SK")
            a(f"s_cmp_eq_u32 s3, {3 if n == 1 else 7}\ns_cbranch_scc1 {sk}")
        if n >= 9:
            lo = a.newlabel("K1_P2O"); le = a.newlabel("K1_P2X")
            h0 = hreg(n, 0)
            a(f"s_cmp_lt_u32 s3, 4\ns_cbranch_scc1 {le}\ns_bitcmp1_b32 s3, 0\ns_cbranch_scc1 {lo}")
            for p in range(2):
                for e in range(2): a(f"v_swap_b32 v{h0+8*p+2+e}, v{h0+8*p+4+e}")
            a(f"s_branch {le}")
            a.label(lo)
            for p in range(2):
                for e in range(2): a(f"v_swap_b32 v{h0+8*p+e}, v{h0+8*p+6+e}")
            a.label(le)
            a("s_nop 1")
        for j in range(5):
            for i in range(4):
                a(f"v_mfma_f32_16x16x32_bf16 {vr(pacc(j,i),4)}, {wreg(n, j)}, {bH(n,i)}, {vr(pacc(j,i),4)}")
            if n + NW < NK and j >= 1 and sk is None: loadW(n + NW, j - 1)
        if sk:
            a.label(sk)
            if n + NW < NK:
                for j in range(4): loadW(n + NW, j)
        if n + NH < NK: loadH(n + NH)
        if n + NW < NK: loadW(n + NW, 4)
    a.label("K1_P2FIN")
    a.stamp(28)
    a(f"""
    v_add_u32 v10, s36, v2
    s_mov_b32 s67, 0
    """)
    a.label("K1_P2G")
    a(f"""
    ds_read_b32 v6, v9 offset:12
    s_add_u32 s67, s67, 1
    s_waitcnt vmcnt(0) lgkmcnt(0)
    v_readfirstlane_b32 s66, v6
    s_cmp_ge_u32 s66, 68
    s_cbranch_scc1 K1_P2GD
    s_cmp_ge_u32 s67, 1000000
    s_cbranch_scc1 K1_P2GD
    s_sleep 1
    s_branch K1_P2G
    """)
    a.label("K1_P2GD")
    for i in range(1, 4):
        for j in range(5):
            a(f"ds_write_b128 v10, {vr(pacc(j,i),4)} offset:{((i-1)*5 + j)*1024}")
    RA = HB
    for m in range(1, 8):
        a(f"""
        s_xor_b32 s65, s3, {m}
        s_xor_b32 s66, s65, 2
        s_cmp_ge_u32 s65, 4
        s_cselect_b32 s65, s66, s65
        s_mul_i32 s65, s65, 20480
        s_add_u32 s65, s65, {(((m & 3) + 3) & 3)*5120}
        v_add_u32 v{RA+m-1}, s65, v2
        """)
    a("s_cmp_lt_u32 s3, 4\ns_cbranch_scc1 K1_P2FB")
    for grp in range(2):
        own = [0, 1, 2] if grp == 0 else [3, 4]
        oth = [3, 4] if grp == 0 else [0, 1, 2]
        if grp: a.label("K1_P2FB")
        for j in oth: a(f"ds_write_b128 v10, {vr(pacc(j,0),4)} offset:{(15 + j)*1024}")
        a("s_waitcnt lgkmcnt(0)\ns_barrier")
        a.stamp(29)
        D0 = HB + 8
        for x, j in enumerate(own):
            for m in range(7):
                a(f"ds_read_b128 {vr(D0+28*x+4*m,4)}, v{RA+m} offset:{j*1024}")
        for x, j in enumerate(own):
            rem = 7*(len(own) - 1 - x)
            d = D0 + 28*x; T = pacc(j, 0)
            a(f"s_waitcnt lgkmcnt({min(15, rem + 3)})")
            for h in range(2):
                a(f"v_pk_add_f32 {vr(d+2*h,2)}, {vr(d+2*h,2)}, {vr(d+4+2*h,2)}")
                a(f"v_pk_add_f32 {vr(d+8+2*h,2)}, {vr(d+8+2*h,2)}, {vr(d+12+2*h,2)}")
            for h in range(2): a(f"v_pk_add_f32 {vr(T+2*h,2)}, {vr(T+2*h,2)}, {vr(d+2*h,2)}")
            for h in range(2): a(f"v_pk_add_f32 {vr(T+2*h,2)}, {vr(T+2*h,2)}, {vr(d+8+2*h,2)}")
            a(f"s_waitcnt lgkmcnt({min(15, rem)})")
            for h in range(2): a(f"v_pk_add_f32 {vr(d+16+2*h,2)}, {vr(d+16+2*h,2)}, {vr(d+20+2*h,2)}")
            for h in range(2): a(f"v_pk_add_f32 {vr(T+2*h,2)}, {vr(T+2*h,2)}, {vr(d+24+2*h,2)}")
            for h in range(2): a(f"v_pk_add_f32 {vr(T+2*h,2)}, {vr(T+2*h,2)}, {vr(d+16+2*h,2)}")
            a(f"buffer_store_dwordx4 {vr(T,4)}, v7, s[28:31], 0 offen offset:{64*j} sc1")
        a.stamp(30)
        a("s_endpgm")

XM = int(os.environ.get("XM", "0"))
XMAP = ["s_lshr_b32 s62, s60, 2\ns_and_b32 s63, s60, 3",
        "s_and_b32 s62, s60, 1\ns_lshr_b32 s63, s60, 1\ns_add_u32 s63, s63, 2\ns_and_b32 s63, s63, 3",
        "s_and_b32 s62, s60, 1\ns_lshr_b32 s63, s60, 1"][XM]
def gen_k1():
    a = Asm()
    a.raw(".p2align 8\n.type gemm1_kernel,@function\ngemm1_kernel:")
    a(f"""
    s_cmp_ge_u32 s2, 256
    s_cbranch_scc1 K1_END
    s_load_dwordx2 s[4:5], s[0:1], {KA['ws']}
    s_load_dwordx2 s[6:7], s[0:1], {KA['x']}
    s_load_dwordx4 s[44:47], s[0:1], {KA['lre']}
    s_load_dwordx4 s[48:51], s[0:1], {KA['bre']}
    s_load_dwordx2 s[52:53], s[0:1], {KA['ldt']}
    s_load_dwordx2 s[54:55], s[0:1], {KA['dbg']}
    s_load_dwordx4 s[56:59], s[0:1], {KA['wg']}
    s_load_dwordx2 s[96:97], s[0:1], {KA['dsk']}
    s_load_dwordx2 s[100:101], s[0:1], {KA['out']}
    v_and_b32 v1, 63, v0
    v_lshrrev_b32 v2, 6, v0
    s_nop 0
    v_readfirstlane_b32 s3, v2
    s_and_b32 s60, s2, 7
    s_lshr_b32 s61, s2, 3
    {XMAP}
    s_lshl_b32 s62, s62, 2
    s_lshr_b32 s64, s61, 3
    s_add_u32 s62, s62, s64
    s_lshl_b32 s63, s63, 3
    s_and_b32 s64, s61, 7
    s_add_u32 s63, s63, s64
    s_mov_b32 s35, s63
    s_waitcnt lgkmcnt(0)
    """)
    srd(a, 8, 6, XN_BYTES)
    a("""
    s_sub_u32 s65, s3, 4
    s_cmp_ge_u32 s65, 2
    s_cbranch_scc1 K1_NOTLOADER
    """)
    loader_code(a)
    a.label("K1_NOTLOADER")
    if os.environ.get("CPF", "1") == "1":
        a(f"""
        s_cmp_lg_u32 s3, 3
        s_cbranch_scc1 K1_NOCPF
        s_getpc_b64 s[66:67]
        K1_PCREF:
        s_sub_u32 s66, s66, K1_PCREF-gemm1_kernel
        s_subb_u32 s67, s67, 0
        s_lshl_b32 s65, s61, 11
        v_lshlrev_b32 v14, 7, v1
        v_add_u32 v14, s65, v14
        v_cmp_gt_u32 vcc, CODE_END-gemm1_kernel, v14
        s_and_b64 exec, vcc, 0xffff
        s_cbranch_execz K1_CPFSKIP
        global_load_dword v15, v14, s[66:67]
        K1_CPFSKIP:
        s_mov_b64 exec, -1
        K1_NOCPF:
        """)
    srd(a, 16, 4, HP_BYTES, WS_HP)
    srd(a, 76, 4, AGG_BYTES, WS_AGG)
    a(f"""
    v_lshrrev_b32 v30, 4, v1
    v_and_b32 v31, 15, v1
    v_lshrrev_b32 v10, 1, v31
    v_xor_b32 v10, v10, v30
    v_lshlrev_b32 v11, 7, v31
    v_lshl_add_u32 v10, v10, 4, v11
    v_bfe_u32 v14, v1, 2, 2
    v_bfe_u32 v15, v1, 4, 1
    v_lshl_add_u32 v14, v15, 2, v14
    v_bfe_u32 v15, v1, 5, 1
    v_lshl_add_u32 v14, v15, 4, v14
    v_mul_u32_u24 v14, 160, v14
    v_and_b32 v15, 3, v1
    v_lshl_add_u32 v11, v15, 3, v14
    s_cmp_ge_u32 s3, 4
    s_cbranch_scc1 K1_HELPER
    """)
    a(f"""
    s_lshl_b32 s65, s3, 13
    v_add_u32 v2, s65, v10
    v_xor_b32 v3, 64, v2
    v_add_u32 v4, 32768, v2
    v_add_u32 v5, 32768, v3
    v_add_u32 v6, 65536, v2
    v_add_u32 v7, 65536, v3
    s_lshl_b32 s64, s62, 4
    s_lshl_b32 s65, s3, 2
    s_add_u32 s64, s64, s65
    s_mul_i32 s64, s64, {NS2*1024}
    v_lshlrev_b32 v12, 4, v1
    s_cmp_lt_u32 s63, 10
    s_cbranch_scc1 K1_SSM
    """)
    a(f"""
    s_sub_u32 s63, s63, 10
    v_add_u32 v8, {WBASE}, v11
    s_lshr_b32 s65, s63, 1
    s_and_b32 s66, s63, 1
    s_lshl_b32 s67, s65, 2
    s_lshl_b32 s68, s66, 1
    s_add_u32 s67, s67, s68
    s_add_u32 s67, s67, 40
    s_lshl_b32 s67, s67, 10
    s_add_u32 s70, s67, s64
    s_add_u32 s71, s70, 1024
    s_cmp_eq_u32 s63, 21
    s_cselect_b32 s71, 0x40000000, s71
    s_add_u32 s67, s65, 84
    s_lshl_b32 s67, s67, 10
    s_mul_i32 s68, s66, {NS2*1024}
    s_add_u32 s67, s67, s68
    s_add_u32 s72, s67, s64
    """)
    consumer_loop(a, True, prefetch_setup(a, True))
    a(f"""
    s_lshl_b32 s65, s3, 8
    v_lshlrev_b32 v2, 2, v31
    v_add_u32 v2, s65, v2
    v_add_u32 v2, {LDS_STA}, v2
    v_lshlrev_b32 v3, 4, v30
    v_add_u32 v3, {LDS_CS}, v3
    """)
    for i in range(4):
        a(f"ds_read_b32 v{4+i}, v2 offset:{64*i}")
        a(f"ds_read_b32 v{8+i}, v2 offset:{1024+64*i}")
    a(f"v_mov_b32 v15, {LDS_SYNC}\nds_read_b32 v14, v15")
    a("s_cmp_eq_u32 s66, 1\ns_waitcnt lgkmcnt(0)\nv_readfirstlane_b32 s95, v14")
    for i in range(4): a(f"v_mul_f32 v{4+i}, v{4+i}, v{4+i}")
    a("s_cbranch_scc1 K1_GLU_ODD")
    for odd in range(2):
        if odd: a.label("K1_GLU_ODD")
        groups = [(4,), (0, 1), (2, 3)] if not odd else [(0,), (1, 2), (3, 4)]
        k = 0
        for gi, grp in enumerate(groups):
            for x, j in enumerate(grp):
                a(f"ds_read_b128 {vr(14+8*x,4)}, v3 offset:{64*j}")
                a(f"ds_read_b128 {vr(18+8*x,4)}, v3 offset:{320+64*j}")
            a("s_waitcnt lgkmcnt(0)")
            for i in range(4):
                mi = 8 + (i & ~1); msel = i & 1
                ai = 4 + (i & ~1)
                sel = f"op_sel:[0,{msel},0] op_sel_hi:[1,{msel},1] neg_lo:[0,1,0] neg_hi:[0,1,0]"
                sel2 = f"op_sel:[0,{msel}] op_sel_hi:[1,{msel}]"
                for x, j in enumerate(grp):
                    G = acc(i, j); U = acc(i, 5+j)
                    for h in range(2):
                        a(f"v_pk_fma_f32 {vr(G+2*h,2)}, {vr(14+8*x+2*h,2)}, {vr(mi,2)}, {vr(G+2*h,2)} {sel}")
                        a(f"v_pk_fma_f32 {vr(U+2*h,2)}, {vr(18+8*x+2*h,2)}, {vr(mi,2)}, {vr(U+2*h,2)} {sel}")
                    for h in range(2):
                        a(f"v_pk_mul_f32 {vr(G+2*h,2)}, {vr(G+2*h,2)}, {vr(U+2*h,2)}")
                    for h in range(2):
                        a(f"v_pk_mul_f32 {vr(G+2*h,2)}, {vr(G+2*h,2)}, {vr(ai,2)} {sel2}")
                if gi == 0:
                    T = acc(i & ~1, 5+grp[0]); G = acc(i, grp[0]); o = 2*(i & 1)
                    a(f"v_cvt_pk_bf16_f32 v{T+o}, v{G}, v{G+1}")
                    a(f"v_cvt_pk_bf16_f32 v{T+o+1}, v{G+2}, v{G+3}")
                    if i & 1:
                        a(f"s_add_u32 s75, s72, {(i-1)*NS2*1024}")
                        a(f"buffer_store_dwordx4 {vr(T,4)}, v12, s[16:19], s75 offen{ST}")
                    continue
                T = acc(i, 5+grp[0])
                for x, j in enumerate(grp):
                    G = acc(i, j)
                    a(f"v_cvt_pk_bf16_f32 v{T+2*x}, v{G}, v{G+1}")
                    a(f"v_cvt_pk_bf16_f32 v{T+2*x+1}, v{G+2}, v{G+3}")
                a(f"s_add_u32 s75, s{69+gi}, {i*NS2*1024}")
                a(f"buffer_store_dwordx4 {vr(T,4)}, v12, s[16:19], s75 offen{ST}")
        if odd == 0: a("s_branch K1_CFLAG")
    a.label("K1_CFLAG")
    consumer_flag(a)
    a.label("K1_SSM")
    a.lg = []
    a(f"""
    v_add_u32 v8, {WBASE}, v10
    v_xor_b32 v9, 64, v8
    s_lshl_b32 s65, s63, 12
    s_add_u32 s64, s64, s65
    """)
    consumer_loop(a, False, prefetch_setup(a, False))
    LAM = 14
    a(f"""
    v_lshlrev_b32 v13, 4, v31
    v_add_u32 v13, {LDS_LAM}, v13
    s_lshl_b32 s65, s3, 8
    v_lshlrev_b32 v2, 4, v30
    v_add_u32 v2, s65, v2
    v_add_u32 v2, {LDS_STA}, v2
    v_lshlrev_b32 v3, 2, v31
    v_add_u32 v3, {LDS_CS}, v3
    """)
    for i in range(4):
        a(f"ds_read_b128 {vr(160+4*i,4)}, v2 offset:{64*i}")
        a(f"ds_read_b128 {vr(176+4*i,4)}, v2 offset:{1024+64*i}")
    for jj in range(8):
        a(f"ds_read_b32 v{4+jj}, v3 offset:{64*jj}")
    a(f"v_mov_b32 v15, {LDS_SYNC}\nds_read_b32 v14, v15")
    a("s_waitcnt lgkmcnt(0)\nv_readfirstlane_b32 s95, v14")
    for j in range(4):
        a(f"ds_read_b128 {vr(LAM+4*j,4)}, v13 offset:{256*j}")
    for j in range(4):
        for jj in (j, 4+j):
            cs = 4 + (jj & ~1); sl = jj & 1
            for i in range(4):
                A = acc(i, jj)
                for h in range(2):
                    a(f"v_pk_fma_f32 {vr(A+2*h,2)}, {vr(176+4*i+2*h,2)}, {vr(cs,2)}, {vr(A+2*h,2)} op_sel:[0,{sl},0] op_sel_hi:[1,{sl},1] neg_lo:[0,1,0] neg_hi:[0,1,0]")
            for i in range(4):
                A = acc(i, jj)
                for h in range(2):
                    a(f"v_pk_mul_f32 {vr(A+2*h,2)}, {vr(A+2*h,2)}, {vr(160+4*i+2*h,2)}")
    a(f"""
    s_lshl_b32 s65, s3, 2
    v_add_u32 v10, s65, v30
    v_lshlrev_b32 v10, 9, v10
    v_lshl_add_u32 v10, v31, 3, v10
    v_add_u32 v10, {LDS_E16}, v10
    s_waitcnt lgkmcnt(0)
    """)
    def BR(j, sg): return acc(sg >> 1, j) + 2*(sg & 1)
    def BI(j, sg): return acc(sg >> 1, 4+j) + 2*(sg & 1)
    E = 160
    def ER(q, j): return E + 16*q + 4*j
    def EI(q, j): return E + 16*q + 4*j + 2
    def step(dR, dI, pR, pI, bR, bI, lam):
        return [
          f"v_pk_fma_f32 {vr(dR,2)}, {vr(lam,2)}, {vr(pR,2)}, {vr(bR,2)} op_sel_hi:[0,1,1]",
          f"v_pk_fma_f32 {vr(dI,2)}, {vr(lam,2)}, {vr(pI,2)}, {vr(bI,2)} op_sel_hi:[0,1,1]",
          f"v_pk_fma_f32 {vr(dR,2)}, {vr(lam,2)}, {vr(pI,2)}, {vr(dR,2)} op_sel:[1,0,0] op_sel_hi:[1,1,1] neg_lo:[1,0,0] neg_hi:[1,0,0]",
          f"v_pk_fma_f32 {vr(dI,2)}, {vr(lam,2)}, {vr(pR,2)}, {vr(dI,2)} op_sel:[1,0,0] op_sel_hi:[1,1,1]"]
    for sg in range(1, 8):
        q = sg & 1
        cols = []
        for j in range(4):
            pR, pI = (BR(j, 0), BI(j, 0)) if sg == 1 else (ER(q ^ 1, j), EI(q ^ 1, j))
            cols.append(step(ER(q, j), EI(q, j), pR, pI, BR(j, sg), BI(j, sg), LAM+4*j))
        for k in range(4):
            for j in range(4): a(cols[j][k])
    for j in range(4):
        c = ER(0, j); r = ER(1, j); im = EI(1, j); l8 = LAM+4*j+2
        a(f"""
        v_fma_f32 v{c}, v{l8}, v{r}, v{r+1}
        v_fma_f32 v{c+1}, v{l8}, v{im}, v{im+1}
        v_fma_f32 v{c}, -v{l8+1}, v{im}, v{c}
        v_fma_f32 v{c+1}, v{l8+1}, v{r}, v{c+1}
        ds_write_b64 v10, {vr(c,2)} offset:{128*j}
        """)
    a(f"""
    s_mul_i32 s65, s3, 18432
    v_mul_u32_u24 v2, 144, v31
    v_lshl_add_u32 v2, v30, 5, v2
    v_add_u32 v2, s65, v2
    v_bfe_u32 v3, v1, 2, 2
    v_lshl_add_u32 v3, v30, 3, v3
    v_mul_u32_u24 v3, 144, v3
    v_and_b32 v4, 3, v1
    v_lshl_add_u32 v3, v4, 3, v3
    v_add_u32 v3, s65, v3
    s_waitcnt lgkmcnt(0)
    s_barrier
    """)
    a.stamp(13)
    a(f"v_lshlrev_b32 v13, 3, v31\nv_add_u32 v13, {LDS_UV}, v13")
    for j in range(4):
        a(f"ds_read_b64 {vr([4,6,8,170][j],2)}, v13 offset:{128*j}")
    a("s_waitcnt lgkmcnt(0)")
    for j in range(4):
        U = [4,6,8,170][j]
        allp = [(acc(i, j)+2*h, acc(i, 4+j)+2*h) for i in range(4) for h in range(2)] + [(ER(1, j), EI(1, j))]
        for prs in (allp[:5], allp[5:]):
            for k, (R, I) in enumerate(prs):
                a(f"v_pk_mul_f32 {vr(160+2*k,2)}, {vr(R,2)}, {vr(U,2)} op_sel:[0,1] op_sel_hi:[1,1]")
            for k, (R, I) in enumerate(prs):
                a(f"v_pk_mul_f32 {vr(R,2)}, {vr(R,2)}, {vr(U,2)} op_sel:[0,0] op_sel_hi:[1,0]")
            for k, (R, I) in enumerate(prs):
                a(f"v_pk_fma_f32 {vr(R,2)}, {vr(I,2)}, {vr(U,2)}, {vr(R,2)} op_sel:[0,1,0] op_sel_hi:[1,1,1] neg_lo:[0,1,0] neg_hi:[0,1,0]")
            for k, (R, I) in enumerate(prs):
                a(f"v_pk_fma_f32 {vr(I,2)}, {vr(I,2)}, {vr(U,2)}, {vr(160+2*k,2)} op_sel:[0,0,0] op_sel_hi:[1,0,1]")
    a.stamp(15)
    a("s_barrier")
    a.stamp(14)
    for j in range(4):
        h = ER(0, j)
        a(f"ds_read_b32 v{h}, v10 offset:{LDS_S-LDS_E16+128*j}")
        a(f"ds_read_b32 v{h+2}, v10 offset:{LDS_S-LDS_E16+128*j+4}")
    a("s_waitcnt lgkmcnt(0)")
    for j in range(4):
        h = ER(0, j); l8 = LAM+4*j+2
        a(f"""
        v_fma_f32 v{h+1}, v{l8}, v{h}, v{ER(1,j)}
        v_fma_f32 v{h+3}, v{l8}, v{h+2}, v{EI(1,j)}
        v_fma_f32 v{h+1}, -v{l8+1}, v{h+2}, v{h+1}
        v_fma_f32 v{h+3}, v{l8+1}, v{h}, v{h+3}
        """)
    for sg in range(8):
        cols = []
        for j in range(4):
            pR, pI = (ER(0, j), EI(0, j)) if sg == 0 else (BR(j, sg-1), BI(j, sg-1))
            cols.append(step(BR(j, sg), BI(j, sg), pR, pI, BR(j, sg), BI(j, sg), LAM+4*j))
        for k in range(4):
            for j in range(4): a(cols[j][k])
    for jj in range(8):
        im, j = divmod(jj, 4)
        t = 160 + 8*(jj % 4)
        for i in range(4):
            A = acc(i, jj)
            ng = "-" if im else ""
            a(f"v_cvt_pk_bf16_f32 v{t+i}, {ng}v{A}, {ng}v{A+2}")
            a(f"v_cvt_pk_bf16_f32 v{t+4+i}, {ng}v{A+1}, {ng}v{A+3}")
        o = (32*(2*im + (j >> 1)) + 16*(j & 1))*144
        a(f"ds_write_b128 v2, {vr(t,4)} offset:{o}")
        a(f"ds_write_b128 v2, {vr(t+4,4)} offset:{o+16}")
    a("s_waitcnt lgkmcnt(0)")
    for i in range(4):
        for j in range(4):
            d = ACC + 4*(i*4+j)
            for h in range(2):
                a(f"ds_read_b64_tr_b16 {vr(d+2*h,2)}, v3 offset:{(32*j+4*h)*144 + 32*i}")
    k = 0
    for i in range(4):
        for j in range(4):
            d = ACC + 4*(i*4+j)
            k += 1
            a(f"s_waitcnt lgkmcnt({min(15, 32-2*k)})")
            a(f"s_add_u32 s65, s64, {(i*NS2 + j)*1024}")
            a(f"buffer_store_dwordx4 {vr(d,4)}, v12, s[16:19], s65 offen{ST}")
    a("s_branch K1_CFLAG")
    a.label("K1_HELPER")
    a(f"""
    s_and_b32 s43, s3, 1
    s_lshl_b32 s64, s62, 8
    s_lshl_b32 s65, s43, 7
    s_add_u32 s64, s64, s65
    v_lshrrev_b32 v20, 3, v1
    v_and_b32 v21, 7, v1
    """)
    a(f"""
    s_cmp_lt_u32 s63, 10
    s_cbranch_scc1 K1_HSSM
    s_mul_i32 s66, s43, 10240
    s_add_u32 s66, s66, {WBASE}
    v_add_u32 v18, s66, v11
    v_add_u32 v53, s64, v1
    v_lshlrev_b32 v53, 3, v53
    """)
    helper_loop(a, True, {})
    a("s_mov_b32 s47, 0\ns_branch K1_P2")
    a.label("K1_HSSM")
    LR = 85
    def preload():
        srd(a, 20, 44, P*2); srd(a, 24, 46, P*2); srd(a, 28, 52, P*2)
        a(f"""
        s_lshl_b32 s65, s63, 7
        v_lshlrev_b32 v22, 1, v1
        v_add_u32 v22, s65, v22
        s_lshl_b32 s90, s63, 13
        s_lshl_b32 s91, s62, 10
        s_add_u32 s91, s91, s90
        buffer_load_ushort v{LR}, v22, s[20:23], 0 offen
        buffer_load_ushort v{LR+1}, v22, s[24:27], 0 offen
        buffer_load_ushort v{LR+2}, v22, s[28:31], 0 offen
        """)
    LM = 8; L16 = 188; L256 = 190
    def csq(d, s, t=22):
        a(f"""
        v_mul_f32 v{t}, v{s+1}, v{s+1}
        v_mul_f32 v{t+1}, v{s}, v{s+1}
        v_fma_f32 v{d}, v{s}, v{s}, -v{t}
        v_add_f32 v{d+1}, v{t+1}, v{t+1}
        """)
    def pre():
        lam_calc(a, LR, LR+1, LR+2, 148, LM, LM+1, coef=(6, 7))
        a(f"""
        v_add_f32 v6, v6, v6
        v_add_f32 v7, v7, v7
        v_lshlrev_b32 v22, 3, v1
        v_add_u32 v22, {LDS_UV}, v22
        ds_write_b64 v22, v[6:7]
        """)
    def pre2():
        csq(LM+2, LM); csq(LM+2, LM+2); csq(LM+2, LM+2)
        csq(L16, LM+2)
        csq(L256, L16); csq(L256, L256); csq(L256, L256); csq(L256, L256)
        a(f"""
        v_lshlrev_b32 v22, 4, v1
        v_add_u32 v23, {LDS_LAM}, v22
        ds_write_b128 v23, {vr(LM,4)}
        s_waitcnt lgkmcnt(0)
        """)
    a(f"""
    s_mul_i32 s67, s43, 10240
    s_add_u32 s67, s67, {WBASE}
    v_add_u32 v18, s67, v10
    v_xor_b32 v16, 64, v18
    v_bfe_u32 v53, v1, 2, 2
    v_lshlrev_b32 v53, 4, v53
    v_and_b32 v22, 1, v1
    v_lshl_add_u32 v53, v22, 3, v53
    v_bfe_u32 v22, v1, 1, 1
    v_add_u32 v53, v53, v22
    v_lshl_add_u32 v53, v30, 1, v53
    v_add_u32 v53, s64, v53
    v_lshlrev_b32 v53, 3, v53
    """)
    helper_loop(a, False, {"preload": preload, ("side", 1): pre, ("side", 4): pre2})
    a("s_mov_b32 s47, 2\ns_cmp_lg_u32 s43, 0\ns_cbranch_scc1 K1_P2")
    a(f"""
    v_lshlrev_b32 v22, 4, v1
    v_lshlrev_b32 v23, 3, v1
    v_add_u32 v23, {LDS_E16}, v23
    v_add_u32 v24, 4096, v22
    s_barrier
    """)
    EV = 32
    def ev(R): return EV + 2*R
    for R in range(16):
        a(f"ds_read_b64 {vr(ev(R),2)}, v23 offset:{512*R}")
    def cfma(d, lam, s, add):
        a(f"""
        v_fma_f32 v{d}, v{lam}, v{s}, v{add}
        v_fma_f32 v{d+1}, v{lam}, v{s+1}, v{add+1}
        v_fma_f32 v{d}, -v{lam+1}, v{s+1}, v{d}
        v_fma_f32 v{d+1}, v{lam+1}, v{s}, v{d+1}
        """)
    A0, A1 = 96, 100
    a(f"v_mov_b32 v{A0+2}, s95\nv_mov_b32 v{A0+3}, 0")
    a("s_waitcnt lgkmcnt(0)")
    cur = ev(0)
    for R in range(1, 16):
        d = A0 if (R & 1) else A1
        cfma(d, L16, cur, ev(R)); cur = d
    assert cur == A0
    a(f"""
    buffer_store_dwordx4 {vr(A0,4)}, v22, s[76:79], s91 offen sc1
    s_mov_b32 s67, 0
    s_cmp_eq_u32 s62, 0
    s_cbranch_scc1 K1_POLLOK
    """)
    PV = 64
    a.label("K1_POLL")
    for rb in range(7):
        a(f"buffer_load_dwordx4 {vr(PV+4*rb,4)}, v{22 if rb < 4 else 24}, s[76:79], s90 offen offset:{1024*(rb%4)} sc1")
    a("s_waitcnt vmcnt(0)\ns_mov_b64 s[68:69], -1")
    lab = a.newlabel("K1_CHK")
    for rb in range(7):
        a(f"""
        s_cmp_le_u32 s62, {rb}
        s_cbranch_scc1 {lab}
        v_cmp_eq_u32 vcc, s95, v{PV+4*rb+2}
        s_and_b64 s[68:69], s[68:69], vcc
        """)
    a.label(lab)
    a(f"""
    s_cmp_eq_u64 s[68:69], -1
    s_cbranch_scc1 K1_POLLOK
    s_add_u32 s67, s67, 1
    s_cmp_lt_u32 s67, 100000
    s_sleep 1
    s_cbranch_scc1 K1_POLL
    """)
    a.label("K1_POLLOK")
    a("v_mov_b32 v104, 0\nv_mov_b32 v105, 0")
    lab = a.newlabel("K1_CAR")
    for rb in range(7):
        a(f"s_cmp_le_u32 s62, {rb}\ns_cbranch_scc1 {lab}")
        cfma(106, L256, 104, PV+4*rb)
        a("v_mov_b32 v104, v106\nv_mov_b32 v105, v107")
    a.label(lab)
    cur = 104
    for R in range(16):
        t = 108 + 2*(R & 1)
        a(f"""
        v_mul_f32 v{t}, v6, v{cur}
        v_mul_f32 v{t+1}, v6, v{cur+1}
        v_fma_f32 v{t}, -v7, v{cur+1}, v{t}
        v_fma_f32 v{t+1}, v7, v{cur}, v{t+1}
        """)
        if R < 15:
            d = A0 if (R & 1) else A1
            cfma(d, L16, cur, ev(R)); cur = d
        a(f"ds_write_b64 v23, {vr(t,2)} offset:{LDS_S-LDS_E16+512*R}")
    a("s_waitcnt lgkmcnt(0)\ns_barrier\ns_mov_b32 s47, 0")
    phase2(a)
    a.label("K1_END")
    a("s_endpgm")
    return a.text(), kd("gemm1_kernel", 192+60, 102, 192), f"; @launch kernel=gemm1_kernel grid=(256,1,1) block=(512,1,1) lds={LDS_TOTAL}"
```

```python
from gen_common import *
import os
EXP = os.environ.get('EXP', '')
PF = os.environ.get('PF', '1') == '1'

ACC = 32
XBASE = 0
WBASE = 98304
SPARE = 159744
LDS_TOTAL = 163840
LDS_E16 = 73728
LDS_S = LDS_E16
LDS_LAM = SPARE
LDS_STA = SPARE + 1024
LDS_STM = SPARE + 2048
LDS_CS = SPARE + 3072
LDS_UV = SPARE + 3584
LDS_SYNC = 158720
WS_FLG = 0x1760000
FLG_BYTES = 16384
M2 = int(os.environ.get("M2", "0"))
PSL = int(os.environ.get("PSL", "8")); PSH = int(os.environ.get("PSH", "4")); WS6 = int(os.environ.get("WS6", "0"))
NH = int(os.environ.get("NH", "3")); NW = int(os.environ.get("NW", "5")); NL = int(os.environ.get("NL", "3"))
RPS = int(os.environ.get("RPS", "6"))
TAG = 0x5ca1ab1e
DBG_RB = 0
DBG_CT = 8
ST = " sc1"
WRN = 6

def acc(i, jj): return ACC + 4*(jj*4 + i)
def XF(par, i): return 16*par + 4*i
def WR(phi): return 32 + 4*(phi % WRN)

def consumer_loop(a, glu, hooks={}):
    NJ = 5 if glu else 4
    NJ2 = 2*NJ
    SLOT = 20480
    P3 = 6*NJ2
    def wread(phi, last=False):
        n, jj = divmod(phi, NJ2)
        if last and n >= 2: return
        s, ks = (n >> 1) % 3, n & 1
        mat, j = divmod(jj, NJ)
        off = s*SLOT
        if glu:
            for h in range(2):
                o = off + mat*10240 + (8*h + 32*ks)*160 + 32*j
                a.lds(f"ds_read_b64_tr_b16 {ar(WR(phi) + 2*h, 2)}, v8 offset:{o}", ("W", phi % P3))
        else:
            a.lds(f"ds_read_b128 {ar(WR(phi), 4)}, v{8+ks} offset:{off + mat*10240 + j*2048 + (1024 if j >= 2 else 0)}", ("W", phi % P3))
    def xread(n, i, last=False):
        if last and n >= 2: return
        s, ks = (n >> 1) % 3, n & 1
        a.lds(f"ds_read_b128 {ar(XF(n & 1, i), 4)}, v{2 + s*2 + ks} offset:{i*2048}", ("X", n % 6))
    BJ = NJ2 - 3
    def kstep(n, last=False):
        ks = n & 1
        for jj in range(NJ2):
            phi = n*NJ2 + jj
            if ks == 1 and jj == BJ and not last:
                a.lgwait_all()
                a("s_mul_i32 s86, s87, 3") if os.environ.get("CST") else None
                a.dstamp(17 + (n >> 1), "s86") if os.environ.get("CST") else None
                a("s_barrier")
                if "touch" in hooks:
                    lt = a.newlabel("K1_CT")
                    a(f"s_cmp_ge_u32 s87, {(9 - PFD - (n >> 1) - 1)//3 + 1}\ns_cbranch_scc1 {lt}")
                    hooks["touch"]()
                    a.label(lt)
            a.lgwait([("W", phi % P3), ("X", n % 6)])
            todo = []
            if ks == 0:
                todo.append(("w", phi + 4))
                if 2 <= jj < 6: todo.append(("x", n + 1, jj - 2))
            else:
                if jj + 4 < NJ2: todo.append(("w", phi + 4))
                elif jj == BJ: todo += [("w", phi + 3), ("x", n+1, 0), ("w", phi + 4), ("x", n+1, 1)]
                elif jj == BJ + 1: todo += [("w", phi + 4), ("x", n+1, 2), ("x", n+1, 3)]
                elif jj == BJ + 2: todo.append(("w", phi + 4))
            for i in range(4):
                c = vr(acc(i, jj), 4)
                xa = ar(XF(n & 1, i), 4); wa = ar(WR(phi), 4)
                if glu: a(f"v_mfma_f32_16x16x32_bf16 {c}, {wa}, {xa}, {c}")
                else:   a(f"v_mfma_f32_16x16x32_bf16 {c}, {xa}, {wa}, {c}")
                if todo:
                    t = todo.pop(0)
                    if t[0] == "w": wread(t[1], last)
                    else: xread(t[1], t[2], last)
            assert not todo
    a.stamp(1)
    for r in range(ACC, ACC + 16*NJ2): a(f"v_mov_b32 v{r}, 0")
    a("s_mov_b32 s87, 0")
    a("s_barrier")
    a.stamp(2); a.lines.append("  ;@CSTAMP 3")
    if "touch" in hooks: hooks["touch"]()
    wread(0); xread(0, 0); wread(1); xread(0, 1); wread(2); xread(0, 2); xread(0, 3); wread(3)
    entry = list(a.lg)
    lab = a.newlabel("K1_CL")
    a.label(lab)
    for n in range(6): kstep(n)
    assert a.lg == entry, (a.lg, entry)
    a(f"s_add_u32 s87, s87, 1\ns_cmp_lt_u32 s87, 3\ns_cbranch_scc1 {lab}")
    a.stamp(11); a.lines.append("  ;@CSTAMP 4")
    kstep(0, True); kstep(1, True)
    a("s_waitcnt vmcnt(0)")
    a.stamp(12)
    if os.environ.get("CPRI", "1") == "1": a("s_setprio 3")
    a("s_barrier")

LT = int(os.environ.get("LT", "3"))
def loader_code(a):
    a(f"""
    s_and_b32 s43, s3, 1
    v_and_b32 v31, 15, v1
    s_lshr_b32 s65, s61, 3
    s_lshl_b32 s65, s65, 4
    s_mov_b32 s15, 0x20000
    s_cmp_lt_u32 s63, 10
    s_cselect_b64 vcc, -1, 0
    s_cbranch_scc1 K1_LT_SSM
    s_sub_u32 s63, s63, 10
    s_cmp_eq_u32 s43, 0
    s_cselect_b32 s12, s56, s58
    s_cselect_b32 s13, s57, s59
    s_mov_b32 s14, {D*F*2}
    s_mul_i32 s40, s63, 160
    s_mov_b32 s33, {64*3456}
    s_mul_i32 s65, s65, 3456
    v_mul_u32_u24 v22, 3456, v31
    v_bfe_u32 v23, v1, 4, 1
    v_mul_u32_u24 v23, 156, v23
    v_add_u32 v22, v22, v23
    s_mov_b32 exec_lo, -1
    s_branch K1_LT_GO
    """)
    a.label("K1_LT_SSM")
    a(f"""
    s_cmp_eq_u32 s43, 0
    s_cselect_b32 s12, s48, s50
    s_cselect_b32 s13, s49, s51
    s_mov_b32 s14, {P*D*2}
    s_mul_i32 s40, s63, {64*1280}
    s_mov_b32 s33, 128
    s_mul_i32 s65, s65, 1280
    v_mul_u32_u24 v22, 1280, v31
    s_mov_b32 exec_lo, 0xffff
    """)
    a.label("K1_LT_GO")
    a(f"""
    s_mov_b32 exec_hi, 0
    s_add_u32 s65, s65, s40
    s_lshl_b32 s66, s62, 8
    s_and_b32 s67, s61, 7
    s_lshl_b32 s67, s67, 5
    s_add_u32 s66, s66, s67
    s_lshl_b32 s67, s43, 4
    s_add_u32 s66, s66, s67
    s_mul_i32 s66, s66, 1280
    v_mul_u32_u24 v23, 1280, v31
    """)
    a.stamp(12)
    for t in range(LT):
        a(f"buffer_load_dword v{26+t}, v22, s[12:15], s65 offen\nbuffer_load_dword v{40+t}, v23, s[8:11], s66 offen offset:{128*t}\ns_add_u32 s65, s65, s33")
    a(f"""
    s_mov_b64 exec, -1
    s_lshl_b32 s64, s62, 8
    s_lshl_b32 s65, s43, 7
    s_add_u32 s64, s64, s65
    s_mul_i32 s20, s64, 1280
    s_lshl_b32 s41, s43, 14
    v_lshrrev_b32 v20, 3, v1
    v_and_b32 v21, 7, v1
    s_movk_i32 s66, {16*1280}
    s_movk_i32 s67, {8*1280}
    s_cmp_lg_u64 vcc, 0
    s_cselect_b32 s66, {2*1280}, s66
    v_lshrrev_b32 v23, 4, v1
    v_xor_b32 v23, v23, v21
    v_bfe_u32 v24, v1, 5, 1
    v_lshlrev_b32 v24, 4, v24
    v_bfe_u32 v25, v1, 3, 1
    v_lshl_add_u32 v24, v25, 3, v24
    v_bfe_u32 v25, v1, 4, 1
    v_add_u32 v24, v24, v25
    v_cndmask_b32 v24, v20, v24, vcc
    v_mul_u32_u24 v24, 1280, v24
    v_lshl_add_u32 v4, v23, 4, v24
    s_cselect_b32 s67, {32*1280}, s67
    v_xor_b32 v5, 64, v4
    v_add_u32 v5, s67, v5
    s_add_u32 s21, s20, s66
    s_add_u32 s22, s21, s66
    s_add_u32 s23, s22, s66
    s_add_u32 s24, s20, {64*1280}
    s_add_u32 s25, s21, {64*1280}
    s_add_u32 s26, s22, {64*1280}
    s_add_u32 s27, s23, {64*1280}
    s_mov_b32 s36, 0
    s_mov_b32 s37, s41
    s_mul_i32 s42, s43, 10240
    s_add_u32 s42, s42, {WBASE}
    s_mov_b32 s30, s42
    s_add_u32 s31, s30, 5120
    s_cbranch_vccnz K1_LW_SSM
    s_mov_b32 s39, {32*3456}
    s_mov_b32 s34, 0
    """)
    for n in range(5):
        a(f"""
        v_add_u32 v22, {64*n}, v1
        v_mul_u32_u24 v23, 6554, v22
        v_lshrrev_b32 v23, 16, v23
        v_mul_u32_u24 v24, 10, v23
        v_sub_u32 v24, v22, v24
        v_and_b32 v25, 0x33, v23
        v_bfe_u32 v6, v23, 2, 1
        v_lshl_or_b32 v25, v6, 3, v25
        v_bfe_u32 v6, v23, 3, 1
        v_lshl_or_b32 v25, v6, 2, v25
        v_mul_u32_u24 v25, 3456, v25
        v_lshl_add_u32 v{12+n}, v24, 4, v25
        """)
    a("s_branch K1_LW_GO")
    a.label("K1_LW_SSM")
    a(f"""
    s_mov_b32 s39, {32*1280}
    s_mov_b32 s34, 0x40000000
    v_mul_u32_u24 v24, 1280, v20
    v_lshl_add_u32 v12, v23, 4, v24
    v_xor_b32 v13, 64, v12
    v_add_u32 v13, {8*1280}, v13
    v_add_u32 v14, {16*1280}, v12
    v_add_u32 v15, {16*1280}, v13
    v_mov_b32 v16, v12
    """)
    a.label("K1_LW_GO")
    def xdma(lo, hi):
        for k in range(lo, hi):
            c, q = divmod(k, 8)
            a(f"s_add_u32 m0, s37, {c*8192 + q*1024}\ns_add_u32 s68, s{20 + 4*c + (q >> 1)}, s36\nbuffer_load_dwordx4 v{4+(q & 1)}, s[8:11], s68 offen lds")
    def wdma(c):
        a(f"s_add_u32 s69, s40, s39" if c else "s_mov_b32 s69, s40")
        for n in range(5):
            if n == 4: a("s_add_u32 s69, s69, s34")
            a(f"s_add_u32 m0, s{30+c}, {n*1024}\ns_nop 0\nbuffer_load_dwordx4 v{12+n}, s[12:15], s69 offen lds")
    def adv():
        a(f"""
        s_add_u32 s40, s40, s33
        s_add_u32 s36, s36, 128
        s_add_u32 s37, s37, 32768
        s_add_u32 s30, s30, 20480
        s_cmp_ge_u32 s37, 98304
        s_cselect_b32 s37, s41, s37
        s_cselect_b32 s30, s42, s30
        s_add_u32 s31, s30, 5120
        """)
    NV = 26
    a(f"s_load_dwordx4 s[80:83], s[0:1], {KA['cre']}\ns_load_dwordx2 s[84:85], s[0:1], {KA['wd']}")
    a(f"s_waitcnt vmcnt({2*LT-2})")
    a.stamp(1)
    xdma(0, 16); wdma(0); wdma(1); adv()
    a(f"s_waitcnt vmcnt({NV//2})")
    xdma(0, 13)
    a(f"s_waitcnt vmcnt(13)\ns_mov_b32 s87, 0")
    a.stamp(2)
    a("s_barrier")
    a.stamp(16)
    xdma(13, 16); wdma(0); wdma(1); adv()
    a.label("K1_LL")
    if RPS < 8:
        a(f"s_cmp_lg_u32 s87, {RPS}\ns_cbranch_scc1 K1_LNR")
        repack_issue(a)
        a.label("K1_LNR")
    xdma(0, 16); wdma(0); wdma(1); adv()
    a(f"s_add_u32 s87, s87, 1\ns_waitcnt vmcnt({NV})")
    a.dstamp(2, "s87")
    a("s_barrier")
    a.dstamp(16, "s87")
    a("s_cmp_lt_u32 s87, 8\ns_cbranch_scc1 K1_LL")
    assert RPS <= 6
    repack_finish(a)
    a("s_waitcnt vmcnt(10)")
    a.stamp(11)
    a("s_barrier")
    a.stamp(25)
    a("""
    s_mov_b64 exec, 1
    s_waitcnt vmcnt(0)
    buffer_store_dword v46, v2, s[20:23], s66 offen sc1
    s_mov_b64 exec, -1
    """)
    a.stamp(13)
    a("s_mov_b32 s47, 1\ns_branch K1_P2")

def repack_issue(a):
    a(f"""
    s_waitcnt lgkmcnt(0)
    s_lshl_b32 s70, s35, 1
    s_add_u32 s70, s70, s43
    s_mul_i32 s65, s70, 40960
    s_mul_i32 s66, s62, 160
    s_add_u32 s65, s65, s66
    """)
    srd(a, 72, 54, 256)
    a("v_mov_b32 v40, 0\nbuffer_load_dword v46, v40, s[72:75], 0 offen sc1")
    srd(a, 72, 84, F*D*2)
    for n in range(5):
        a(f"""
        v_add_u32 v40, {64*n}, v1
        v_mul_u32_u24 v41, 6554, v40
        v_lshrrev_b32 v41, 16, v41
        v_mul_u32_u24 v42, 10, v41
        v_sub_u32 v42, v40, v42
        v_mul_u32_u24 v41, 1280, v41
        v_lshl_add_u32 v40, v42, 4, v41
        buffer_load_dwordx4 {vr(48+4*n,4)}, v40, s[72:75], s65 offen
        """)
    a(f"""
    s_sub_u32 s71, 63, s70
    s_bitcmp1_b32 s71, 1
    s_cselect_b32 s76, s82, s80
    s_cselect_b32 s77, s83, s81
    s_mov_b32 s78, {D*P*2}
    s_mov_b32 s79, 0x20000
    s_lshr_b32 s65, s71, 2
    s_lshl_b32 s65, s65, 7
    s_and_b32 s66, s71, 1
    s_lshl_b32 s66, s66, 6
    s_add_u32 s65, s65, s66
    s_mul_i32 s66, s62, {80*1280}
    s_add_u32 s65, s65, s66
    s_cmp_lt_u32 s71, 40
    s_cselect_b32 s65, s65, 0x40000000
    v_mul_u32_u24 v40, 1280, v31
    v_lshrrev_b32 v41, 4, v1
    v_lshl_add_u32 v40, v41, 4, v40
    """)
    for dt in range(5):
        a(f"buffer_load_dwordx4 {vr(68+4*dt,4)}, v40, s[76:79], s65 offen\ns_add_u32 s65, s65, {16*1280}")

def repack_finish(a):
    srd(a, 16, 4, WP_BYTES, WS_WP)
    srd(a, 20, 4, FLG_BYTES, WS_FLG)
    a(f"""
    s_mul_i32 s65, s43, 5120
    s_add_u32 s65, s65, {WBASE + 20480}
    v_lshlrev_b32 v2, 4, v1
    v_add_u32 v3, s65, v2
    v_lshrrev_b32 v6, 4, v1
    v_bfe_u32 v4, v1, 2, 2
    v_lshl_add_u32 v4, v6, 2, v4
    v_mul_u32_u24 v4, 160, v4
    v_and_b32 v5, 3, v1
    v_lshl_add_u32 v4, v5, 3, v4
    v_add_u32 v4, s65, v4
    """)
    for n in range(5): a(f"ds_write_b128 v3, {vr(48+4*n,4)} offset:{1024*n}")
    a(f"""
    s_mul_i32 s68, s62, {5*NS2*1024}
    s_lshl_b32 s65, s71, 10
    s_add_u32 s65, s65, s68
    s_cmp_lt_u32 s71, 40
    s_cselect_b32 s65, s65, 0x40000000
    s_waitcnt lgkmcnt(0)
    """)
    for dt in range(5):
        for h in range(2): a(f"ds_read_b64_tr_b16 {vr(88+4*dt+2*h,2)}, v4 offset:{2560*h + 32*dt}")
    for dt in range(5):
        a(f"buffer_store_dwordx4 {vr(68+4*dt,4)}, v2, s[16:19], s65 offen sc1\ns_add_u32 s65, s65, {NS2*1024}")
    a(f"""
    s_mul_i32 s65, s70, 52429
    s_lshr_b32 s65, s65, 18
    s_mul_i32 s66, s65, 5
    s_sub_u32 s66, s70, s66
    s_add_u32 s67, s70, 2
    s_mul_i32 s67, s67, 52429
    s_lshr_b32 s67, s67, 18
    s_sub_u32 s67, s70, s67
    s_add_u32 s67, s67, 40
    s_add_u32 s65, s65, 84
    s_cmp_eq_u32 s66, 2
    s_cselect_b32 s65, s65, s67
    s_lshl_b32 s65, s65, 10
    s_add_u32 s65, s65, s68
    s_cmp_lt_u32 s70, 54
    s_cselect_b32 s65, s65, 0x40000000
    s_waitcnt lgkmcnt(0)
    """)
    for dt in range(5):
        a(f"buffer_store_dwordx4 {vr(88+4*dt,4)}, v2, s[16:19], s65 offen sc1\ns_add_u32 s65, s65, {NS2*1024}")
    a(f"""
    s_lshl_b32 s66, s70, 2
    s_lshl_b32 s67, s62, 8
    s_add_u32 s66, s66, s67
    s_add_u32 s66, s66, 8192
    v_mov_b32 v2, 0
    """)

def helper_loop(a, glu, hooks={}):
    NJ = 5 if glu else 4
    SLOT = 20480
    NG = 14 if glu else 8
    def colsum(s, dst):
        off = (s % 3)*SLOT
        for ks in range(2):
            for j in range(NJ):
                r = 88 + 20*ks + 4*j
                if glu:
                    for h in range(2): a(f"ds_read_b64_tr_b16 {vr(r+2*h,2)}, v18 offset:{off + (8*h + 32*ks)*160 + 32*j}")
                else:
                    a(f"ds_read_b128 {vr(r,4)}, v{18 if ks == 0 else 16} offset:{off + j*2048 + (1024 if j >= 2 else 0)}")
            if ks == 0 and glu: a("s_waitcnt lgkmcnt(2)")
        for ks in range(2):
            a(f"s_waitcnt lgkmcnt({(2*NJ if glu else NJ) if ks == 0 else 0})")
            for j in range(NJ):
                a(f"v_mfma_f32_16x16x32_bf16 {vr(dst+4*j,4)}, v[56:59], {vr(88+20*ks+4*j,4)}, {vr(dst+4*j,4)}")
    def pick(dst):
        a(f"s_nop 7\nv_mov_b32 v24, v{dst}")
        for g in range(1, 4):
            a(f"v_cmp_eq_u32 vcc, {g}, v30\ns_nop 1\nv_cndmask_b32 v24, v24, v{dst+4*g}, vcc")
        if glu: a(f"v_mov_b32 v25, v{dst+16}")
    def remote_colsum(s):
        l4 = a.newlabel("K1_LC")
        a(f"s_cmp_lg_u32 s62, {s}\ns_cbranch_scc1 {l4}")
        colsum(s, 128); pick(128)
        a("v_mov_b32 v22, v24\nv_mov_b32 v23, s95\nbuffer_store_dwordx2 v[22:23], v17, s[28:31], s93 offen sc1")
        if glu: a("v_mov_b32 v28, v25\nv_mov_b32 v29, s95\ns_mov_b64 exec, 0xffff\nbuffer_store_dwordx2 v[28:29], v17, s[28:31], s93 offen offset:512 sc1\ns_mov_b64 exec, -1")
        a.label(l4)
    def red16(v):
        for r in (8, 4, 2, 1):
            a(f"s_nop 1\nv_add_f32_dpp v{v}, v{v}, v{v} row_ror:{r} row_mask:0xf bank_mask:0xf")
    inv640 = 0x3acccccd
    U = 148
    def stats_a():
        a("s_waitcnt vmcnt(0)")
        for k in range(20):
            a(f"v_lshlrev_b32 v{U+2*k}, 16, v{60+k}\nv_and_b32 v{U+1+2*k}, 0xffff0000, v{60+k}")
        a(f"v_pk_add_f32 v[22:23], {vr(U,2)}, {vr(U+2,2)}\nv_pk_add_f32 v[28:29], {vr(U+4,2)}, {vr(U+6,2)}")
        for k in range(U+8, U+40, 4):
            a(f"v_pk_add_f32 v[22:23], v[22:23], v[{k}:{k+1}]\nv_pk_add_f32 v[28:29], v[28:29], v[{k+2}:{k+3}]")
        a("v_pk_add_f32 v[22:23], v[22:23], v[28:29]\ns_nop 0\nv_add_f32 v22, v22, v23")
        red16(22)
        a(f"v_mul_f32 v80, {inv640:#x}, v22\nbuffer_load_dword v52, v55, s[20:23], 0 offen sc1")
    def stats_b():
        for k in range(U, U+40, 2):
            a(f"v_pk_add_f32 v[{k}:{k+1}], v[{k}:{k+1}], v[80:81] op_sel_hi:[1,0] neg_lo:[0,1] neg_hi:[0,1]")
        a(f"v_pk_mul_f32 v[22:23], {vr(U,2)}, {vr(U,2)}\nv_pk_mul_f32 v[28:29], {vr(U+2,2)}, {vr(U+2,2)}")
        for k in range(U+4, U+40, 4):
            a(f"v_pk_fma_f32 v[22:23], v[{k}:{k+1}], v[{k}:{k+1}], v[22:23]\nv_pk_fma_f32 v[28:29], v[{k+2}:{k+3}], v[{k+2}:{k+3}], v[28:29]")
        a("v_pk_add_f32 v[22:23], v[22:23], v[28:29]\ns_nop 0\nv_add_f32 v25, v22, v23")
        red16(25)
        a(f"v_mul_f32 v25, {inv640:#x}, v25")
        bf16r(a, 25, 25)
        a("v_add_f32 v25, 0x3727c5ac, v25")
        bf16r(a, 25, 25)
        a("""
        v_sqrt_f32 v25, v25
        s_nop 0
        v_cvt_pk_bf16_f32 v24, v25, v80
        v_mov_b32 v25, s95
        s_mov_b32 exec_lo, 0x10001
        s_mov_b32 exec_hi, 0x10001
        buffer_store_dwordx2 v[24:25], v26, s[24:27], 0 offen sc1
        s_mov_b64 exec, -1
        """)
    def gather_issue():
        a("buffer_load_dwordx2 v[26:27], v53, s[24:27], 0 offen sc1")
        a("buffer_load_dwordx2 v[28:29], v53, s[24:27], 0 offen offset:512 sc1")
        for r in range(6):
            a(f"s_add_u32 s66, s92, {r*1280}")
            a(f"buffer_load_dwordx2 {vr(60+2*r,2)}, v17, s[28:31], s66 offen sc1")
            if glu: a(f"buffer_load_dwordx2 {vr(72+2*r,2)}, v17, s[28:31], s66 offen offset:512 sc1")
    def get_epoch():
        lp = a.newlabel("K1_EP"); lo = a.newlabel("K1_EO")
        a("s_mov_b32 s67, 0")
        a.label(lp)
        a(f"""
        s_waitcnt vmcnt(0)
        v_readfirstlane_b32 s95, v52
        s_add_u32 s67, s67, 1
        s_cmp_lg_u32 s95, 0
        s_cbranch_scc1 {lo}
        s_sleep 4
        buffer_load_dword v52, v55, s[20:23], 0 offen sc1
        s_cmp_lt_u32 s67, 100000
        s_cbranch_scc1 {lp}
        """)
        a.label(lo)
    a(f"""
    s_lshl_b32 s66, s62, 8
    s_lshl_b32 s67, s35, 3
    s_add_u32 s66, s66, s67
    s_lshl_b32 s67, s43, 2
    s_add_u32 s66, s66, s67
    s_mul_i32 s94, s66, 1280
    v_mul_u32_u24 v54, 1280, v30
    v_lshl_add_u32 v54, v31, 4, v54
    v_add_u32 v26, s66, v30
    v_lshlrev_b32 v26, 3, v26
    """)
    for q in range(5):
        a(f"buffer_load_dwordx4 {vr(60+4*q,4)}, v54, s[8:11], s94 offen offset:{256*q}")
    if "preload" in hooks: hooks["preload"]()
    srd(a, 20, 54, 256)
    le = a.newlabel("K1_E0")
    a(f"""
    v_mov_b32 v55, 0
    s_or_b32 s66, s2, s43
    s_cmp_lg_u32 s66, 0
    s_cbranch_scc1 {le}
    s_memrealtime s[66:67]
    s_waitcnt lgkmcnt(0)
    s_or_b32 s66, s66, 1
    v_mov_b32 v52, s66
    s_mov_b64 exec, 1
    buffer_store_dword v52, v55, s[20:23], 0 offen sc1
    s_mov_b64 exec, -1
    """)
    a.label(le)
    srd(a, 24, 4, L*8, WS_STAT); srd(a, 28, 4, CSP_BYTES, WS_CSP)
    for r in range(32, 52): a(f"v_mov_b32 v{r}, 0")
    for r in range(128, 148): a(f"v_mov_b32 v{r}, 0")
    for r in range(56, 60): a(f"v_mov_b32 v{r}, 0x3f803f80")
    a(f"""
    s_lshl_b32 s92, s35, 3
    s_add_u32 s93, s92, s62
    s_lshl_b32 s93, s93, 1
    s_add_u32 s93, s93, s43
    s_mul_i32 s93, s93, 640
    s_lshl_b32 s92, s92, 1
    s_add_u32 s92, s92, s43
    s_mul_i32 s92, s92, 640
    v_lshlrev_b32 v19, 2, v1
    v_lshlrev_b32 v17, 3, v1
    """)
    stats_a()
    for s in range(10):
        a.stamp(2 + s)
        a("s_barrier")
        a.stamp(16 + s)
        if s == 0: get_epoch(); stats_b()
        if s <= 5 and "norc" not in EXP: remote_colsum(s)
        if ("side", s) in hooks: hooks[("side", s)]()
        if s == 8: gather_issue()
        if s >= 6: colsum(s, 32)
    pick(32)
    a.stamp(12)
    a(f"""
    s_mov_b64 s[32:33], 0xffff
    s_mul_i32 s65, s43, {NJ*64}
    v_add_u32 v22, s65, v19
    v_add_u32 v22, {LDS_CS}, v22
    s_lshl_b32 s65, s43, 9
    v_add_u32 v23, s65, v19
    v_add_u32 v23, {LDS_STA}, v23
    s_mov_b32 s67, 0
    v_mov_b32 v84, s95
    v_mov_b32 v85, 0
    v_mov_b32 v86, 0
    v_mov_b32 v87, 0
    v_mov_b32 v88, {LDS_SYNC}
    ds_write_b128 v88, v[84:87]
    ds_write_b64 v88, v[86:87] offset:16
    ds_write_b64 v88, v[86:87] offset:24
    s_waitcnt vmcnt(0)
    """)
    lp = a.newlabel("K1_GP"); lo = a.newlabel("K1_GO")
    a.label(lp)
    tags = [27, 29] + [61+2*r for r in range(6)]
    a(f"v_cmp_eq_u32 s[68:69], s95, v{tags[0]}")
    for t in tags[1:]: a(f"v_cmp_eq_u32 vcc, s95, v{t}\ns_and_b64 s[68:69], s[68:69], vcc")
    if glu:
        for r in range(6): a(f"v_cmp_eq_u32 vcc, s95, v{73+2*r}\ns_or_b64 vcc, vcc, 0xffffffffffff0000\ns_and_b64 s[68:69], s[68:69], vcc" if False else
                             f"v_cmp_eq_u32 vcc, s95, v{73+2*r}\ns_orn2_b64 vcc, vcc, s[32:33]\ns_and_b64 s[68:69], s[68:69], vcc")
    a(f"""
    s_cmp_eq_u64 s[68:69], -1
    s_cbranch_scc1 {lo}
    s_add_u32 s67, s67, 1
    s_cmp_ge_u32 s67, 100000
    s_cbranch_scc1 {lo}
    s_sleep 4
    """)
    gather_issue()
    a(f"s_waitcnt vmcnt(0)\ns_branch {lp}")
    a.label(lo)
    a("""
    v_lshlrev_b32 v27, 16, v26
    v_lshlrev_b32 v29, 16, v28
    v_and_b32 v26, 0xffff0000, v26
    v_and_b32 v28, 0xffff0000, v28
    v_rcp_f32 v27, v27
    v_rcp_f32 v29, v29
    ds_write_b32 v23, v26 offset:1024
    ds_write_b32 v23, v28 offset:1280
    ds_write_b32 v23, v27
    ds_write_b32 v23, v29 offset:256
    """)
    for r in range(6):
        a(f"v_add_f32 v24, v24, v{60+2*r}")
        if glu: a(f"v_add_f32 v25, v25, v{72+2*r}")
    a("ds_write_b32 v22, v24")
    if glu: a("s_mov_b64 exec, 0xffff\nds_write_b32 v22, v25 offset:256\ns_mov_b64 exec, -1")
    a.stamp(13)
    a("s_waitcnt lgkmcnt(0)\ns_barrier")
    a.stamp(14)

PFD = int(os.environ.get("PFD", "4"))
PF0 = int(os.environ.get("PF0", "2"))
def prefetch_setup(a, glu):
    if not PF: return {}
    KADV = 64*3456 if glu else 128
    p0, p1 = (56, 58) if glu else (48, 50)
    a(f"""
    s_cmp_eq_u32 s3, 0
    s_cselect_b32 s12, s{p0}, s{p1}
    s_cselect_b32 s13, s{p0+1}, s{p1+1}
    s_mov_b32 s14, {D*F*2 if glu else P*D*2}
    s_mov_b32 s15, 0x20000
    s_mov_b32 s81, {KADV}
    s_lshr_b32 s82, s61, 3
    s_lshl_b32 s82, s82, 4
    """)
    if glu:
        a(f"""
        s_mul_i32 s80, s82, 3456
        s_mul_i32 s82, s63, 160
        s_add_u32 s80, s80, s82
        v_mul_u32_u24 v14, 3456, v31
        v_bfe_u32 v15, v1, 4, 1
        v_mul_u32_u24 v15, 156, v15
        v_add_u32 v14, v14, v15
        s_mov_b32 s83, 32
        """)
    else:
        a(f"""
        s_lshl_b32 s80, s63, 6
        s_add_u32 s80, s80, s82
        s_mul_i32 s80, s80, 1280
        v_mul_u32_u24 v14, 1280, v31
        s_mov_b32 s83, 16
        """)
    a(f"""
    s_lshl_b32 s82, s62, 8
    s_and_b32 s84, s61, 7
    s_lshl_b32 s84, s84, 5
    s_add_u32 s82, s82, s84
    s_mul_i32 s82, s82, 1280
    v_mul_u32_u24 v15, 1280, v1
    s_cmp_eq_u32 s3, 2
    s_cselect_b32 s12, s8, s12
    s_cselect_b32 s13, s9, s13
    s_cselect_b32 s14, s10, s14
    s_cselect_b32 s80, s82, s80
    s_cselect_b32 s81, 128, s81
    s_cselect_b32 s83, 32, s83
    s_cselect_b64 vcc, -1, 0
    s_cmp_eq_u32 s3, 3
    s_cselect_b32 s83, 0, s83
    v_cndmask_b32 v14, v14, v15, vcc
    v_cmp_gt_u32 vcc, s83, v1
    v_mov_b32 v15, 0x40000000
    s_nop 0
    v_cndmask_b32 v14, v15, v14, vcc
    """)
    def touch():
        a("s_add_u32 s80, s80, s81\nbuffer_load_dword v16, v14, s[12:15], s80 offen")
    for _ in range(LT - 1): a("s_add_u32 s80, s80, s81")
    for _ in range(PFD - LT): touch()
    return {"touch": touch}

def lds_spin(a, lab, va, off, cond, init=False, vt=4):
    if init: a(f"v_mov_b32 v{va}, {LDS_SYNC}")
    a("s_mov_b32 s67, 0")
    a.label(lab)
    a(f"""
    ds_read_b32 v{vt}, v{va} offset:{off}
    s_add_u32 s67, s67, 1
    s_waitcnt lgkmcnt(0)
    v_readfirstlane_b32 s66, v{vt}
    {cond}
    s_cbranch_scc1 {lab}_OK
    s_cmp_ge_u32 s67, 1000000
    s_cbranch_scc1 {lab}_OK
    s_sleep 1
    s_branch {lab}
    """)
    a.label(lab + "_OK")

def consumer_flag(a):
    srd(a, 20, 4, FLG_BYTES, WS_FLG)
    a(f"""
    s_lshl_b32 s66, s62, 2
    s_add_u32 s66, s66, s3
    s_lshl_b32 s66, s66, 8
    s_lshl_b32 s67, s35, 2
    s_add_u32 s66, s66, s67
    v_mov_b32 v2, 0
    v_mov_b32 v3, s95
    v_mov_b32 v4, {LDS_SYNC}
    v_mov_b32 v5, 1
    s_mov_b64 exec, 1
    s_mov_b32 s47, 0
    s_mov_b32 s67, 0
    """)
    a.stamp(16)
    a("""
    s_waitcnt vmcnt(0)
    buffer_store_dword v3, v2, s[20:23], s66 offen sc1
    ds_add_u32 v4, v5 offset:12
    s_mov_b64 exec, -1
    s_setprio 0
    """)
    a.stamp(17)
    a.label("K1_CW")
    a("""
    ds_read_b32 v6, v4 offset:12
    s_add_u32 s67, s67, 1
    s_waitcnt lgkmcnt(0)
    v_readfirstlane_b32 s66, v6
    s_and_b32 s66, s66, 15
    s_cmp_ge_u32 s66, 4
    s_cbranch_scc1 K1_P2
    s_cmp_ge_u32 s67, 1000000
    s_cbranch_scc1 K1_P2
    s_sleep 1
    s_branch K1_CW
    """)

M2MAP = ['''s_bfe_u32 s49, s50, 0x10003
    s_lshl_b32 s49, s49, 2
    s_bfe_u32 s65, s50, 0x20001
    s_add_u32 s49, s49, s65
    s_lshr_b32 s48, s50, 4
    s_lshl_b32 s48, s48, 1
    s_and_b32 s65, s50, 1
    s_add_u32 s48, s48, s65''',
    's_and_b32 s49, s50, 7\ns_lshr_b32 s48, s50, 3',
    '''s_lshr_b32 s49, s50, 3
    s_lshl_b32 s49, s49, 1
    s_bfe_u32 s65, s50, 0x10002
    s_add_u32 s49, s49, s65
    s_and_b32 s48, s50, 3'''][M2]
def phase2(a):
    PA = 16
    def pacc(j, i): return PA + 4*(j*4 + i)
    HB = 96
    def hreg(n, i): return HB + 16*(n % NH) + 4*i
    def bH(n, i): return vr(hreg(n, i), 4)
    WV = HB + 16*NH; nwv = (192 - WV)//20
    assert 20*(NW - nwv) <= 60
    def wreg(n, j):
        b = n % NW
        return vr(WV + 20*b + 4*j, 4) if b < nwv else ar(20*(b - nwv) + 4*j, 4)
    NK = 12
    a.label("K1_P2")
    a.vm = []
    a(f"""
    s_and_b32 s46, s3, 3
    s_mov_b32 s50, s35
    {M2MAP}
    s_lshl_b32 s51, s48, 6
    s_lshl_b32 s65, s62, 2
    s_add_u32 s48, s48, s65
    s_mul_i32 s52, s49, {5*NS2*1024}
    s_add_u32 s53, s52, {NS2*1024}
    s_add_u32 s54, s52, {2*NS2*1024}
    s_add_u32 s55, s52, {3*NS2*1024}
    s_add_u32 s56, s52, {4*NS2*1024}
    s_xor_b32 s65, s3, 2
    s_cmp_ge_u32 s3, 4
    s_cselect_b32 s65, s65, s3
    s_mul_i32 s36, s65, 20480
    s_movk_i32 s41, 4096
    s_cselect_b32 s40, s41, {(-81920) & 0xffffffff}
    s_cselect_b32 s41, 12288, s41
    s_mov_b32 s66, {76*1024}
    s_cselect_b32 s66, {40*1024}, s66
    s_cmp_eq_u32 s3, 3
    s_cselect_b32 s38, 0x40000000, 0
    s_sub_u32 s40, s40, s38
    s_add_u32 s38, s38, 4096
    s_cmp_eq_u32 s3, 7
    s_cselect_b32 s39, 0x40000000, 0
    s_add_u32 s39, s39, 4096
    s_lshl_b32 s65, s46, 10
    s_add_u32 s65, s65, s66
    v_lshlrev_b32 v2, 4, v1
    v_add_u32 v3, s65, v2
    v_mov_b32 v4, v3
    v_add_u32 v13, s36, v2
    v_and_b32 v5, 15, v1
    v_lshrrev_b32 v6, 4, v1
    v_mov_b32 v9, {LDS_SYNC}
    """)
    srd(a, 8, 4, HP_BYTES, WS_HP)
    srd(a, 12, 4, WP_BYTES, WS_WP)
    srd(a, 20, 4, FLG_BYTES, WS_FLG)
    for i in range(4):
        a(f"s_xor_b32 s65, s46, {i}\ns_lshl_b32 s66, s48, 2\ns_add_u32 s65, s65, s66\ns_mul_i32 s{32+i}, s65, {NS2*1024}")
    a(f"""
    s_lshl_b32 s65, s48, 6
    s_lshl_b32 s66, s46, 4
    s_add_u32 s65, s65, s66
    v_add_u32 v7, s65, v5
    v_lshlrev_b32 v12, 2, v6
    s_mul_i32 s66, s49, 80
    v_add_u32 v12, s66, v12
    v_mul_u32_u24 v7, 640, v7
    v_add_u32 v7, v7, v12
    v_lshlrev_b32 v8, 1, v7
    v_lshlrev_b32 v7, 2, v7
    v_lshlrev_b32 v12, 1, v12
    """)
    srd(a, 28, 100, L*D*4)
    def dma(n):
        for j in range(5):
            a(f"s_add_u32 m0, s36, {(n - NW)*5120 + j*1024}\ns_nop 0")
            a.vmem(f"buffer_load_dwordx4 v4, s[12:15], s{52+j} offen sc1 lds", ("W", n))
        a(f"v_add_u32 v4, { {0: 's38', 1: 's40', 8: 's41', 10: 's39'}.get(n, '4096')}, v4")
    def loadW(n, j):
        if NW <= n < NW + NL:
            a(f"ds_read_b128 {wreg(n, j)}, v13 offset:{(n - NW)*5120 + j*1024}")
            return
        a.vmem(f"buffer_load_dwordx4 {wreg(n, j)}, v4, s[12:15], s{52+j} offen sc1", ("W", n))
        if j == 4: a(f"v_add_u32 v4, { {0: 's38', 1: 's40', 8: 's41', 10: 's39'}.get(n, '4096')}, v4")
    def loadH(n):
        for i in range(4):
            a.vmem(f"buffer_load_dwordx4 {bH(n,i)}, v3, s[8:11], s{32+i} offen sc1", ("H", n))
        a(f"v_add_u32 v3, { {0: 's38', 1: 's40', 8: 's41', 10: 's39'}.get(n, '4096')}, v3")
    def wait_flags(tag, poller, off, mask, word):
        a(f"s_mov_b32 s67, 0\n{poller}\ns_cbranch_scc0 K1_P2SPIN{tag}")
        a.label(f"K1_P2POLL{tag}")
        a(f"""
        buffer_load_dword v6, v5, s[20:23], {off} offen sc1
        s_waitcnt vmcnt(0)
        v_cmp_eq_u32 vcc, s95, v6
        s_add_u32 s67, s67, 1
        {mask}
        s_cbranch_scc1 K1_P2SET{tag}
        s_cmp_ge_u32 s67, 100000
        s_cbranch_scc1 K1_P2SET{tag}
        s_sleep {PSL if tag == "W" else PSH}
        s_branch K1_P2POLL{tag}
        """)
        a.label(f"K1_P2SET{tag}")
        a(f"v_mov_b32 v6, 1\nds_write_b32 {word}, v6\ns_branch K1_P2GO{tag}".replace("@", ""))
        a.label(f"K1_P2SPIN{tag}")
        a(f"""
        ds_read_b32 v6, {word}
        s_add_u32 s67, s67, 1
        s_waitcnt lgkmcnt(0)
        v_readfirstlane_b32 s66, v6
        s_cmp_lg_u32 s66, 0
        s_cbranch_scc1 K1_P2GO{tag}
        s_cmp_ge_u32 s67, 1000000
        s_cbranch_scc1 K1_P2GO{tag}
        s_sleep 1
        s_branch K1_P2SPIN{tag}
        """)
        a.label(f"K1_P2GO{tag}")
    a("s_cmp_lt_u32 s3, 4\ns_cbranch_scc1 K1_P2W")
    EX = HB
    srd(a, 16, 6, XN_BYTES)
    srd(a, 24, 96, D*2)
    for jd in range(5):
        a(f"buffer_load_dwordx2 {vr(EX+2*jd,2)}, v8, s[16:19], 0 offen offset:{32*jd}")
        a(f"buffer_load_dwordx2 {vr(EX+10+2*jd,2)}, v12, s[24:27], 0 offen offset:{32*jd}")
    a(f"""
    v_bfe_u32 v14, v1, 1, 2
    v_lshlrev_b32 v14, 4, v14
    v_and_b32 v10, 1, v1
    v_lshl_add_u32 v14, v10, 1, v14
    v_bfe_u32 v10, v1, 3, 1
    v_add_u32 v14, v14, v10
    s_lshl_b32 s65, s46, 2
    v_add_u32 v14, s65, v14
    s_lshl_b32 s65, s46, 4
    v_add_u32 v10, s65, v5
    s_cmp_lt_u32 s50, 10
    s_cselect_b64 vcc, -1, 0
    v_cndmask_b32 v14, v10, v14, vcc
    v_add_u32 v14, s51, v14
    v_lshlrev_b32 v14, 2, v14
    v_add_u32 v14, {LDS_STA}, v14
    """)
    a.label("K1_P2BAR")
    a("""
    s_cmp_eq_u32 s47, 0
    s_cbranch_scc1 K1_P2E
    s_barrier
    s_sub_u32 s47, s47, 1
    s_branch K1_P2BAR
    """)
    a.label("K1_P2E")
    a(f"""
    ds_read_b32 v11, v14
    ds_read_b32 v10, v14 offset:1024
    ds_read_b32 v12, v9
    v_mov_b32 v14, 16
    s_waitcnt lgkmcnt(0)
    v_readfirstlane_b32 s95, v12
    s_mov_b64 exec, 1
    ds_add_u32 v9, v14 offset:12
    s_mov_b64 exec, -1
    """)
    a.label("K1_P2W")
    a(f"""
    v_lshlrev_b32 v5, 2, v1
    s_lshl_b32 s65, s49, 8
    s_add_u32 s65, s65, 8192
    v_add_u32 v14, 16, v9
    """)
    def ssm_hold(t):
        a(f"s_cmp_ge_u32 s50, 10\ns_cbranch_scc1 K1_HL{t}_OK")
        lds_spin(a, f"K1_HL{t}", 9, 24, "s_cmp_lg_u32 s66, 0", vt=6)
    a.stamp(21)
    if WS6 == 2: ssm_hold("A")
    wait_flags("W", "s_cmp_eq_u32 s3, 4", "s65", "s_cmp_eq_u64 vcc, -1", "v14")
    a.stamp(22)
    for n in range(NW):
        for j in range(5): loadW(n, j)
    if WS6 == 1: ssm_hold("A")
    for n in range(NW, NW + NL): dma(n)
    for r in range(PA, PA + 80): a(f"v_mov_b32 v{r}, 0")
    a(f"s_cmp_lt_u32 s3, 4\ns_cbranch_scc1 K1_P2W2\ns_waitcnt vmcnt({5*(NW + NL)})")
    for jd in range(5):
        for h in range(2):
            x = EX+2*jd+h; ds = EX+10+2*jd+h; T = pacc(jd, 0) + 2*h
            a(f"""
            v_lshlrev_b32 v14, 16, v{x}
            v_and_b32 v15, 0xffff0000, v{x}
            v_sub_f32 v12, v14, v10
            v_sub_f32 v8, v15, v10
            v_cvt_pk_bf16_f32 v12, v12, v8
            v_and_b32 v8, 0xffff0000, v12
            v_lshlrev_b32 v12, 16, v12
            v_mul_f32 v12, v12, v11
            v_mul_f32 v8, v8, v11
            v_cvt_pk_bf16_f32 v12, v12, v8
            v_and_b32 v8, 0xffff0000, v12
            v_lshlrev_b32 v12, 16, v12
            v_lshlrev_b32 v5, 16, v{ds}
            v_and_b32 v6, 0xffff0000, v{ds}
            v_mul_f32 v12, v12, v5
            v_mul_f32 v8, v8, v6
            v_cvt_pk_bf16_f32 v12, v12, v8
            v_and_b32 v8, 0xffff0000, v12
            v_lshlrev_b32 v12, 16, v12
            v_add_f32 v{T}, v12, v14
            v_add_f32 v{T+1}, v8, v15
            """)
    a.label("K1_P2W2")
    a(f"""
    v_add_u32 v10, 4, v9
    v_add_u32 v11, 8, v9
    v_and_b32 v5, 31, v1
    v_lshlrev_b32 v5, 2, v5
    s_lshl_b32 s65, s48, 8
    """)
    a.stamp(26)
    if os.environ.get("HOLD", "1") == "1": lds_spin(a, "K1_HD", 9, 12, "s_and_b32 s66, s66, 15\ns_cmp_ge_u32 s66, 4", vt=6)
    wait_flags("H", "s_cmp_eq_u32 s3, 4", "s65", "s_or_b32 s66, vcc_lo, 0x3ff\ns_cmp_eq_u32 s66, -1", "v10")
    a.stamp(27)
    loadH(0); loadH(1)
    a("s_cmp_ge_u32 s3, 4\ns_cbranch_scc1 K1_P2GOS")
    wait_flags("S", "s_cmp_eq_u32 s3, 0", "s65", "s_and_b32 s66, vcc_lo, 0x3ff\ns_cmp_eq_u32 s66, 0x3ff", "v11")
    a.stamp(23); a.lines.append("  ;@CSTAMP 24")
    for n in range(2, NH): loadH(n)
    PRI = os.environ.get("PRI", "")
    for n in range(NK):
        if PRI and n == 0:
            lp = a.newlabel("K1_PR"); a(f"s_cmp_lt_u32 s3, 4\ns_cbranch_scc1 {lp}\ns_setprio 2"); a.label(lp)
        if PRI and n == int(PRI): a("s_setprio 0")
        a.vmwait([("H", n), ("W", n)], "lgkmcnt(0)" if NW <= n < NW + NL else "")
        if n in (1, 5, 9): a.stamp(18 + n//4)
        sk = None
        if n in (1, 11):
            sk = a.newlabel("K1_P2SK")
            a(f"s_cmp_eq_u32 s3, {3 if n == 1 else 7}\ns_cbranch_scc1 {sk}")
        if n >= 9:
            lo = a.newlabel("K1_P2O"); le = a.newlabel("K1_P2X")
            h0 = hreg(n, 0)
            a(f"s_cmp_lt_u32 s3, 4\ns_cbranch_scc1 {le}\ns_bitcmp1_b32 s3, 0\ns_cbranch_scc1 {lo}")
            for p in range(2):
                for e in range(2): a(f"v_swap_b32 v{h0+8*p+2+e}, v{h0+8*p+4+e}")
            a(f"s_branch {le}")
            a.label(lo)
            for p in range(2):
                for e in range(2): a(f"v_swap_b32 v{h0+8*p+e}, v{h0+8*p+6+e}")
            a.label(le)
            a("s_nop 1")
        for j in range(5):
            for i in range(4):
                a(f"v_mfma_f32_16x16x32_bf16 {vr(pacc(j,i),4)}, {wreg(n, j)}, {bH(n,i)}, {vr(pacc(j,i),4)}")
            if n + NW < NK and j >= 1 and sk is None: loadW(n + NW, j - 1)
        if sk:
            a.label(sk)
            if n + NW < NK:
                for j in range(4): loadW(n + NW, j)
        if n + NH < NK: loadH(n + NH)
        if n + NW < NK: loadW(n + NW, 4)
    a.label("K1_P2FIN")
    a.stamp(28); a.lines.append("  ;@CSTAMP 25")
    a(f"""
    v_add_u32 v10, s36, v2
    s_mov_b32 s67, 0
    """)
    a.label("K1_P2G")
    a(f"""
    ds_read_b32 v6, v9 offset:12
    s_add_u32 s67, s67, 1
    s_waitcnt vmcnt(0) lgkmcnt(0)
    v_readfirstlane_b32 s66, v6
    s_cmp_ge_u32 s66, 68
    s_cbranch_scc1 K1_P2GD
    s_cmp_ge_u32 s67, 1000000
    s_cbranch_scc1 K1_P2GD
    s_sleep 1
    s_branch K1_P2G
    """)
    a.label("K1_P2GD")
    for i in range(1, 4):
        for j in range(5):
            a(f"ds_write_b128 v10, {vr(pacc(j,i),4)} offset:{((i-1)*5 + j)*1024}")
    RA = HB
    for m in range(1, 8):
        a(f"""
        s_xor_b32 s65, s3, {m}
        s_xor_b32 s66, s65, 2
        s_cmp_ge_u32 s65, 4
        s_cselect_b32 s65, s66, s65
        s_mul_i32 s65, s65, 20480
        s_add_u32 s65, s65, {(((m & 3) + 3) & 3)*5120}
        v_add_u32 v{RA+m-1}, s65, v2
        """)
    a("s_cmp_lt_u32 s3, 4\ns_cbranch_scc1 K1_P2FB")
    for grp in range(2):
        own = [0, 1, 2] if grp == 0 else [3, 4]
        oth = [3, 4] if grp == 0 else [0, 1, 2]
        if grp: a.label("K1_P2FB")
        for j in oth: a(f"ds_write_b128 v10, {vr(pacc(j,0),4)} offset:{(15 + j)*1024}")
        a("s_waitcnt lgkmcnt(0)\ns_barrier")
        a.stamp(29)
        D0 = HB + 8
        for x, j in enumerate(own):
            for m in range(7):
                a(f"ds_read_b128 {vr(D0+28*x+4*m,4)}, v{RA+m} offset:{j*1024}")
        for x, j in enumerate(own):
            rem = 7*(len(own) - 1 - x)
            d = D0 + 28*x; T = pacc(j, 0)
            a(f"s_waitcnt lgkmcnt({min(15, rem + 3)})")
            for h in range(2):
                a(f"v_pk_add_f32 {vr(d+2*h,2)}, {vr(d+2*h,2)}, {vr(d+4+2*h,2)}")
                a(f"v_pk_add_f32 {vr(d+8+2*h,2)}, {vr(d+8+2*h,2)}, {vr(d+12+2*h,2)}")
            for h in range(2): a(f"v_pk_add_f32 {vr(T+2*h,2)}, {vr(T+2*h,2)}, {vr(d+2*h,2)}")
            for h in range(2): a(f"v_pk_add_f32 {vr(T+2*h,2)}, {vr(T+2*h,2)}, {vr(d+8+2*h,2)}")
            a(f"s_waitcnt lgkmcnt({min(15, rem)})")
            for h in range(2): a(f"v_pk_add_f32 {vr(d+16+2*h,2)}, {vr(d+16+2*h,2)}, {vr(d+20+2*h,2)}")
            for h in range(2): a(f"v_pk_add_f32 {vr(T+2*h,2)}, {vr(T+2*h,2)}, {vr(d+24+2*h,2)}")
            for h in range(2): a(f"v_pk_add_f32 {vr(T+2*h,2)}, {vr(T+2*h,2)}, {vr(d+16+2*h,2)}")
            a(f"buffer_store_dwordx4 {vr(T,4)}, v7, s[28:31], 0 offen offset:{64*j} sc1")
        a.stamp(30)
        a("s_endpgm")

XM = int(os.environ.get("XM", "0"))
XMAP = ["s_lshr_b32 s62, s60, 2\ns_and_b32 s63, s60, 3",
        "s_and_b32 s62, s60, 1\ns_lshr_b32 s63, s60, 1\ns_add_u32 s63, s63, 2\ns_and_b32 s63, s63, 3",
        "s_and_b32 s62, s60, 1\ns_lshr_b32 s63, s60, 1"][XM]
def gen_k1():
    a = Asm()
    a.raw(".p2align 8\n.type gemm1_kernel,@function\ngemm1_kernel:")
    a(f"""
    s_cmp_ge_u32 s2, 256
    s_cbranch_scc1 K1_END
    s_load_dwordx2 s[4:5], s[0:1], {KA['ws']}
    s_load_dwordx2 s[6:7], s[0:1], {KA['x']}
    s_load_dwordx4 s[44:47], s[0:1], {KA['lre']}
    s_load_dwordx4 s[48:51], s[0:1], {KA['bre']}
    s_load_dwordx2 s[52:53], s[0:1], {KA['ldt']}
    s_load_dwordx2 s[54:55], s[0:1], {KA['dbg']}
    s_load_dwordx4 s[56:59], s[0:1], {KA['wg']}
    s_load_dwordx2 s[96:97], s[0:1], {KA['dsk']}
    s_load_dwordx2 s[100:101], s[0:1], {KA['out']}
    v_and_b32 v1, 63, v0
    v_lshrrev_b32 v2, 6, v0
    s_nop 0
    v_readfirstlane_b32 s3, v2
    s_and_b32 s60, s2, 7
    s_lshr_b32 s61, s2, 3
    {XMAP}
    s_lshl_b32 s62, s62, 2
    s_lshr_b32 s64, s61, 3
    s_add_u32 s62, s62, s64
    s_lshl_b32 s63, s63, 3
    s_and_b32 s64, s61, 7
    s_add_u32 s63, s63, s64
    s_mov_b32 s35, s63
    s_waitcnt lgkmcnt(0)
    """)
    srd(a, 8, 6, XN_BYTES)
    a("""
    s_sub_u32 s65, s3, 4
    s_cmp_ge_u32 s65, 2
    s_cbranch_scc1 K1_NOTLOADER
    """)
    loader_code(a)
    a.label("K1_NOTLOADER")
    if os.environ.get("CPF", "1") == "1":
        a(f"""
        s_cmp_lg_u32 s3, 3
        s_cbranch_scc1 K1_NOCPF
        s_getpc_b64 s[66:67]
        K1_PCREF:
        s_sub_u32 s66, s66, K1_PCREF-gemm1_kernel
        s_subb_u32 s67, s67, 0
        s_lshl_b32 s65, s61, 11
        v_lshlrev_b32 v14, 7, v1
        v_add_u32 v14, s65, v14
        v_cmp_gt_u32 vcc, CODE_END-gemm1_kernel, v14
        s_and_b64 exec, vcc, 0xffff
        s_cbranch_execz K1_CPFSKIP
        global_load_dword v15, v14, s[66:67]
        K1_CPFSKIP:
        s_mov_b64 exec, -1
        K1_NOCPF:
        """)
    srd(a, 16, 4, HP_BYTES, WS_HP)
    srd(a, 76, 4, AGG_BYTES, WS_AGG)
    a(f"""
    v_lshrrev_b32 v30, 4, v1
    v_and_b32 v31, 15, v1
    v_lshrrev_b32 v10, 1, v31
    v_xor_b32 v10, v10, v30
    v_lshlrev_b32 v11, 7, v31
    v_lshl_add_u32 v10, v10, 4, v11
    v_bfe_u32 v14, v1, 2, 2
    v_bfe_u32 v15, v1, 4, 1
    v_lshl_add_u32 v14, v15, 2, v14
    v_bfe_u32 v15, v1, 5, 1
    v_lshl_add_u32 v14, v15, 4, v14
    v_mul_u32_u24 v14, 160, v14
    v_and_b32 v15, 3, v1
    v_lshl_add_u32 v11, v15, 3, v14
    s_cmp_ge_u32 s3, 4
    s_cbranch_scc1 K1_HELPER
    """)
    a(f"""
    s_lshl_b32 s65, s3, 13
    v_add_u32 v2, s65, v10
    v_xor_b32 v3, 64, v2
    v_add_u32 v4, 32768, v2
    v_add_u32 v5, 32768, v3
    v_add_u32 v6, 65536, v2
    v_add_u32 v7, 65536, v3
    s_lshl_b32 s64, s62, 4
    s_lshl_b32 s65, s3, 2
    s_add_u32 s64, s64, s65
    s_mul_i32 s64, s64, {NS2*1024}
    v_lshlrev_b32 v12, 4, v1
    s_cmp_lt_u32 s63, 10
    s_cbranch_scc1 K1_SSM
    """)
    a(f"""
    s_sub_u32 s63, s63, 10
    v_add_u32 v8, {WBASE}, v11
    s_lshr_b32 s65, s63, 1
    s_and_b32 s66, s63, 1
    s_lshl_b32 s67, s65, 2
    s_lshl_b32 s68, s66, 1
    s_add_u32 s67, s67, s68
    s_add_u32 s67, s67, 40
    s_lshl_b32 s67, s67, 10
    s_add_u32 s70, s67, s64
    s_add_u32 s71, s70, 1024
    s_cmp_eq_u32 s63, 21
    s_cselect_b32 s71, 0x40000000, s71
    s_add_u32 s67, s65, 84
    s_lshl_b32 s67, s67, 10
    s_mul_i32 s68, s66, {NS2*1024}
    s_add_u32 s67, s67, s68
    s_add_u32 s72, s67, s64
    """)
    consumer_loop(a, True, prefetch_setup(a, True))
    a(f"""
    s_lshl_b32 s65, s3, 8
    v_lshlrev_b32 v2, 2, v31
    v_add_u32 v2, s65, v2
    v_add_u32 v2, {LDS_STA}, v2
    v_lshlrev_b32 v3, 4, v30
    v_add_u32 v3, {LDS_CS}, v3
    """)
    for i in range(4):
        a(f"ds_read_b32 v{4+i}, v2 offset:{64*i}")
        a(f"ds_read_b32 v{8+i}, v2 offset:{1024+64*i}")
    a(f"v_mov_b32 v15, {LDS_SYNC}\nds_read_b32 v14, v15")
    a("s_cmp_eq_u32 s66, 1\ns_waitcnt lgkmcnt(0)\nv_readfirstlane_b32 s95, v14")
    for i in range(4): a(f"v_mul_f32 v{4+i}, v{4+i}, v{4+i}")
    a("s_cbranch_scc1 K1_GLU_ODD")
    for odd in range(2):
        if odd: a.label("K1_GLU_ODD")
        groups = [(4,), (0, 1), (2, 3)] if not odd else [(0,), (1, 2), (3, 4)]
        k = 0
        for gi, grp in enumerate(groups):
            for x, j in enumerate(grp):
                a(f"ds_read_b128 {vr(14+8*x,4)}, v3 offset:{64*j}")
                a(f"ds_read_b128 {vr(18+8*x,4)}, v3 offset:{320+64*j}")
            a("s_waitcnt lgkmcnt(0)")
            for i in range(4):
                mi = 8 + (i & ~1); msel = i & 1
                ai = 4 + (i & ~1)
                sel = f"op_sel:[0,{msel},0] op_sel_hi:[1,{msel},1] neg_lo:[0,1,0] neg_hi:[0,1,0]"
                sel2 = f"op_sel:[0,{msel}] op_sel_hi:[1,{msel}]"
                for x, j in enumerate(grp):
                    G = acc(i, j); U = acc(i, 5+j)
                    for h in range(2):
                        a(f"v_pk_fma_f32 {vr(G+2*h,2)}, {vr(14+8*x+2*h,2)}, {vr(mi,2)}, {vr(G+2*h,2)} {sel}")
                        a(f"v_pk_fma_f32 {vr(U+2*h,2)}, {vr(18+8*x+2*h,2)}, {vr(mi,2)}, {vr(U+2*h,2)} {sel}")
                    for h in range(2):
                        a(f"v_pk_mul_f32 {vr(G+2*h,2)}, {vr(G+2*h,2)}, {vr(U+2*h,2)}")
                    for h in range(2):
                        a(f"v_pk_mul_f32 {vr(G+2*h,2)}, {vr(G+2*h,2)}, {vr(ai,2)} {sel2}")
                if gi == 0:
                    T = acc(i & ~1, 5+grp[0]); G = acc(i, grp[0]); o = 2*(i & 1)
                    a(f"v_cvt_pk_bf16_f32 v{T+o}, v{G}, v{G+1}")
                    a(f"v_cvt_pk_bf16_f32 v{T+o+1}, v{G+2}, v{G+3}")
                    if i & 1:
                        a(f"s_add_u32 s75, s72, {(i-1)*NS2*1024}")
                        a(f"buffer_store_dwordx4 {vr(T,4)}, v12, s[16:19], s75 offen{ST}")
                    continue
                T = acc(i, 5+grp[0])
                for x, j in enumerate(grp):
                    G = acc(i, j)
                    a(f"v_cvt_pk_bf16_f32 v{T+2*x}, v{G}, v{G+1}")
                    a(f"v_cvt_pk_bf16_f32 v{T+2*x+1}, v{G+2}, v{G+3}")
                a(f"s_add_u32 s75, s{69+gi}, {i*NS2*1024}")
                a(f"buffer_store_dwordx4 {vr(T,4)}, v12, s[16:19], s75 offen{ST}")
        if odd == 0: a("s_branch K1_CFLAG")
    a.label("K1_CFLAG")
    consumer_flag(a)
    a.label("K1_SSM")
    a.lg = []
    a(f"""
    v_add_u32 v8, {WBASE}, v10
    v_xor_b32 v9, 64, v8
    s_lshl_b32 s65, s63, 12
    s_add_u32 s64, s64, s65
    """)
    consumer_loop(a, False, prefetch_setup(a, False))
    LAM = 14
    a(f"""
    v_lshlrev_b32 v13, 4, v31
    v_add_u32 v13, {LDS_LAM}, v13
    s_lshl_b32 s65, s3, 8
    v_lshlrev_b32 v2, 4, v30
    v_add_u32 v2, s65, v2
    v_add_u32 v2, {LDS_STA}, v2
    v_lshlrev_b32 v3, 2, v31
    v_add_u32 v3, {LDS_CS}, v3
    """)
    for i in range(4):
        a(f"ds_read_b128 {vr(160+4*i,4)}, v2 offset:{64*i}")
        a(f"ds_read_b128 {vr(176+4*i,4)}, v2 offset:{1024+64*i}")
    for jj in range(8):
        a(f"ds_read_b32 v{4+jj}, v3 offset:{64*jj}")
    a(f"v_mov_b32 v15, {LDS_SYNC}\nds_read_b32 v14, v15")
    a("s_waitcnt lgkmcnt(0)\nv_readfirstlane_b32 s95, v14")
    for j in range(4):
        a(f"ds_read_b128 {vr(LAM+4*j,4)}, v13 offset:{256*j}")
    for j in range(4):
        for jj in (j, 4+j):
            cs = 4 + (jj & ~1); sl = jj & 1
            for i in range(4):
                A = acc(i, jj)
                for h in range(2):
                    a(f"v_pk_fma_f32 {vr(A+2*h,2)}, {vr(176+4*i+2*h,2)}, {vr(cs,2)}, {vr(A+2*h,2)} op_sel:[0,{sl},0] op_sel_hi:[1,{sl},1] neg_lo:[0,1,0] neg_hi:[0,1,0]")
            for i in range(4):
                A = acc(i, jj)
                for h in range(2):
                    a(f"v_pk_mul_f32 {vr(A+2*h,2)}, {vr(A+2*h,2)}, {vr(160+4*i+2*h,2)}")
    a(f"""
    s_lshl_b32 s65, s3, 2
    v_add_u32 v10, s65, v30
    v_lshlrev_b32 v10, 9, v10
    v_lshl_add_u32 v10, v31, 3, v10
    v_add_u32 v10, {LDS_E16}, v10
    s_waitcnt lgkmcnt(0)
    """)
    def BR(j, sg): return acc(sg >> 1, j) + 2*(sg & 1)
    def BI(j, sg): return acc(sg >> 1, 4+j) + 2*(sg & 1)
    E = 160
    def ER(q, j): return E + 16*q + 4*j
    def EI(q, j): return E + 16*q + 4*j + 2
    def step(dR, dI, pR, pI, bR, bI, lam):
        return [
          f"v_pk_fma_f32 {vr(dR,2)}, {vr(lam,2)}, {vr(pR,2)}, {vr(bR,2)} op_sel_hi:[0,1,1]",
          f"v_pk_fma_f32 {vr(dI,2)}, {vr(lam,2)}, {vr(pI,2)}, {vr(bI,2)} op_sel_hi:[0,1,1]",
          f"v_pk_fma_f32 {vr(dR,2)}, {vr(lam,2)}, {vr(pI,2)}, {vr(dR,2)} op_sel:[1,0,0] op_sel_hi:[1,1,1] neg_lo:[1,0,0] neg_hi:[1,0,0]",
          f"v_pk_fma_f32 {vr(dI,2)}, {vr(lam,2)}, {vr(pR,2)}, {vr(dI,2)} op_sel:[1,0,0] op_sel_hi:[1,1,1]"]
    for sg in range(1, 8):
        q = sg & 1
        cols = []
        for j in range(4):
            pR, pI = (BR(j, 0), BI(j, 0)) if sg == 1 else (ER(q ^ 1, j), EI(q ^ 1, j))
            cols.append(step(ER(q, j), EI(q, j), pR, pI, BR(j, sg), BI(j, sg), LAM+4*j))
        for k in range(4):
            for j in range(4): a(cols[j][k])
    for j in range(4):
        c = ER(0, j); r = ER(1, j); im = EI(1, j); l8 = LAM+4*j+2
        a(f"""
        v_fma_f32 v{c}, v{l8}, v{r}, v{r+1}
        v_fma_f32 v{c+1}, v{l8}, v{im}, v{im+1}
        v_fma_f32 v{c}, -v{l8+1}, v{im}, v{c}
        v_fma_f32 v{c+1}, v{l8+1}, v{r}, v{c+1}
        ds_write_b64 v10, {vr(c,2)} offset:{128*j}
        """)
    a(f"""
    s_mul_i32 s65, s3, 18432
    v_mul_u32_u24 v2, 144, v31
    v_lshl_add_u32 v2, v30, 5, v2
    v_add_u32 v2, s65, v2
    v_bfe_u32 v3, v1, 2, 2
    v_lshl_add_u32 v3, v30, 3, v3
    v_mul_u32_u24 v3, 144, v3
    v_and_b32 v4, 3, v1
    v_lshl_add_u32 v3, v4, 3, v3
    v_add_u32 v3, s65, v3
    v_mov_b32 v13, {LDS_SYNC}
    v_mov_b32 v4, 1
    s_mov_b64 exec, 1
    ds_add_u32 v13, v4 offset:20
    s_mov_b64 exec, -1
    """)
    a.stamp(13)
    a(f"v_lshlrev_b32 v13, 3, v31\nv_add_u32 v13, {LDS_UV}, v13")
    for j in range(4):
        a(f"ds_read_b64 {vr([4,6,8,170][j],2)}, v13 offset:{128*j}")
    a("s_waitcnt lgkmcnt(0)")
    for j in range(4):
        U = [4,6,8,170][j]
        allp = [(acc(i, j)+2*h, acc(i, 4+j)+2*h) for i in range(4) for h in range(2)] + [(ER(1, j), EI(1, j))]
        for prs in (allp[:5], allp[5:]):
            for k, (R, I) in enumerate(prs):
                a(f"v_pk_mul_f32 {vr(160+2*k,2)}, {vr(R,2)}, {vr(U,2)} op_sel:[0,1] op_sel_hi:[1,1]")
            for k, (R, I) in enumerate(prs):
                a(f"v_pk_mul_f32 {vr(R,2)}, {vr(R,2)}, {vr(U,2)} op_sel:[0,0] op_sel_hi:[1,0]")
            for k, (R, I) in enumerate(prs):
                a(f"v_pk_fma_f32 {vr(R,2)}, {vr(I,2)}, {vr(U,2)}, {vr(R,2)} op_sel:[0,1,0] op_sel_hi:[1,1,1] neg_lo:[0,1,0] neg_hi:[0,1,0]")
            for k, (R, I) in enumerate(prs):
                a(f"v_pk_fma_f32 {vr(I,2)}, {vr(I,2)}, {vr(U,2)}, {vr(160+2*k,2)} op_sel:[0,0,0] op_sel_hi:[1,0,1]")
    a.stamp(15)
    lds_spin(a, "K1_SS", 13, 24, "s_cmp_lg_u32 s66, 0", init=True)
    a.stamp(14)
    for j in range(4):
        h = ER(0, j)
        a(f"ds_read_b32 v{h}, v10 offset:{LDS_S-LDS_E16+128*j}")
        a(f"ds_read_b32 v{h+2}, v10 offset:{LDS_S-LDS_E16+128*j+4}")
    a("s_waitcnt lgkmcnt(0)")
    for j in range(4):
        h = ER(0, j); l8 = LAM+4*j+2
        a(f"""
        v_fma_f32 v{h+1}, v{l8}, v{h}, v{ER(1,j)}
        v_fma_f32 v{h+3}, v{l8}, v{h+2}, v{EI(1,j)}
        v_fma_f32 v{h+1}, -v{l8+1}, v{h+2}, v{h+1}
        v_fma_f32 v{h+3}, v{l8+1}, v{h}, v{h+3}
        """)
    for sg in range(8):
        cols = []
        for j in range(4):
            pR, pI = (ER(0, j), EI(0, j)) if sg == 0 else (BR(j, sg-1), BI(j, sg-1))
            cols.append(step(BR(j, sg), BI(j, sg), pR, pI, BR(j, sg), BI(j, sg), LAM+4*j))
        for k in range(4):
            for j in range(4): a(cols[j][k])
    for jj in range(8):
        im, j = divmod(jj, 4)
        t = 160 + 8*(jj % 4)
        for i in range(4):
            A = acc(i, jj)
            ng = "-" if im else ""
            a(f"v_cvt_pk_bf16_f32 v{t+i}, {ng}v{A}, {ng}v{A+2}")
            a(f"v_cvt_pk_bf16_f32 v{t+4+i}, {ng}v{A+1}, {ng}v{A+3}")
        o = (32*(2*im + (j >> 1)) + 16*(j & 1))*144
        a(f"ds_write_b128 v2, {vr(t,4)} offset:{o}")
        a(f"ds_write_b128 v2, {vr(t+4,4)} offset:{o+16}")
    a("s_waitcnt lgkmcnt(0)")
    for i in range(4):
        for j in range(4):
            d = ACC + 4*(i*4+j)
            for h in range(2):
                a(f"ds_read_b64_tr_b16 {vr(d+2*h,2)}, v3 offset:{(32*j+4*h)*144 + 32*i}")
    k = 0
    for i in range(4):
        for j in range(4):
            d = ACC + 4*(i*4+j)
            k += 1
            a(f"s_waitcnt lgkmcnt({min(15, 32-2*k)})")
            a(f"s_add_u32 s65, s64, {(i*NS2 + j)*1024}")
            a(f"buffer_store_dwordx4 {vr(d,4)}, v12, s[16:19], s65 offen{ST}")
    a("s_branch K1_CFLAG")
    a.label("K1_HELPER")
    a(f"""
    s_and_b32 s43, s3, 1
    s_lshl_b32 s64, s62, 8
    s_lshl_b32 s65, s43, 7
    s_add_u32 s64, s64, s65
    v_lshrrev_b32 v20, 3, v1
    v_and_b32 v21, 7, v1
    """)
    a(f"""
    s_cmp_lt_u32 s63, 10
    s_cbranch_scc1 K1_HSSM
    s_mul_i32 s66, s43, 10240
    s_add_u32 s66, s66, {WBASE}
    v_add_u32 v18, s66, v11
    v_add_u32 v53, s64, v1
    v_lshlrev_b32 v53, 3, v53
    """)
    helper_loop(a, True, {})
    a("s_mov_b32 s47, 0\ns_branch K1_P2")
    a.label("K1_HSSM")
    LR = 85
    def preload():
        srd(a, 20, 44, P*2); srd(a, 24, 46, P*2); srd(a, 28, 52, P*2)
        a(f"""
        s_lshl_b32 s65, s63, 7
        v_lshlrev_b32 v22, 1, v1
        v_add_u32 v22, s65, v22
        s_lshl_b32 s90, s63, 13
        s_lshl_b32 s91, s62, 10
        s_add_u32 s91, s91, s90
        buffer_load_ushort v{LR}, v22, s[20:23], 0 offen
        buffer_load_ushort v{LR+1}, v22, s[24:27], 0 offen
        buffer_load_ushort v{LR+2}, v22, s[28:31], 0 offen
        """)
    LM = 8; L16 = 188; L256 = 190
    def csq(d, s, t=22):
        a(f"""
        v_mul_f32 v{t}, v{s+1}, v{s+1}
        v_mul_f32 v{t+1}, v{s}, v{s+1}
        v_fma_f32 v{d}, v{s}, v{s}, -v{t}
        v_add_f32 v{d+1}, v{t+1}, v{t+1}
        """)
    def pre():
        lam_calc(a, LR, LR+1, LR+2, 148, LM, LM+1, coef=(6, 7))
        a(f"""
        v_add_f32 v6, v6, v6
        v_add_f32 v7, v7, v7
        v_lshlrev_b32 v22, 3, v1
        v_add_u32 v22, {LDS_UV}, v22
        ds_write_b64 v22, v[6:7]
        """)
    def pre2():
        csq(LM+2, LM); csq(LM+2, LM+2); csq(LM+2, LM+2)
        csq(L16, LM+2)
        csq(L256, L16); csq(L256, L256); csq(L256, L256); csq(L256, L256)
        a(f"""
        v_lshlrev_b32 v22, 4, v1
        v_add_u32 v23, {LDS_LAM}, v22
        ds_write_b128 v23, {vr(LM,4)}
        s_waitcnt lgkmcnt(0)
        """)
    a(f"""
    s_mul_i32 s67, s43, 10240
    s_add_u32 s67, s67, {WBASE}
    v_add_u32 v18, s67, v10
    v_xor_b32 v16, 64, v18
    v_bfe_u32 v53, v1, 2, 2
    v_lshlrev_b32 v53, 4, v53
    v_and_b32 v22, 1, v1
    v_lshl_add_u32 v53, v22, 3, v53
    v_bfe_u32 v22, v1, 1, 1
    v_add_u32 v53, v53, v22
    v_lshl_add_u32 v53, v30, 1, v53
    v_add_u32 v53, s64, v53
    v_lshlrev_b32 v53, 3, v53
    """)
    helper_loop(a, False, {"preload": preload, ("side", 1): pre, ("side", 4): pre2})
    a("s_mov_b32 s47, 0\ns_cmp_lg_u32 s43, 0\ns_cbranch_scc1 K1_P2")
    a(f"""
    v_lshlrev_b32 v22, 4, v1
    v_lshlrev_b32 v23, 3, v1
    v_add_u32 v23, {LDS_E16}, v23
    v_add_u32 v24, 4096, v22
    """)
    if os.environ.get("CPRI", "1") == "1": a("s_setprio 3")
    lds_spin(a, "K1_SE", 25, 20, "s_cmp_ge_u32 s66, 4", init=True)
    EV = 32
    def ev(R): return EV + 2*R
    for R in range(16):
        a(f"ds_read_b64 {vr(ev(R),2)}, v23 offset:{512*R}")
    def cfma(d, lam, s, add):
        a(f"""
        v_fma_f32 v{d}, v{lam}, v{s}, v{add}
        v_fma_f32 v{d+1}, v{lam}, v{s+1}, v{add+1}
        v_fma_f32 v{d}, -v{lam+1}, v{s+1}, v{d}
        v_fma_f32 v{d+1}, v{lam+1}, v{s}, v{d+1}
        """)
    A0, A1 = 96, 100
    a(f"v_mov_b32 v{A0+2}, s95\nv_mov_b32 v{A0+3}, 0")
    a("s_waitcnt lgkmcnt(0)")
    cur = ev(0)
    for R in range(1, 16):
        d = A0 if (R & 1) else A1
        cfma(d, L16, cur, ev(R)); cur = d
    assert cur == A0
    a(f"""
    buffer_store_dwordx4 {vr(A0,4)}, v22, s[76:79], s91 offen sc1
    s_mov_b32 s67, 0
    s_cmp_eq_u32 s62, 0
    s_cbranch_scc1 K1_POLLOK
    """)
    PV = 64
    a.label("K1_POLL")
    for rb in range(7):
        a(f"buffer_load_dwordx4 {vr(PV+4*rb,4)}, v{22 if rb < 4 else 24}, s[76:79], s90 offen offset:{1024*(rb%4)} sc1")
    a("s_waitcnt vmcnt(0)\ns_mov_b64 s[68:69], -1")
    lab = a.newlabel("K1_CHK")
    for rb in range(7):
        a(f"""
        s_cmp_le_u32 s62, {rb}
        s_cbranch_scc1 {lab}
        v_cmp_eq_u32 vcc, s95, v{PV+4*rb+2}
        s_and_b64 s[68:69], s[68:69], vcc
        """)
    a.label(lab)
    a(f"""
    s_cmp_eq_u64 s[68:69], -1
    s_cbranch_scc1 K1_POLLOK
    s_add_u32 s67, s67, 1
    s_cmp_lt_u32 s67, 100000
    s_sleep 1
    s_cbranch_scc1 K1_POLL
    """)
    a.label("K1_POLLOK")
    a("v_mov_b32 v104, 0\nv_mov_b32 v105, 0")
    lab = a.newlabel("K1_CAR")
    for rb in range(7):
        a(f"s_cmp_le_u32 s62, {rb}\ns_cbranch_scc1 {lab}")
        cfma(106, L256, 104, PV+4*rb)
        a("v_mov_b32 v104, v106\nv_mov_b32 v105, v107")
    a.label(lab)
    cur = 104
    for R in range(16):
        t = 108 + 2*(R & 1)
        a(f"""
        v_mul_f32 v{t}, v6, v{cur}
        v_mul_f32 v{t+1}, v6, v{cur+1}
        v_fma_f32 v{t}, -v7, v{cur+1}, v{t}
        v_fma_f32 v{t+1}, v7, v{cur}, v{t+1}
        """)
        if R < 15:
            d = A0 if (R & 1) else A1
            cfma(d, L16, cur, ev(R)); cur = d
        a(f"ds_write_b64 v23, {vr(t,2)} offset:{LDS_S-LDS_E16+512*R}")
    a("v_mov_b32 v4, 1\nds_write_b32 v25, v4 offset:24\ns_mov_b32 s47, 0\ns_setprio 0")
    phase2(a)
    a.label("K1_END")
    a("s_endpgm")
    return a.text(), kd("gemm1_kernel", 192+60, 102, 192), f"; @launch kernel=gemm1_kernel grid=(256,1,1) block=(512,1,1) lds={LDS_TOTAL}"
```

```python
from gen_common import *
import os
EXP = os.environ.get('EXP', '')
LTD = os.environ.get('LTD', '0') == '1'
PF = os.environ.get('PF', '0' if LTD else '1') == '1'

ACC = 32
TBA = tuple(int(x) for x in os.environ.get("TBA", "1,0").split(",")) if os.environ.get("TBA", "1,0") else None
XBASE = 0
WBASE = 98304
SPARE = 159744
LDS_TOTAL = 163840
LDS_E16 = 73728
LDS_S = LDS_E16
LDS_LAM = SPARE
LDS_STA = SPARE + 1024
LDS_STM = SPARE + 2048
LDS_CS = SPARE + 3072
LDS_UV = SPARE + 3584
LDS_SYNC = 158720
WS_FLG = 0x1760000
FLG_BYTES = 16384
M2 = int(os.environ.get("M2", "0"))
PSL = int(os.environ.get("PSL", "8")); PSH = int(os.environ.get("PSH", "4")); WS6 = int(os.environ.get("WS6", "0"))
NH = int(os.environ.get("NH", "3")); NW = int(os.environ.get("NW", "5")); NL = int(os.environ.get("NL", "3"))
RPS = int(os.environ.get("RPS", "6"))
H0 = int(os.environ.get("H0", "3"))
DEF = [int(x) for x in os.environ.get("DEF", "1,4").split(",") if x]
TAG = 0x5ca1ab1e
DBG_RB = 0
DBG_CT = 8
ST = " sc1"
WRN = 6

def acc(i, jj): return ACC + 4*(jj*4 + i)
def XF(par, i): return 16*par + 4*i
def WR(phi): return 32 + 4*(phi % WRN)

def consumer_loop(a, glu, hooks={}):
    NJ = 5 if glu else 4
    NJ2 = 2*NJ
    SLOT = 20480
    P3 = 6*NJ2
    def wread(phi, last=False):
        n, jj = divmod(phi, NJ2)
        if last and n >= 2: return
        s, ks = (n >> 1) % 3, n & 1
        mat, j = divmod(jj, NJ)
        off = s*SLOT
        if glu:
            for h in range(2):
                o = off + mat*10240 + (8*h + 32*ks)*160 + 32*j
                a.lds(f"ds_read_b64_tr_b16 {ar(WR(phi) + 2*h, 2)}, v8 offset:{o}", ("W", phi % P3))
        else:
            a.lds(f"ds_read_b128 {ar(WR(phi), 4)}, v{8+ks} offset:{off + mat*10240 + j*2048 + (1024 if j >= 2 else 0)}", ("W", phi % P3))
    def xread(n, i, last=False):
        if last and n >= 2: return
        s, ks = (n >> 1) % 3, n & 1
        a.lds(f"ds_read_b128 {ar(XF(n & 1, i), 4)}, v{2 + s*2 + ks} offset:{i*2048}", ("X", n % 6))
    BJ = NJ2 - 3
    def kstep(n, last=False):
        ks = n & 1
        for jj in range(NJ2):
            phi = n*NJ2 + jj
            if ks == 1 and jj == BJ and not last:
                a.lgwait_all()
                a("s_mul_i32 s86, s87, 3") if os.environ.get("CST") else None
                a.dstamp(17 + (n >> 1), "s86") if os.environ.get("CST") else None
                a("s_barrier")
                if "touch" in hooks and not TBA:
                    lt = a.newlabel("K1_CT")
                    a(f"s_cmp_ge_u32 s87, {(9 - PFD - (n >> 1) - 1)//3 + 1}\ns_cbranch_scc1 {lt}")
                    hooks["touch"]()
                    a.label(lt)
            if TBA and "touch" in hooks and not last and (n, jj) == TBA:
                lt = a.newlabel("K1_CT")
                a(f"s_cmp_ge_u32 s87, 2\ns_cbranch_scc1 {lt}")
                for _ in range(3): hooks["touch"]()
                a.label(lt)
            a.lgwait([("W", phi % P3), ("X", n % 6)])
            todo = []
            if ks == 0:
                todo.append(("w", phi + 4))
                if 2 <= jj < 6: todo.append(("x", n + 1, jj - 2))
            else:
                if jj + 4 < NJ2: todo.append(("w", phi + 4))
                elif jj == BJ: todo += [("w", phi + 3), ("x", n+1, 0), ("w", phi + 4), ("x", n+1, 1)]
                elif jj == BJ + 1: todo += [("w", phi + 4), ("x", n+1, 2), ("x", n+1, 3)]
                elif jj == BJ + 2: todo.append(("w", phi + 4))
            for i in range(4):
                c = vr(acc(i, jj), 4)
                xa = ar(XF(n & 1, i), 4); wa = ar(WR(phi), 4)
                if glu: a(f"v_mfma_f32_16x16x32_bf16 {c}, {wa}, {xa}, {c}")
                else:   a(f"v_mfma_f32_16x16x32_bf16 {c}, {xa}, {wa}, {c}")
                if todo:
                    t = todo.pop(0)
                    if t[0] == "w": wread(t[1], last)
                    else: xread(t[1], t[2], last)
            assert not todo
    a.stamp(1)
    for r in range(ACC, ACC + 16*NJ2): a(f"v_mov_b32 v{r}, 0")
    a("s_mov_b32 s87, 0")
    a("s_barrier")
    a.stamp(2); a.lines.append("  ;@CSTAMP 3")
    if "touch" in hooks and not TBA: hooks["touch"]()
    wread(0); xread(0, 0); wread(1); xread(0, 1); wread(2); xread(0, 2); xread(0, 3); wread(3)
    entry = list(a.lg)
    lab = a.newlabel("K1_CL")
    a.label(lab)
    for n in range(6): kstep(n)
    assert a.lg == entry, (a.lg, entry)
    a(f"s_add_u32 s87, s87, 1\ns_cmp_lt_u32 s87, 3\ns_cbranch_scc1 {lab}")
    a.stamp(11); a.lines.append("  ;@CSTAMP 4")
    kstep(0, True); kstep(1, True)
    a("s_waitcnt vmcnt(0)")
    a.stamp(12)
    if os.environ.get("CPRI", "1") == "1": a("s_setprio 3")
    a("s_barrier")

NLW = int(os.environ.get("NLW", "3"))
LT = int(os.environ.get("LT", "3"))
def loader_code(a):
    if os.environ.get("LPRI", "0") == "1": a("s_setprio 3")
    a(f"""
    s_and_b32 s43, s3, 1
    v_and_b32 v31, 15, v1
    s_lshr_b32 s65, s61, 3
    s_lshl_b32 s65, s65, 4
    s_mov_b32 s15, 0x20000
    s_cmp_lt_u32 s63, 10
    s_cselect_b64 vcc, -1, 0
    s_cbranch_scc1 K1_LT_SSM
    s_sub_u32 s63, s63, 10
    s_cmp_eq_u32 s43, 0
    s_cselect_b32 s12, s56, s58
    s_cselect_b32 s13, s57, s59
    s_mov_b32 s14, {D*F*2}
    s_mul_i32 s40, s63, 160
    s_mov_b32 s33, {64*3456}
    s_mul_i32 s65, s65, 3456
    v_mul_u32_u24 v22, 3456, v31
    v_bfe_u32 v23, v1, 4, 1
    v_mul_u32_u24 v23, 156, v23
    v_add_u32 v22, v22, v23
    s_mov_b32 exec_lo, -1
    s_branch K1_LT_GO
    """)
    a.label("K1_LT_SSM")
    a(f"""
    s_cmp_eq_u32 s43, 0
    s_cselect_b32 s12, s48, s50
    s_cselect_b32 s13, s49, s51
    s_mov_b32 s14, {P*D*2}
    s_mul_i32 s40, s63, {64*1280}
    s_mov_b32 s33, 128
    s_mul_i32 s65, s65, 1280
    v_mul_u32_u24 v22, 1280, v31
    s_mov_b32 exec_lo, 0xffff
    """)
    a.label("K1_LT_GO")
    a(f"""
    s_mov_b32 exec_hi, 0
    s_add_u32 s65, s65, s40
    s_lshl_b32 s66, s62, 8
    s_and_b32 s67, s61, 7
    s_lshl_b32 s67, s67, 5
    s_add_u32 s66, s66, s67
    s_lshl_b32 s67, s43, 4
    s_add_u32 s66, s66, s67
    s_mul_i32 s66, s66, 1280
    v_mul_u32_u24 v23, 1280, v31
    """)
    a.stamp(12)
    for t in range(LT):
        a(f"buffer_load_dword v{26+t}, v22, s[12:15], s65 offen\nbuffer_load_dword v{40+t}, v23, s[8:11], s66 offen offset:{128*t}\ns_add_u32 s65, s65, s33")
    a(f"""
    s_mov_b64 exec, -1
    v_mov_b32 v17, v22
    v_mul_u32_u24 v18, 1280, v31
    s_mov_b32 s88, s65
    s_add_u32 s89, s66, {128*LT}
    s_lshl_b32 s64, s62, 8
    s_lshl_b32 s65, s43, 7
    s_add_u32 s64, s64, s65
    s_mul_i32 s20, s64, 1280
    s_lshl_b32 s41, s43, 14
    v_lshrrev_b32 v20, 3, v1
    v_and_b32 v21, 7, v1
    s_movk_i32 s66, {16*1280}
    s_movk_i32 s67, {8*1280}
    s_cmp_lg_u64 vcc, 0
    s_cselect_b32 s66, {2*1280}, s66
    v_lshrrev_b32 v23, 4, v1
    v_xor_b32 v23, v23, v21
    v_bfe_u32 v24, v1, 5, 1
    v_lshlrev_b32 v24, 4, v24
    v_bfe_u32 v25, v1, 3, 1
    v_lshl_add_u32 v24, v25, 3, v24
    v_bfe_u32 v25, v1, 4, 1
    v_add_u32 v24, v24, v25
    v_cndmask_b32 v24, v20, v24, vcc
    v_mul_u32_u24 v24, 1280, v24
    v_lshl_add_u32 v4, v23, 4, v24
    s_cselect_b32 s67, {32*1280}, s67
    v_xor_b32 v5, 64, v4
    v_add_u32 v5, s67, v5
    s_add_u32 s21, s20, s66
    s_add_u32 s22, s21, s66
    s_add_u32 s23, s22, s66
    s_add_u32 s24, s20, {64*1280}
    s_add_u32 s25, s21, {64*1280}
    s_add_u32 s26, s22, {64*1280}
    s_add_u32 s27, s23, {64*1280}
    s_mov_b32 s36, 0
    s_mov_b32 s37, s41
    s_mul_i32 s42, s43, 10240
    s_add_u32 s42, s42, {WBASE}
    s_mov_b32 s30, s42
    s_add_u32 s31, s30, 5120
    s_cbranch_vccnz K1_LW_SSM
    s_mov_b32 s39, {32*3456}
    s_mov_b32 s34, 0
    """)
    for n in range(5):
        a(f"""
        v_add_u32 v22, {64*n}, v1
        v_mul_u32_u24 v23, 6554, v22
        v_lshrrev_b32 v23, 16, v23
        v_mul_u32_u24 v24, 10, v23
        v_sub_u32 v24, v22, v24
        v_and_b32 v25, 0x33, v23
        v_bfe_u32 v6, v23, 2, 1
        v_lshl_or_b32 v25, v6, 3, v25
        v_bfe_u32 v6, v23, 3, 1
        v_lshl_or_b32 v25, v6, 2, v25
        v_mul_u32_u24 v25, 3456, v25
        v_lshl_add_u32 v{12+n}, v24, 4, v25
        """)
    a("s_branch K1_LW_GO")
    a.label("K1_LW_SSM")
    a(f"""
    s_mov_b32 s39, {32*1280}
    s_mov_b32 s34, 0x40000000
    v_mul_u32_u24 v24, 1280, v20
    v_lshl_add_u32 v12, v23, 4, v24
    v_xor_b32 v13, 64, v12
    v_add_u32 v13, {8*1280}, v13
    v_add_u32 v14, {16*1280}, v12
    v_add_u32 v15, {16*1280}, v13
    v_mov_b32 v16, v12
    """)
    a.label("K1_LW_GO")
    def xdma(lo, hi):
        for k in range(lo, hi):
            c, q = divmod(k, 8)
            a(f"s_add_u32 m0, s37, {c*8192 + q*1024}\ns_add_u32 s68, s{20 + 4*c + (q >> 1)}, s36\nbuffer_load_dwordx4 v{4+(q & 1)}, s[8:11], s68 offen lds")
    def wdma(c, cnt=5, lo=0):
        if cnt > lo: a(f"s_add_u32 s69, s40, s39" if c else "s_mov_b32 s69, s40")
        for n in range(lo, cnt):
            if n == 4: a("s_add_u32 s69, s69, s34")
            a(f"s_add_u32 m0, s{30+c}, {n*1024}\ns_nop 0\nbuffer_load_dwordx4 v{12+n}, s[12:15], s69 offen lds")
    def adv():
        a(f"""
        s_add_u32 s40, s40, s33
        s_add_u32 s36, s36, 128
        s_add_u32 s37, s37, 32768
        s_add_u32 s30, s30, 20480
        s_cmp_ge_u32 s37, 98304
        s_cselect_b32 s37, s41, s37
        s_cselect_b32 s30, s42, s30
        s_add_u32 s31, s30, 5120
        """)
    NV = 26
    def ltouch():
        if LTD: a("buffer_load_dword v19, v17, s[12:15], s88 offen\nbuffer_load_dword v19, v18, s[8:11], s89 offen\ns_add_u32 s88, s88, s33\ns_add_u32 s89, s89, 128")
    NT = 4 if LTD else 0
    a(f"s_load_dwordx4 s[80:83], s[0:1], {KA['cre']}\ns_load_dwordx2 s[84:85], s[0:1], {KA['wd']}")
    a(f"s_waitcnt vmcnt({2*LT-2})")
    a.stamp(1)
    xdma(0, 16); wdma(0); wdma(1); adv()
    a(f"s_waitcnt vmcnt({NV//2})")
    xdma(0, 13)
    a(f"s_waitcnt vmcnt(13)\ns_mov_b32 s87, 0")
    a.stamp(2)
    a("s_barrier")
    a.stamp(16)
    xdma(13, 16); wdma(0); wdma(1); adv(); ltouch()
    if H0 == 3: wdma(0, 5, NLW); wdma(1)
    a.label("K1_LL")
    xdma(0, 16); wdma(0, NLW); adv(); ltouch()
    NF = NV; NV = 16 + NLW
    a(f"s_cmp_lg_u32 s87, {RPS}\ns_cbranch_scc1 K1_LNR")
    repack_issue(a)
    a.label("K1_LNR")
    a(f"s_add_u32 s87, s87, 1")
    a.dstamp(16, "s87")
    a(f"s_waitcnt vmcnt({NV + NT})")
    a.dstamp(2, "s87")
    a("s_barrier")
    a("s_cmp_lt_u32 s87, 8\ns_cbranch_scc1 K1_LL")
    if RPS <= 6:
        a(f"s_waitcnt vmcnt({NV + NT//2})")
        repack_finish(a)
        a(f"s_waitcnt vmcnt({10 + NT//2})")
    else:
        a("s_waitcnt vmcnt(11)")
    a.stamp(11)
    a("s_barrier")
    a.stamp(25)
    if RPS > 6:
        a("s_waitcnt vmcnt(0)")
        repack_finish(a)
        a("s_barrier")
    a("""
    s_mov_b64 exec, 1
    s_waitcnt vmcnt(0)
    buffer_store_dword v46, v2, s[20:23], s66 offen sc1
    s_mov_b64 exec, -1
    """)
    a.stamp(13)
    a(f"s_mov_b32 s47, {1 if RPS <= 6 else 0}\ns_setprio 0\ns_branch K1_P2")

def repack_issue(a):
    a(f"""
    s_waitcnt lgkmcnt(0)
    s_lshl_b32 s70, s35, 1
    s_add_u32 s70, s70, s43
    s_mul_i32 s65, s70, 40960
    s_mul_i32 s66, s62, 160
    s_add_u32 s65, s65, s66
    """)
    srd(a, 72, 54, 256)
    a("v_mov_b32 v40, 0\nbuffer_load_dword v46, v40, s[72:75], 0 offen sc1")
    srd(a, 72, 84, F*D*2)
    for n in range(5):
        a(f"""
        v_add_u32 v40, {64*n}, v1
        v_mul_u32_u24 v41, 6554, v40
        v_lshrrev_b32 v41, 16, v41
        v_mul_u32_u24 v42, 10, v41
        v_sub_u32 v42, v40, v42
        v_mul_u32_u24 v41, 1280, v41
        v_lshl_add_u32 v40, v42, 4, v41
        buffer_load_dwordx4 {vr(48+4*n,4)}, v40, s[72:75], s65 offen
        """)
    a(f"""
    s_sub_u32 s71, 63, s70
    s_bitcmp1_b32 s71, 1
    s_cselect_b32 s76, s82, s80
    s_cselect_b32 s77, s83, s81
    s_mov_b32 s78, {D*P*2}
    s_mov_b32 s79, 0x20000
    s_lshr_b32 s65, s71, 2
    s_lshl_b32 s65, s65, 7
    s_and_b32 s66, s71, 1
    s_lshl_b32 s66, s66, 6
    s_add_u32 s65, s65, s66
    s_mul_i32 s66, s62, {80*1280}
    s_add_u32 s65, s65, s66
    s_cmp_lt_u32 s71, 40
    s_cselect_b32 s65, s65, 0x40000000
    v_mul_u32_u24 v40, 1280, v31
    v_lshrrev_b32 v41, 4, v1
    v_lshl_add_u32 v40, v41, 4, v40
    """)
    for dt in range(5):
        a(f"buffer_load_dwordx4 {vr(68+4*dt,4)}, v40, s[76:79], s65 offen\ns_add_u32 s65, s65, {16*1280}")

def repack_finish(a):
    srd(a, 16, 4, WP_BYTES, WS_WP)
    srd(a, 20, 4, FLG_BYTES, WS_FLG)
    a(f"""
    s_mul_i32 s65, s43, 5120
    s_add_u32 s65, s65, {WBASE + 20480}
    v_lshlrev_b32 v2, 4, v1
    v_add_u32 v3, s65, v2
    v_lshrrev_b32 v6, 4, v1
    v_bfe_u32 v4, v1, 2, 2
    v_lshl_add_u32 v4, v6, 2, v4
    v_mul_u32_u24 v4, 160, v4
    v_and_b32 v5, 3, v1
    v_lshl_add_u32 v4, v5, 3, v4
    v_add_u32 v4, s65, v4
    """)
    for n in range(5): a(f"ds_write_b128 v3, {vr(48+4*n,4)} offset:{1024*n}")
    a(f"""
    s_mul_i32 s68, s62, {5*NS2*1024}
    s_lshl_b32 s65, s71, 10
    s_add_u32 s65, s65, s68
    s_cmp_lt_u32 s71, 40
    s_cselect_b32 s65, s65, 0x40000000
    s_waitcnt lgkmcnt(0)
    """)
    for dt in range(5):
        for h in range(2): a(f"ds_read_b64_tr_b16 {vr(88+4*dt+2*h,2)}, v4 offset:{2560*h + 32*dt}")
    for dt in range(5):
        a(f"buffer_store_dwordx4 {vr(68+4*dt,4)}, v2, s[16:19], s65 offen sc1\ns_add_u32 s65, s65, {NS2*1024}")
    a(f"""
    s_mul_i32 s65, s70, 52429
    s_lshr_b32 s65, s65, 18
    s_mul_i32 s66, s65, 5
    s_sub_u32 s66, s70, s66
    s_add_u32 s67, s70, 2
    s_mul_i32 s67, s67, 52429
    s_lshr_b32 s67, s67, 18
    s_sub_u32 s67, s70, s67
    s_add_u32 s67, s67, 40
    s_add_u32 s65, s65, 84
    s_cmp_eq_u32 s66, 2
    s_cselect_b32 s65, s65, s67
    s_lshl_b32 s65, s65, 10
    s_add_u32 s65, s65, s68
    s_cmp_lt_u32 s70, 54
    s_cselect_b32 s65, s65, 0x40000000
    s_waitcnt lgkmcnt(0)
    """)
    for dt in range(5):
        a(f"buffer_store_dwordx4 {vr(88+4*dt,4)}, v2, s[16:19], s65 offen sc1\ns_add_u32 s65, s65, {NS2*1024}")
    a(f"""
    s_lshl_b32 s66, s70, 2
    s_lshl_b32 s67, s62, 8
    s_add_u32 s66, s66, s67
    s_add_u32 s66, s66, 8192
    v_mov_b32 v2, 0
    """)

def helper_loop(a, glu, hooks={}):
    NJ = 5 if glu else 4
    SLOT = 20480
    NG = 14 if glu else 8
    def colsum(s, dst):
        off = (s % 3)*SLOT
        for ks in range(2):
            for j in range(NJ):
                r = 88 + 20*ks + 4*j
                if glu:
                    for h in range(2): a(f"ds_read_b64_tr_b16 {vr(r+2*h,2)}, v18 offset:{off + (8*h + 32*ks)*160 + 32*j}")
                else:
                    a(f"ds_read_b128 {vr(r,4)}, v{18 if ks == 0 else 16} offset:{off + j*2048 + (1024 if j >= 2 else 0)}")
            if ks == 0 and glu: a("s_waitcnt lgkmcnt(2)")
        for ks in range(2):
            a(f"s_waitcnt lgkmcnt({(2*NJ if glu else NJ) if ks == 0 else 0})")
            for j in range(NJ):
                a(f"v_mfma_f32_16x16x32_bf16 {vr(dst+4*j,4)}, v[56:59], {vr(88+20*ks+4*j,4)}, {vr(dst+4*j,4)}")
    def pick(dst):
        a(f"s_nop 7\nv_mov_b32 v24, v{dst}")
        for g in range(1, 4):
            a(f"v_cmp_eq_u32 vcc, {g}, v30\ns_nop 1\nv_cndmask_b32 v24, v24, v{dst+4*g}, vcc")
        if glu: a(f"v_mov_b32 v25, v{dst+16}")
    def remote_colsum(s):
        l4 = a.newlabel("K1_LC")
        a(f"s_cmp_lg_u32 s62, {s}\ns_cbranch_scc1 {l4}")
        colsum(s, 128); pick(128)
        a("v_mov_b32 v22, v24\nv_mov_b32 v23, s95\nbuffer_store_dwordx2 v[22:23], v17, s[28:31], s93 offen sc1")
        if glu: a("v_mov_b32 v28, v25\nv_mov_b32 v29, s95\ns_mov_b64 exec, 0xffff\nbuffer_store_dwordx2 v[28:29], v17, s[28:31], s93 offen offset:512 sc1\ns_mov_b64 exec, -1")
        a.label(l4)
    def red16(v):
        for r in (8, 4, 2, 1):
            a(f"s_nop 1\nv_add_f32_dpp v{v}, v{v}, v{v} row_ror:{r} row_mask:0xf bank_mask:0xf")
    inv640 = 0x3acccccd
    U = 148
    def stats_a():
        a("s_waitcnt vmcnt(0)")
        for k in range(20):
            a(f"v_lshlrev_b32 v{U+2*k}, 16, v{60+k}\nv_and_b32 v{U+1+2*k}, 0xffff0000, v{60+k}")
        a(f"v_pk_add_f32 v[22:23], {vr(U,2)}, {vr(U+2,2)}\nv_pk_add_f32 v[28:29], {vr(U+4,2)}, {vr(U+6,2)}")
        for k in range(U+8, U+40, 4):
            a(f"v_pk_add_f32 v[22:23], v[22:23], v[{k}:{k+1}]\nv_pk_add_f32 v[28:29], v[28:29], v[{k+2}:{k+3}]")
        a("v_pk_add_f32 v[22:23], v[22:23], v[28:29]\ns_nop 0\nv_add_f32 v22, v22, v23")
        red16(22)
        a(f"v_mul_f32 v80, {inv640:#x}, v22\nbuffer_load_dword v52, v55, s[20:23], 0 offen sc1")
    def stats_b():
        for k in range(U, U+40, 2):
            a(f"v_pk_add_f32 v[{k}:{k+1}], v[{k}:{k+1}], v[80:81] op_sel_hi:[1,0] neg_lo:[0,1] neg_hi:[0,1]")
        a(f"v_pk_mul_f32 v[22:23], {vr(U,2)}, {vr(U,2)}\nv_pk_mul_f32 v[28:29], {vr(U+2,2)}, {vr(U+2,2)}")
        for k in range(U+4, U+40, 4):
            a(f"v_pk_fma_f32 v[22:23], v[{k}:{k+1}], v[{k}:{k+1}], v[22:23]\nv_pk_fma_f32 v[28:29], v[{k+2}:{k+3}], v[{k+2}:{k+3}], v[28:29]")
        a("v_pk_add_f32 v[22:23], v[22:23], v[28:29]\ns_nop 0\nv_add_f32 v25, v22, v23")
        red16(25)
        a(f"v_mul_f32 v25, {inv640:#x}, v25")
        bf16r(a, 25, 25)
        a("v_add_f32 v25, 0x3727c5ac, v25")
        bf16r(a, 25, 25)
        a("""
        v_sqrt_f32 v25, v25
        s_nop 0
        v_cvt_pk_bf16_f32 v24, v25, v80
        v_mov_b32 v25, s95
        s_mov_b32 exec_lo, 0x10001
        s_mov_b32 exec_hi, 0x10001
        buffer_store_dwordx2 v[24:25], v26, s[24:27], 0 offen sc1
        s_mov_b64 exec, -1
        """)
    def gather_issue():
        a("buffer_load_dwordx2 v[26:27], v53, s[24:27], 0 offen sc1")
        a("buffer_load_dwordx2 v[28:29], v53, s[24:27], 0 offen offset:512 sc1")
        for r in range(6):
            a(f"s_add_u32 s66, s92, {r*1280}")
            a(f"buffer_load_dwordx2 {vr(60+2*r,2)}, v17, s[28:31], s66 offen sc1")
            if glu: a(f"buffer_load_dwordx2 {vr(72+2*r,2)}, v17, s[28:31], s66 offen offset:512 sc1")
    def get_epoch():
        lp = a.newlabel("K1_EP"); lo = a.newlabel("K1_EO")
        a("s_mov_b32 s67, 0")
        a.label(lp)
        a(f"""
        s_waitcnt vmcnt(0)
        v_readfirstlane_b32 s95, v52
        s_add_u32 s67, s67, 1
        s_cmp_lg_u32 s95, 0
        s_cbranch_scc1 {lo}
        s_sleep 4
        buffer_load_dword v52, v55, s[20:23], 0 offen sc1
        s_cmp_lt_u32 s67, 100000
        s_cbranch_scc1 {lp}
        """)
        a.label(lo)
    a(f"""
    s_lshl_b32 s66, s62, 8
    s_lshl_b32 s67, s35, 3
    s_add_u32 s66, s66, s67
    s_lshl_b32 s67, s43, 2
    s_add_u32 s66, s66, s67
    s_mul_i32 s94, s66, 1280
    v_mul_u32_u24 v54, 1280, v30
    v_lshl_add_u32 v54, v31, 4, v54
    v_add_u32 v26, s66, v30
    v_lshlrev_b32 v26, 3, v26
    """)
    for q in range(5):
        a(f"buffer_load_dwordx4 {vr(60+4*q,4)}, v54, s[8:11], s94 offen offset:{256*q}")
    if "preload" in hooks: hooks["preload"]()
    srd(a, 20, 54, 256)
    le = a.newlabel("K1_E0")
    a(f"""
    v_mov_b32 v55, 0
    s_or_b32 s66, s2, s43
    s_cmp_lg_u32 s66, 0
    s_cbranch_scc1 {le}
    s_memrealtime s[66:67]
    s_waitcnt lgkmcnt(0)
    s_or_b32 s66, s66, 1
    v_mov_b32 v52, s66
    s_mov_b64 exec, 1
    buffer_store_dword v52, v55, s[20:23], 0 offen sc1
    s_mov_b64 exec, -1
    """)
    a.label(le)
    srd(a, 24, 4, L*8, WS_STAT); srd(a, 28, 4, CSP_BYTES, WS_CSP)
    for r in range(32, 52): a(f"v_mov_b32 v{r}, 0")
    for r in range(128, 148): a(f"v_mov_b32 v{r}, 0")
    for r in range(56, 60): a(f"v_mov_b32 v{r}, 0x3f803f80")
    a(f"""
    s_lshl_b32 s92, s35, 3
    s_add_u32 s93, s92, s62
    s_lshl_b32 s93, s93, 1
    s_add_u32 s93, s93, s43
    s_mul_i32 s93, s93, 640
    s_lshl_b32 s92, s92, 1
    s_add_u32 s92, s92, s43
    s_mul_i32 s92, s92, 640
    v_lshlrev_b32 v19, 2, v1
    v_lshlrev_b32 v17, 3, v1
    """)
    WVO = [2, 3, 4, 5, 12]
    pcs = [(c, n) for c in range(2) for n in range(NJ) if c == 1 or n >= NLW]
    p0, p1 = (56, 58) if glu else (48, 50)
    KADV = 64*3456 if glu else 128
    def wsetup():
        a(f"""
        s_cmp_eq_u32 s43, 0
        s_cselect_b32 s12, s{p0}, s{p1}
        s_cselect_b32 s13, s{p0+1}, s{p1+1}
        s_mov_b32 s14, {D*F*2 if glu else P*D*2}
        s_mov_b32 s15, 0x20000
        s_mul_i32 s42, s43, 10240
        s_add_u32 s42, s42, {WBASE}
        """)
        if glu:
            a(f"s_sub_u32 s40, s35, 10\ns_mul_i32 s40, s40, 160")
            for n in range(5):
                a(f"""
                v_add_u32 v22, {64*n}, v1
                v_mul_u32_u24 v23, 6554, v22
                v_lshrrev_b32 v23, 16, v23
                v_mul_u32_u24 v24, 10, v23
                v_sub_u32 v24, v22, v24
                v_and_b32 v25, 0x33, v23
                v_bfe_u32 v6, v23, 2, 1
                v_lshl_or_b32 v25, v6, 3, v25
                v_bfe_u32 v6, v23, 3, 1
                v_lshl_or_b32 v25, v6, 2, v25
                v_mul_u32_u24 v25, 3456, v25
                v_lshl_add_u32 v{WVO[n]}, v24, 4, v25
                """)
        else:
            a(f"""
            s_mul_i32 s40, s35, {64*1280}
            v_xor_b32 v23, v30, v21
            v_mul_u32_u24 v24, 1280, v20
            v_lshl_add_u32 v2, v23, 4, v24
            v_xor_b32 v3, 64, v2
            v_add_u32 v3, {8*1280}, v3
            v_add_u32 v4, {16*1280}, v2
            v_add_u32 v5, {16*1280}, v3
            """)
    def hdma(st):
        for c, n in pcs:
            a(f"s_add_u32 m0, s42, {(st % 3)*SLOT + c*5120 + n*1024}\ns_add_u32 s41, s40, {st*KADV + c*32*(3456 if glu else 1280)}\nbuffer_load_dwordx4 v{WVO[n]}, s[12:15], s41 offen lds")
    wsetup()
    stats_a()
    q = []
    nxt = H0
    for s in range(10):
        if s >= H0:
            last = max(i for i, t in enumerate(q) if t == s)
            a(f"s_waitcnt vmcnt({len(q) - 1 - last})")
        a.stamp(2 + s)
        a("s_barrier")
        a.stamp(16 + s)
        if s == 0: get_epoch(); stats_b()
        while nxt <= min(9, s + 2 - (1 if s in DEF else 0)):
            hdma(nxt); q += [nxt]*len(pcs); nxt += 1
        if s == 8: q += ["g"]*NG
        if s <= 5 and "norc" not in EXP: remote_colsum(s)
        if ("side", s) in hooks: hooks[("side", s)]()
        if s == 8: gather_issue()
        if s >= 6: colsum(s, 32)
    pick(32)
    a.stamp(12)
    a(f"""
    s_mov_b64 s[32:33], 0xffff
    s_mul_i32 s65, s43, {NJ*64}
    v_add_u32 v22, s65, v19
    v_add_u32 v22, {LDS_CS}, v22
    s_lshl_b32 s65, s43, 9
    v_add_u32 v23, s65, v19
    v_add_u32 v23, {LDS_STA}, v23
    s_mov_b32 s67, 0
    v_mov_b32 v84, s95
    v_mov_b32 v85, 0
    v_mov_b32 v86, 0
    v_mov_b32 v87, 0
    v_mov_b32 v88, {LDS_SYNC}
    ds_write_b128 v88, v[84:87]
    ds_write_b64 v88, v[86:87] offset:16
    ds_write_b64 v88, v[86:87] offset:24
    s_waitcnt vmcnt(0)
    """)
    lp = a.newlabel("K1_GP"); lo = a.newlabel("K1_GO")
    a.label(lp)
    tags = [27, 29] + [61+2*r for r in range(6)]
    a(f"v_cmp_eq_u32 s[68:69], s95, v{tags[0]}")
    for t in tags[1:]: a(f"v_cmp_eq_u32 vcc, s95, v{t}\ns_and_b64 s[68:69], s[68:69], vcc")
    if glu:
        for r in range(6): a(f"v_cmp_eq_u32 vcc, s95, v{73+2*r}\ns_or_b64 vcc, vcc, 0xffffffffffff0000\ns_and_b64 s[68:69], s[68:69], vcc" if False else
                             f"v_cmp_eq_u32 vcc, s95, v{73+2*r}\ns_orn2_b64 vcc, vcc, s[32:33]\ns_and_b64 s[68:69], s[68:69], vcc")
    a(f"""
    s_cmp_eq_u64 s[68:69], -1
    s_cbranch_scc1 {lo}
    s_add_u32 s67, s67, 1
    s_cmp_ge_u32 s67, 100000
    s_cbranch_scc1 {lo}
    s_sleep 4
    """)
    gather_issue()
    a(f"s_waitcnt vmcnt(0)\ns_branch {lp}")
    a.label(lo)
    a("""
    v_lshlrev_b32 v27, 16, v26
    v_lshlrev_b32 v29, 16, v28
    v_and_b32 v26, 0xffff0000, v26
    v_and_b32 v28, 0xffff0000, v28
    v_rcp_f32 v27, v27
    v_rcp_f32 v29, v29
    ds_write_b32 v23, v26 offset:1024
    ds_write_b32 v23, v28 offset:1280
    ds_write_b32 v23, v27
    ds_write_b32 v23, v29 offset:256
    """)
    for r in range(6):
        a(f"v_add_f32 v24, v24, v{60+2*r}")
        if glu: a(f"v_add_f32 v25, v25, v{72+2*r}")
    a("ds_write_b32 v22, v24")
    if glu: a("s_mov_b64 exec, 0xffff\nds_write_b32 v22, v25 offset:256\ns_mov_b64 exec, -1")
    a.stamp(13)
    a("s_waitcnt lgkmcnt(0)\ns_barrier")
    a.stamp(14)

PFD = int(os.environ.get("PFD", "4"))
PF0 = int(os.environ.get("PF0", "2"))
def prefetch_setup(a, glu):
    if not PF: return {}
    KADV = 64*3456 if glu else 128
    p0, p1 = (56, 58) if glu else (48, 50)
    a(f"""
    s_cmp_eq_u32 s3, 0
    s_cselect_b32 s12, s{p0}, s{p1}
    s_cselect_b32 s13, s{p0+1}, s{p1+1}
    s_mov_b32 s14, {D*F*2 if glu else P*D*2}
    s_mov_b32 s15, 0x20000
    s_mov_b32 s81, {KADV}
    s_lshr_b32 s82, s61, 3
    s_lshl_b32 s82, s82, 4
    """)
    if glu:
        a(f"""
        s_mul_i32 s80, s82, 3456
        s_mul_i32 s82, s63, 160
        s_add_u32 s80, s80, s82
        v_mul_u32_u24 v14, 3456, v31
        v_bfe_u32 v15, v1, 4, 1
        v_mul_u32_u24 v15, 156, v15
        v_add_u32 v14, v14, v15
        s_mov_b32 s83, 32
        """)
    else:
        a(f"""
        s_lshl_b32 s80, s63, 6
        s_add_u32 s80, s80, s82
        s_mul_i32 s80, s80, 1280
        v_mul_u32_u24 v14, 1280, v31
        s_mov_b32 s83, 16
        """)
    a(f"""
    s_lshl_b32 s82, s62, 8
    s_and_b32 s84, s61, 7
    s_lshl_b32 s84, s84, 5
    s_add_u32 s82, s82, s84
    s_mul_i32 s82, s82, 1280
    v_mul_u32_u24 v15, 1280, v1
    s_cmp_eq_u32 s3, 2
    s_cselect_b32 s12, s8, s12
    s_cselect_b32 s13, s9, s13
    s_cselect_b32 s14, s10, s14
    s_cselect_b32 s80, s82, s80
    s_cselect_b32 s81, 128, s81
    s_cselect_b32 s83, 32, s83
    s_cselect_b64 vcc, -1, 0
    s_cmp_eq_u32 s3, 3
    s_cselect_b32 s83, 0, s83
    v_cndmask_b32 v14, v14, v15, vcc
    v_cmp_gt_u32 vcc, s83, v1
    v_mov_b32 v15, 0x40000000
    s_nop 0
    v_cndmask_b32 v14, v15, v14, vcc
    """)
    def touch():
        a("s_add_u32 s80, s80, s81\nbuffer_load_dword v16, v14, s[12:15], s80 offen")
    for _ in range(LT - 1): a("s_add_u32 s80, s80, s81")
    for _ in range(PFD - LT): touch()
    return {"touch": touch}

def lds_spin(a, lab, va, off, cond, init=False, vt=4):
    if init: a(f"v_mov_b32 v{va}, {LDS_SYNC}")
    a("s_mov_b32 s67, 0")
    a.label(lab)
    a(f"""
    ds_read_b32 v{vt}, v{va} offset:{off}
    s_add_u32 s67, s67, 1
    s_waitcnt lgkmcnt(0)
    v_readfirstlane_b32 s66, v{vt}
    {cond}
    s_cbranch_scc1 {lab}_OK
    s_cmp_ge_u32 s67, 1000000
    s_cbranch_scc1 {lab}_OK
    s_sleep 1
    s_branch {lab}
    """)
    a.label(lab + "_OK")

def consumer_flag(a):
    srd(a, 20, 4, FLG_BYTES, WS_FLG)
    a(f"""
    s_lshl_b32 s66, s62, 2
    s_add_u32 s66, s66, s3
    s_lshl_b32 s66, s66, 8
    s_lshl_b32 s67, s35, 2
    s_add_u32 s66, s66, s67
    v_mov_b32 v2, 0
    v_mov_b32 v3, s95
    v_mov_b32 v4, {LDS_SYNC}
    v_mov_b32 v5, 1
    s_mov_b64 exec, 1
    s_mov_b32 s47, 0
    s_mov_b32 s67, 0
    """)
    a.stamp(16)
    a("""
    s_waitcnt vmcnt(0)
    buffer_store_dword v3, v2, s[20:23], s66 offen sc1
    ds_add_u32 v4, v5 offset:12
    s_mov_b64 exec, -1
    s_setprio 0
    """)
    a.stamp(17)
    a.label("K1_CW")
    a("""
    ds_read_b32 v6, v4 offset:12
    s_add_u32 s67, s67, 1
    s_waitcnt lgkmcnt(0)
    v_readfirstlane_b32 s66, v6
    s_and_b32 s66, s66, 15
    s_cmp_ge_u32 s66, 4
    s_cbranch_scc1 K1_P2
    s_cmp_ge_u32 s67, 1000000
    s_cbranch_scc1 K1_P2
    s_sleep 1
    s_branch K1_CW
    """)

M2MAP = ['''s_bfe_u32 s49, s50, 0x10003
    s_lshl_b32 s49, s49, 2
    s_bfe_u32 s65, s50, 0x20001
    s_add_u32 s49, s49, s65
    s_lshr_b32 s48, s50, 4
    s_lshl_b32 s48, s48, 1
    s_and_b32 s65, s50, 1
    s_add_u32 s48, s48, s65''',
    's_and_b32 s49, s50, 7\ns_lshr_b32 s48, s50, 3',
    '''s_lshr_b32 s49, s50, 3
    s_lshl_b32 s49, s49, 1
    s_bfe_u32 s65, s50, 0x10002
    s_add_u32 s49, s49, s65
    s_and_b32 s48, s50, 3'''][M2]
def phase2(a):
    PA = 16
    def pacc(j, i): return PA + 4*(j*4 + i)
    HB = 96
    def hreg(n, i): return HB + 16*(n % NH) + 4*i
    def bH(n, i): return vr(hreg(n, i), 4)
    WV = HB + 16*NH; nwv = (192 - WV)//20
    assert 20*(NW - nwv) <= 60
    def wreg(n, j):
        b = n % NW
        return vr(WV + 20*b + 4*j, 4) if b < nwv else ar(20*(b - nwv) + 4*j, 4)
    NK = 12
    a.label("K1_P2")
    a.vm = []
    a(f"""
    s_and_b32 s46, s3, 3
    s_mov_b32 s50, s35
    {M2MAP}
    s_lshl_b32 s51, s48, 6
    s_lshl_b32 s65, s62, 2
    s_add_u32 s48, s48, s65
    s_mul_i32 s52, s49, {5*NS2*1024}
    s_add_u32 s53, s52, {NS2*1024}
    s_add_u32 s54, s52, {2*NS2*1024}
    s_add_u32 s55, s52, {3*NS2*1024}
    s_add_u32 s56, s52, {4*NS2*1024}
    s_xor_b32 s65, s3, 2
    s_cmp_ge_u32 s3, 4
    s_cselect_b32 s65, s65, s3
    s_mul_i32 s36, s65, 20480
    s_movk_i32 s41, 4096
    s_cselect_b32 s40, s41, {(-81920) & 0xffffffff}
    s_cselect_b32 s41, 12288, s41
    s_mov_b32 s66, {76*1024}
    s_cselect_b32 s66, {40*1024}, s66
    s_cmp_eq_u32 s3, 3
    s_cselect_b32 s38, 0x40000000, 0
    s_sub_u32 s40, s40, s38
    s_add_u32 s38, s38, 4096
    s_cmp_eq_u32 s3, 7
    s_cselect_b32 s39, 0x40000000, 0
    s_add_u32 s39, s39, 4096
    s_lshl_b32 s65, s46, 10
    s_add_u32 s65, s65, s66
    v_lshlrev_b32 v2, 4, v1
    v_add_u32 v3, s65, v2
    v_mov_b32 v4, v3
    v_add_u32 v13, s36, v2
    v_and_b32 v5, 15, v1
    v_lshrrev_b32 v6, 4, v1
    v_mov_b32 v9, {LDS_SYNC}
    """)
    srd(a, 8, 4, HP_BYTES, WS_HP)
    srd(a, 12, 4, WP_BYTES, WS_WP)
    srd(a, 20, 4, FLG_BYTES, WS_FLG)
    for i in range(4):
        a(f"s_xor_b32 s65, s46, {i}\ns_lshl_b32 s66, s48, 2\ns_add_u32 s65, s65, s66\ns_mul_i32 s{32+i}, s65, {NS2*1024}")
    a(f"""
    s_lshl_b32 s65, s48, 6
    s_lshl_b32 s66, s46, 4
    s_add_u32 s65, s65, s66
    v_add_u32 v7, s65, v5
    v_lshlrev_b32 v12, 2, v6
    s_mul_i32 s66, s49, 80
    v_add_u32 v12, s66, v12
    v_mul_u32_u24 v7, 640, v7
    v_add_u32 v7, v7, v12
    v_lshlrev_b32 v8, 1, v7
    v_lshlrev_b32 v7, 2, v7
    v_lshlrev_b32 v12, 1, v12
    """)
    srd(a, 28, 100, L*D*4)
    def dma(n):
        for j in range(5):
            a(f"s_add_u32 m0, s36, {(n - NW)*5120 + j*1024}\ns_nop 0")
            a.vmem(f"buffer_load_dwordx4 v4, s[12:15], s{52+j} offen sc1 lds", ("W", n))
        a(f"v_add_u32 v4, { {0: 's38', 1: 's40', 8: 's41', 10: 's39'}.get(n, '4096')}, v4")
    def loadW(n, j):
        if NW <= n < NW + NL:
            a(f"ds_read_b128 {wreg(n, j)}, v13 offset:{(n - NW)*5120 + j*1024}")
            return
        a.vmem(f"buffer_load_dwordx4 {wreg(n, j)}, v4, s[12:15], s{52+j} offen sc1", ("W", n))
        if j == 4: a(f"v_add_u32 v4, { {0: 's38', 1: 's40', 8: 's41', 10: 's39'}.get(n, '4096')}, v4")
    def loadH(n):
        for i in range(4):
            a.vmem(f"buffer_load_dwordx4 {bH(n,i)}, v3, s[8:11], s{32+i} offen sc1", ("H", n))
        a(f"v_add_u32 v3, { {0: 's38', 1: 's40', 8: 's41', 10: 's39'}.get(n, '4096')}, v3")
    def wait_flags(tag, poller, off, mask, word):
        a(f"s_mov_b32 s67, 0\n{poller}\ns_cbranch_scc0 K1_P2SPIN{tag}")
        a.label(f"K1_P2POLL{tag}")
        a(f"""
        buffer_load_dword v6, v5, s[20:23], {off} offen sc1
        s_waitcnt vmcnt(0)
        v_cmp_eq_u32 vcc, s95, v6
        s_add_u32 s67, s67, 1
        {mask}
        s_cbranch_scc1 K1_P2SET{tag}
        s_cmp_ge_u32 s67, 100000
        s_cbranch_scc1 K1_P2SET{tag}
        s_sleep {PSL if tag == "W" else PSH}
        s_branch K1_P2POLL{tag}
        """)
        a.label(f"K1_P2SET{tag}")
        a(f"v_mov_b32 v6, 1\nds_write_b32 {word}, v6\ns_branch K1_P2GO{tag}".replace("@", ""))
        a.label(f"K1_P2SPIN{tag}")
        a(f"""
        ds_read_b32 v6, {word}
        s_add_u32 s67, s67, 1
        s_waitcnt lgkmcnt(0)
        v_readfirstlane_b32 s66, v6
        s_cmp_lg_u32 s66, 0
        s_cbranch_scc1 K1_P2GO{tag}
        s_cmp_ge_u32 s67, 1000000
        s_cbranch_scc1 K1_P2GO{tag}
        s_sleep 1
        s_branch K1_P2SPIN{tag}
        """)
        a.label(f"K1_P2GO{tag}")
    a("s_cmp_lt_u32 s3, 4\ns_cbranch_scc1 K1_P2W")
    EX = HB
    srd(a, 16, 6, XN_BYTES)
    srd(a, 24, 96, D*2)
    for jd in range(5):
        a(f"buffer_load_dwordx2 {vr(EX+2*jd,2)}, v8, s[16:19], 0 offen offset:{32*jd}")
        a(f"buffer_load_dwordx2 {vr(EX+10+2*jd,2)}, v12, s[24:27], 0 offen offset:{32*jd}")
    a(f"""
    v_bfe_u32 v14, v1, 1, 2
    v_lshlrev_b32 v14, 4, v14
    v_and_b32 v10, 1, v1
    v_lshl_add_u32 v14, v10, 1, v14
    v_bfe_u32 v10, v1, 3, 1
    v_add_u32 v14, v14, v10
    s_lshl_b32 s65, s46, 2
    v_add_u32 v14, s65, v14
    s_lshl_b32 s65, s46, 4
    v_add_u32 v10, s65, v5
    s_cmp_lt_u32 s50, 10
    s_cselect_b64 vcc, -1, 0
    v_cndmask_b32 v14, v10, v14, vcc
    v_add_u32 v14, s51, v14
    v_lshlrev_b32 v14, 2, v14
    v_add_u32 v14, {LDS_STA}, v14
    """)
    a.label("K1_P2BAR")
    a("""
    s_cmp_eq_u32 s47, 0
    s_cbranch_scc1 K1_P2E
    s_barrier
    s_sub_u32 s47, s47, 1
    s_branch K1_P2BAR
    """)
    a.label("K1_P2E")
    a(f"""
    ds_read_b32 v11, v14
    ds_read_b32 v10, v14 offset:1024
    ds_read_b32 v12, v9
    v_mov_b32 v14, 16
    s_waitcnt lgkmcnt(0)
    v_readfirstlane_b32 s95, v12
    s_mov_b64 exec, 1
    ds_add_u32 v9, v14 offset:12
    s_mov_b64 exec, -1
    """)
    a.label("K1_P2W")
    a(f"""
    v_lshlrev_b32 v5, 2, v1
    s_lshl_b32 s65, s49, 8
    s_add_u32 s65, s65, 8192
    v_add_u32 v14, 16, v9
    """)
    def ssm_hold(t):
        a(f"s_cmp_ge_u32 s50, 10\ns_cbranch_scc1 K1_HL{t}_OK")
        lds_spin(a, f"K1_HL{t}", 9, 24, "s_cmp_lg_u32 s66, 0", vt=6)
    a.stamp(21)
    if WS6 == 2: ssm_hold("A")
    wait_flags("W", "s_cmp_eq_u32 s3, 4", "s65", "s_cmp_eq_u64 vcc, -1", "v14")
    a.stamp(22)
    for n in range(NW):
        for j in range(5): loadW(n, j)
    if WS6 == 1: ssm_hold("A")
    for n in range(NW, NW + NL): dma(n)
    for r in range(PA, PA + 80): a(f"v_mov_b32 v{r}, 0")
    a(f"s_cmp_lt_u32 s3, 4\ns_cbranch_scc1 K1_P2W2\ns_waitcnt vmcnt({5*(NW + NL)})")
    for jd in range(5):
        for h in range(2):
            x = EX+2*jd+h; ds = EX+10+2*jd+h; T = pacc(jd, 0) + 2*h
            a(f"""
            v_lshlrev_b32 v14, 16, v{x}
            v_and_b32 v15, 0xffff0000, v{x}
            v_sub_f32 v12, v14, v10
            v_sub_f32 v8, v15, v10
            v_cvt_pk_bf16_f32 v12, v12, v8
            v_and_b32 v8, 0xffff0000, v12
            v_lshlrev_b32 v12, 16, v12
            v_mul_f32 v12, v12, v11
            v_mul_f32 v8, v8, v11
            v_cvt_pk_bf16_f32 v12, v12, v8
            v_and_b32 v8, 0xffff0000, v12
            v_lshlrev_b32 v12, 16, v12
            v_lshlrev_b32 v5, 16, v{ds}
            v_and_b32 v6, 0xffff0000, v{ds}
            v_mul_f32 v12, v12, v5
            v_mul_f32 v8, v8, v6
            v_cvt_pk_bf16_f32 v12, v12, v8
            v_and_b32 v8, 0xffff0000, v12
            v_lshlrev_b32 v12, 16, v12
            v_add_f32 v{T}, v12, v14
            v_add_f32 v{T+1}, v8, v15
            """)
    a.label("K1_P2W2")
    a(f"""
    v_add_u32 v10, 4, v9
    v_add_u32 v11, 8, v9
    v_and_b32 v5, 31, v1
    v_lshlrev_b32 v5, 2, v5
    s_lshl_b32 s65, s48, 8
    """)
    a.stamp(26)
    if os.environ.get("HOLD", "1") == "1": lds_spin(a, "K1_HD", 9, 12, "s_and_b32 s66, s66, 15\ns_cmp_ge_u32 s66, 4", vt=6)
    wait_flags("H", "s_cmp_eq_u32 s3, 4", "s65", "s_or_b32 s66, vcc_lo, 0x3ff\ns_cmp_eq_u32 s66, -1", "v10")
    a.stamp(27)
    loadH(0); loadH(1)
    a("s_cmp_ge_u32 s3, 4\ns_cbranch_scc1 K1_P2GOS")
    wait_flags("S", "s_cmp_eq_u32 s3, 0", "s65", "s_and_b32 s66, vcc_lo, 0x3ff\ns_cmp_eq_u32 s66, 0x3ff", "v11")
    a.stamp(23); a.lines.append("  ;@CSTAMP 24")
    for n in range(2, NH): loadH(n)
    PRI = os.environ.get("PRI", "")
    for n in range(NK):
        if PRI and n == 0:
            lp = a.newlabel("K1_PR"); a(f"s_cmp_lt_u32 s3, 4\ns_cbranch_scc1 {lp}\ns_setprio 2"); a.label(lp)
        if PRI and n == int(PRI): a("s_setprio 0")
        a.vmwait([("H", n), ("W", n)], "lgkmcnt(0)" if NW <= n < NW + NL else "")
        if n in (1, 5, 9): a.stamp(18 + n//4)
        sk = None
        if n in (1, 11):
            sk = a.newlabel("K1_P2SK")
            a(f"s_cmp_eq_u32 s3, {3 if n == 1 else 7}\ns_cbranch_scc1 {sk}")
        if n >= 9:
            lo = a.newlabel("K1_P2O"); le = a.newlabel("K1_P2X")
            h0 = hreg(n, 0)
            a(f"s_cmp_lt_u32 s3, 4\ns_cbranch_scc1 {le}\ns_bitcmp1_b32 s3, 0\ns_cbranch_scc1 {lo}")
            for p in range(2):
                for e in range(2): a(f"v_swap_b32 v{h0+8*p+2+e}, v{h0+8*p+4+e}")
            a(f"s_branch {le}")
            a.label(lo)
            for p in range(2):
                for e in range(2): a(f"v_swap_b32 v{h0+8*p+e}, v{h0+8*p+6+e}")
            a.label(le)
            a("s_nop 1")
        for j in range(5):
            for i in range(4):
                a(f"v_mfma_f32_16x16x32_bf16 {vr(pacc(j,i),4)}, {wreg(n, j)}, {bH(n,i)}, {vr(pacc(j,i),4)}")
            if n + NW < NK and j >= 1 and sk is None: loadW(n + NW, j - 1)
        if sk:
            a.label(sk)
            if n + NW < NK:
                for j in range(4): loadW(n + NW, j)
        if n + NH < NK: loadH(n + NH)
        if n + NW < NK: loadW(n + NW, 4)
    a.label("K1_P2FIN")
    a.stamp(28); a.lines.append("  ;@CSTAMP 25")
    a(f"""
    v_add_u32 v10, s36, v2
    s_mov_b32 s67, 0
    """)
    a.label("K1_P2G")
    a(f"""
    ds_read_b32 v6, v9 offset:12
    s_add_u32 s67, s67, 1
    s_waitcnt vmcnt(0) lgkmcnt(0)
    v_readfirstlane_b32 s66, v6
    s_cmp_ge_u32 s66, 68
    s_cbranch_scc1 K1_P2GD
    s_cmp_ge_u32 s67, 1000000
    s_cbranch_scc1 K1_P2GD
    s_sleep 1
    s_branch K1_P2G
    """)
    a.label("K1_P2GD")
    for i in range(1, 4):
        for j in range(5):
            a(f"ds_write_b128 v10, {vr(pacc(j,i),4)} offset:{((i-1)*5 + j)*1024}")
    RA = HB
    for m in range(1, 8):
        a(f"""
        s_xor_b32 s65, s3, {m}
        s_xor_b32 s66, s65, 2
        s_cmp_ge_u32 s65, 4
        s_cselect_b32 s65, s66, s65
        s_mul_i32 s65, s65, 20480
        s_add_u32 s65, s65, {(((m & 3) + 3) & 3)*5120}
        v_add_u32 v{RA+m-1}, s65, v2
        """)
    a("s_cmp_lt_u32 s3, 4\ns_cbranch_scc1 K1_P2FB")
    for grp in range(2):
        own = [0, 1, 2] if grp == 0 else [3, 4]
        oth = [3, 4] if grp == 0 else [0, 1, 2]
        if grp: a.label("K1_P2FB")
        for j in oth: a(f"ds_write_b128 v10, {vr(pacc(j,0),4)} offset:{(15 + j)*1024}")
        a("s_waitcnt lgkmcnt(0)\ns_barrier")
        a.stamp(29)
        D0 = HB + 8
        for x, j in enumerate(own):
            for m in range(7):
                a(f"ds_read_b128 {vr(D0+28*x+4*m,4)}, v{RA+m} offset:{j*1024}")
        for x, j in enumerate(own):
            rem = 7*(len(own) - 1 - x)
            d = D0 + 28*x; T = pacc(j, 0)
            a(f"s_waitcnt lgkmcnt({min(15, rem + 3)})")
            for h in range(2):
                a(f"v_pk_add_f32 {vr(d+2*h,2)}, {vr(d+2*h,2)}, {vr(d+4+2*h,2)}")
                a(f"v_pk_add_f32 {vr(d+8+2*h,2)}, {vr(d+8+2*h,2)}, {vr(d+12+2*h,2)}")
            for h in range(2): a(f"v_pk_add_f32 {vr(T+2*h,2)}, {vr(T+2*h,2)}, {vr(d+2*h,2)}")
            for h in range(2): a(f"v_pk_add_f32 {vr(T+2*h,2)}, {vr(T+2*h,2)}, {vr(d+8+2*h,2)}")
            a(f"s_waitcnt lgkmcnt({min(15, rem)})")
            for h in range(2): a(f"v_pk_add_f32 {vr(d+16+2*h,2)}, {vr(d+16+2*h,2)}, {vr(d+20+2*h,2)}")
            for h in range(2): a(f"v_pk_add_f32 {vr(T+2*h,2)}, {vr(T+2*h,2)}, {vr(d+24+2*h,2)}")
            for h in range(2): a(f"v_pk_add_f32 {vr(T+2*h,2)}, {vr(T+2*h,2)}, {vr(d+16+2*h,2)}")
            a(f"buffer_store_dwordx4 {vr(T,4)}, v7, s[28:31], 0 offen offset:{64*j} sc1")
        a.stamp(30)
        a("s_endpgm")

XM = int(os.environ.get("XM", "0"))
XMAP = ["s_lshr_b32 s62, s60, 2\ns_and_b32 s63, s60, 3",
        "s_and_b32 s62, s60, 1\ns_lshr_b32 s63, s60, 1\ns_add_u32 s63, s63, 2\ns_and_b32 s63, s63, 3",
        "s_and_b32 s62, s60, 1\ns_lshr_b32 s63, s60, 1"][XM]
def gen_k1():
    a = Asm()
    a.raw(".p2align 8\n.type gemm1_kernel,@function\ngemm1_kernel:")
    a(f"""
    s_cmp_ge_u32 s2, 256
    s_cbranch_scc1 K1_END
    s_load_dwordx2 s[4:5], s[0:1], {KA['ws']}
    s_load_dwordx2 s[6:7], s[0:1], {KA['x']}
    s_load_dwordx4 s[44:47], s[0:1], {KA['lre']}
    s_load_dwordx4 s[48:51], s[0:1], {KA['bre']}
    s_load_dwordx2 s[52:53], s[0:1], {KA['ldt']}
    s_load_dwordx2 s[54:55], s[0:1], {KA['dbg']}
    s_load_dwordx4 s[56:59], s[0:1], {KA['wg']}
    s_load_dwordx2 s[96:97], s[0:1], {KA['dsk']}
    s_load_dwordx2 s[100:101], s[0:1], {KA['out']}
    v_and_b32 v1, 63, v0
    v_lshrrev_b32 v2, 6, v0
    s_nop 0
    v_readfirstlane_b32 s3, v2
    s_and_b32 s60, s2, 7
    s_lshr_b32 s61, s2, 3
    {XMAP}
    s_lshl_b32 s62, s62, 2
    s_lshr_b32 s64, s61, 3
    s_add_u32 s62, s62, s64
    s_lshl_b32 s63, s63, 3
    s_and_b32 s64, s61, 7
    s_add_u32 s63, s63, s64
    s_mov_b32 s35, s63
    s_waitcnt lgkmcnt(0)
    """)
    srd(a, 8, 6, XN_BYTES)
    a("""
    s_sub_u32 s65, s3, 4
    s_cmp_ge_u32 s65, 2
    s_cbranch_scc1 K1_NOTLOADER
    """)
    loader_code(a)
    a.label("K1_NOTLOADER")
    if os.environ.get("CPF", "1") == "1":
        a(f"""
        s_cmp_lg_u32 s3, 3
        s_cbranch_scc1 K1_NOCPF
        s_getpc_b64 s[66:67]
        K1_PCREF:
        s_sub_u32 s66, s66, K1_PCREF-gemm1_kernel
        s_subb_u32 s67, s67, 0
        s_lshl_b32 s65, s61, 11
        v_lshlrev_b32 v14, 7, v1
        v_add_u32 v14, s65, v14
        v_cmp_gt_u32 vcc, CODE_END-gemm1_kernel, v14
        s_and_b64 exec, vcc, 0xffff
        s_cbranch_execz K1_CPFSKIP
        global_load_dword v15, v14, s[66:67]
        K1_CPFSKIP:
        s_mov_b64 exec, -1
        K1_NOCPF:
        """)
    srd(a, 16, 4, HP_BYTES, WS_HP)
    srd(a, 76, 4, AGG_BYTES, WS_AGG)
    a(f"""
    v_lshrrev_b32 v30, 4, v1
    v_and_b32 v31, 15, v1
    v_lshrrev_b32 v10, 1, v31
    v_xor_b32 v10, v10, v30
    v_lshlrev_b32 v11, 7, v31
    v_lshl_add_u32 v10, v10, 4, v11
    v_bfe_u32 v14, v1, 2, 2
    v_bfe_u32 v15, v1, 4, 1
    v_lshl_add_u32 v14, v15, 2, v14
    v_bfe_u32 v15, v1, 5, 1
    v_lshl_add_u32 v14, v15, 4, v14
    v_mul_u32_u24 v14, 160, v14
    v_and_b32 v15, 3, v1
    v_lshl_add_u32 v11, v15, 3, v14
    s_cmp_ge_u32 s3, 4
    s_cbranch_scc1 K1_HELPER
    """)
    a(f"""
    s_lshl_b32 s65, s3, 13
    v_add_u32 v2, s65, v10
    v_xor_b32 v3, 64, v2
    v_add_u32 v4, 32768, v2
    v_add_u32 v5, 32768, v3
    v_add_u32 v6, 65536, v2
    v_add_u32 v7, 65536, v3
    s_lshl_b32 s64, s62, 4
    s_lshl_b32 s65, s3, 2
    s_add_u32 s64, s64, s65
    s_mul_i32 s64, s64, {NS2*1024}
    v_lshlrev_b32 v12, 4, v1
    s_cmp_lt_u32 s63, 10
    s_cbranch_scc1 K1_SSM
    """)
    a(f"""
    s_sub_u32 s63, s63, 10
    v_add_u32 v8, {WBASE}, v11
    s_lshr_b32 s65, s63, 1
    s_and_b32 s66, s63, 1
    s_lshl_b32 s67, s65, 2
    s_lshl_b32 s68, s66, 1
    s_add_u32 s67, s67, s68
    s_add_u32 s67, s67, 40
    s_lshl_b32 s67, s67, 10
    s_add_u32 s70, s67, s64
    s_add_u32 s71, s70, 1024
    s_cmp_eq_u32 s63, 21
    s_cselect_b32 s71, 0x40000000, s71
    s_add_u32 s67, s65, 84
    s_lshl_b32 s67, s67, 10
    s_mul_i32 s68, s66, {NS2*1024}
    s_add_u32 s67, s67, s68
    s_add_u32 s72, s67, s64
    """)
    consumer_loop(a, True, prefetch_setup(a, True))
    a(f"""
    s_lshl_b32 s65, s3, 8
    v_lshlrev_b32 v2, 2, v31
    v_add_u32 v2, s65, v2
    v_add_u32 v2, {LDS_STA}, v2
    v_lshlrev_b32 v3, 4, v30
    v_add_u32 v3, {LDS_CS}, v3
    """)
    for i in range(4):
        a(f"ds_read_b32 v{4+i}, v2 offset:{64*i}")
        a(f"ds_read_b32 v{8+i}, v2 offset:{1024+64*i}")
    a(f"v_mov_b32 v15, {LDS_SYNC}\nds_read_b32 v14, v15")
    a("s_cmp_eq_u32 s66, 1\ns_waitcnt lgkmcnt(0)\nv_readfirstlane_b32 s95, v14")
    for i in range(4): a(f"v_mul_f32 v{4+i}, v{4+i}, v{4+i}")
    a("s_cbranch_scc1 K1_GLU_ODD")
    for odd in range(2):
        if odd: a.label("K1_GLU_ODD")
        groups = [(4,), (0, 1), (2, 3)] if not odd else [(0,), (1, 2), (3, 4)]
        k = 0
        for gi, grp in enumerate(groups):
            for x, j in enumerate(grp):
                a(f"ds_read_b128 {vr(14+8*x,4)}, v3 offset:{64*j}")
                a(f"ds_read_b128 {vr(18+8*x,4)}, v3 offset:{320+64*j}")
            a("s_waitcnt lgkmcnt(0)")
            for i in range(4):
                mi = 8 + (i & ~1); msel = i & 1
                ai = 4 + (i & ~1)
                sel = f"op_sel:[0,{msel},0] op_sel_hi:[1,{msel},1] neg_lo:[0,1,0] neg_hi:[0,1,0]"
                sel2 = f"op_sel:[0,{msel}] op_sel_hi:[1,{msel}]"
                for x, j in enumerate(grp):
                    G = acc(i, j); U = acc(i, 5+j)
                    for h in range(2):
                        a(f"v_pk_fma_f32 {vr(G+2*h,2)}, {vr(14+8*x+2*h,2)}, {vr(mi,2)}, {vr(G+2*h,2)} {sel}")
                        a(f"v_pk_fma_f32 {vr(U+2*h,2)}, {vr(18+8*x+2*h,2)}, {vr(mi,2)}, {vr(U+2*h,2)} {sel}")
                    for h in range(2):
                        a(f"v_pk_mul_f32 {vr(G+2*h,2)}, {vr(G+2*h,2)}, {vr(U+2*h,2)}")
                    for h in range(2):
                        a(f"v_pk_mul_f32 {vr(G+2*h,2)}, {vr(G+2*h,2)}, {vr(ai,2)} {sel2}")
                if gi == 0:
                    T = acc(i & ~1, 5+grp[0]); G = acc(i, grp[0]); o = 2*(i & 1)
                    a(f"v_cvt_pk_bf16_f32 v{T+o}, v{G}, v{G+1}")
                    a(f"v_cvt_pk_bf16_f32 v{T+o+1}, v{G+2}, v{G+3}")
                    if i & 1:
                        a(f"s_add_u32 s75, s72, {(i-1)*NS2*1024}")
                        a(f"buffer_store_dwordx4 {vr(T,4)}, v12, s[16:19], s75 offen{ST}")
                    continue
                T = acc(i, 5+grp[0])
                for x, j in enumerate(grp):
                    G = acc(i, j)
                    a(f"v_cvt_pk_bf16_f32 v{T+2*x}, v{G}, v{G+1}")
                    a(f"v_cvt_pk_bf16_f32 v{T+2*x+1}, v{G+2}, v{G+3}")
                a(f"s_add_u32 s75, s{69+gi}, {i*NS2*1024}")
                a(f"buffer_store_dwordx4 {vr(T,4)}, v12, s[16:19], s75 offen{ST}")
        if odd == 0: a("s_branch K1_CFLAG")
    a.label("K1_CFLAG")
    consumer_flag(a)
    a.label("K1_SSM")
    a.lg = []
    a(f"""
    v_add_u32 v8, {WBASE}, v10
    v_xor_b32 v9, 64, v8
    s_lshl_b32 s65, s63, 12
    s_add_u32 s64, s64, s65
    """)
    consumer_loop(a, False, prefetch_setup(a, False))
    LAM = 14
    a(f"""
    v_lshlrev_b32 v13, 4, v31
    v_add_u32 v13, {LDS_LAM}, v13
    s_lshl_b32 s65, s3, 8
    v_lshlrev_b32 v2, 4, v30
    v_add_u32 v2, s65, v2
    v_add_u32 v2, {LDS_STA}, v2
    v_lshlrev_b32 v3, 2, v31
    v_add_u32 v3, {LDS_CS}, v3
    """)
    for i in range(4):
        a(f"ds_read_b128 {vr(160+4*i,4)}, v2 offset:{64*i}")
        a(f"ds_read_b128 {vr(176+4*i,4)}, v2 offset:{1024+64*i}")
    for jj in range(8):
        a(f"ds_read_b32 v{4+jj}, v3 offset:{64*jj}")
    a(f"v_mov_b32 v15, {LDS_SYNC}\nds_read_b32 v14, v15")
    a("s_waitcnt lgkmcnt(0)\nv_readfirstlane_b32 s95, v14")
    for j in range(4):
        a(f"ds_read_b128 {vr(LAM+4*j,4)}, v13 offset:{256*j}")
    for j in range(4):
        for jj in (j, 4+j):
            cs = 4 + (jj & ~1); sl = jj & 1
            for i in range(4):
                A = acc(i, jj)
                for h in range(2):
                    a(f"v_pk_fma_f32 {vr(A+2*h,2)}, {vr(176+4*i+2*h,2)}, {vr(cs,2)}, {vr(A+2*h,2)} op_sel:[0,{sl},0] op_sel_hi:[1,{sl},1] neg_lo:[0,1,0] neg_hi:[0,1,0]")
            for i in range(4):
                A = acc(i, jj)
                for h in range(2):
                    a(f"v_pk_mul_f32 {vr(A+2*h,2)}, {vr(A+2*h,2)}, {vr(160+4*i+2*h,2)}")
    a(f"""
    s_lshl_b32 s65, s3, 2
    v_add_u32 v10, s65, v30
    v_lshlrev_b32 v10, 9, v10
    v_lshl_add_u32 v10, v31, 3, v10
    v_add_u32 v10, {LDS_E16}, v10
    s_waitcnt lgkmcnt(0)
    """)
    def BR(j, sg): return acc(sg >> 1, j) + 2*(sg & 1)
    def BI(j, sg): return acc(sg >> 1, 4+j) + 2*(sg & 1)
    E = 160
    def ER(q, j): return E + 16*q + 4*j
    def EI(q, j): return E + 16*q + 4*j + 2
    def step(dR, dI, pR, pI, bR, bI, lam):
        return [
          f"v_pk_fma_f32 {vr(dR,2)}, {vr(lam,2)}, {vr(pR,2)}, {vr(bR,2)} op_sel_hi:[0,1,1]",
          f"v_pk_fma_f32 {vr(dI,2)}, {vr(lam,2)}, {vr(pI,2)}, {vr(bI,2)} op_sel_hi:[0,1,1]",
          f"v_pk_fma_f32 {vr(dR,2)}, {vr(lam,2)}, {vr(pI,2)}, {vr(dR,2)} op_sel:[1,0,0] op_sel_hi:[1,1,1] neg_lo:[1,0,0] neg_hi:[1,0,0]",
          f"v_pk_fma_f32 {vr(dI,2)}, {vr(lam,2)}, {vr(pR,2)}, {vr(dI,2)} op_sel:[1,0,0] op_sel_hi:[1,1,1]"]
    for sg in range(1, 8):
        q = sg & 1
        cols = []
        for j in range(4):
            pR, pI = (BR(j, 0), BI(j, 0)) if sg == 1 else (ER(q ^ 1, j), EI(q ^ 1, j))
            cols.append(step(ER(q, j), EI(q, j), pR, pI, BR(j, sg), BI(j, sg), LAM+4*j))
        for k in range(4):
            for j in range(4): a(cols[j][k])
    for j in range(4):
        c = ER(0, j); r = ER(1, j); im = EI(1, j); l8 = LAM+4*j+2
        a(f"""
        v_fma_f32 v{c}, v{l8}, v{r}, v{r+1}
        v_fma_f32 v{c+1}, v{l8}, v{im}, v{im+1}
        v_fma_f32 v{c}, -v{l8+1}, v{im}, v{c}
        v_fma_f32 v{c+1}, v{l8+1}, v{r}, v{c+1}
        ds_write_b64 v10, {vr(c,2)} offset:{128*j}
        """)
    a(f"""
    s_mul_i32 s65, s3, 18432
    v_mul_u32_u24 v2, 144, v31
    v_lshl_add_u32 v2, v30, 5, v2
    v_add_u32 v2, s65, v2
    v_bfe_u32 v3, v1, 2, 2
    v_lshl_add_u32 v3, v30, 3, v3
    v_mul_u32_u24 v3, 144, v3
    v_and_b32 v4, 3, v1
    v_lshl_add_u32 v3, v4, 3, v3
    v_add_u32 v3, s65, v3
    v_mov_b32 v13, {LDS_SYNC}
    v_mov_b32 v4, 1
    s_mov_b64 exec, 1
    ds_add_u32 v13, v4 offset:20
    s_mov_b64 exec, -1
    """)
    a.stamp(13)
    a(f"v_lshlrev_b32 v13, 3, v31\nv_add_u32 v13, {LDS_UV}, v13")
    for j in range(4):
        a(f"ds_read_b64 {vr([4,6,8,170][j],2)}, v13 offset:{128*j}")
    a("s_waitcnt lgkmcnt(0)")
    for j in range(4):
        U = [4,6,8,170][j]
        allp = [(acc(i, j)+2*h, acc(i, 4+j)+2*h) for i in range(4) for h in range(2)] + [(ER(1, j), EI(1, j))]
        for prs in (allp[:5], allp[5:]):
            for k, (R, I) in enumerate(prs):
                a(f"v_pk_mul_f32 {vr(160+2*k,2)}, {vr(R,2)}, {vr(U,2)} op_sel:[0,1] op_sel_hi:[1,1]")
            for k, (R, I) in enumerate(prs):
                a(f"v_pk_mul_f32 {vr(R,2)}, {vr(R,2)}, {vr(U,2)} op_sel:[0,0] op_sel_hi:[1,0]")
            for k, (R, I) in enumerate(prs):
                a(f"v_pk_fma_f32 {vr(R,2)}, {vr(I,2)}, {vr(U,2)}, {vr(R,2)} op_sel:[0,1,0] op_sel_hi:[1,1,1] neg_lo:[0,1,0] neg_hi:[0,1,0]")
            for k, (R, I) in enumerate(prs):
                a(f"v_pk_fma_f32 {vr(I,2)}, {vr(I,2)}, {vr(U,2)}, {vr(160+2*k,2)} op_sel:[0,0,0] op_sel_hi:[1,0,1]")
    a.stamp(15)
    lds_spin(a, "K1_SS", 13, 24, "s_cmp_lg_u32 s66, 0", init=True)
    a.stamp(14)
    for j in range(4):
        h = ER(0, j)
        a(f"ds_read_b32 v{h}, v10 offset:{LDS_S-LDS_E16+128*j}")
        a(f"ds_read_b32 v{h+2}, v10 offset:{LDS_S-LDS_E16+128*j+4}")
    a("s_waitcnt lgkmcnt(0)")
    for j in range(4):
        h = ER(0, j); l8 = LAM+4*j+2
        a(f"""
        v_fma_f32 v{h+1}, v{l8}, v{h}, v{ER(1,j)}
        v_fma_f32 v{h+3}, v{l8}, v{h+2}, v{EI(1,j)}
        v_fma_f32 v{h+1}, -v{l8+1}, v{h+2}, v{h+1}
        v_fma_f32 v{h+3}, v{l8+1}, v{h}, v{h+3}
        """)
    for sg in range(8):
        cols = []
        for j in range(4):
            pR, pI = (ER(0, j), EI(0, j)) if sg == 0 else (BR(j, sg-1), BI(j, sg-1))
            cols.append(step(BR(j, sg), BI(j, sg), pR, pI, BR(j, sg), BI(j, sg), LAM+4*j))
        for k in range(4):
            for j in range(4): a(cols[j][k])
    for jj in range(8):
        im, j = divmod(jj, 4)
        t = 160 + 8*(jj % 4)
        for i in range(4):
            A = acc(i, jj)
            ng = "-" if im else ""
            a(f"v_cvt_pk_bf16_f32 v{t+i}, {ng}v{A}, {ng}v{A+2}")
            a(f"v_cvt_pk_bf16_f32 v{t+4+i}, {ng}v{A+1}, {ng}v{A+3}")
        o = (32*(2*im + (j >> 1)) + 16*(j & 1))*144
        a(f"ds_write_b128 v2, {vr(t,4)} offset:{o}")
        a(f"ds_write_b128 v2, {vr(t+4,4)} offset:{o+16}")
    a("s_waitcnt lgkmcnt(0)")
    for i in range(4):
        for j in range(4):
            d = ACC + 4*(i*4+j)
            for h in range(2):
                a(f"ds_read_b64_tr_b16 {vr(d+2*h,2)}, v3 offset:{(32*j+4*h)*144 + 32*i}")
    k = 0
    for i in range(4):
        for j in range(4):
            d = ACC + 4*(i*4+j)
            k += 1
            a(f"s_waitcnt lgkmcnt({min(15, 32-2*k)})")
            a(f"s_add_u32 s65, s64, {(i*NS2 + j)*1024}")
            a(f"buffer_store_dwordx4 {vr(d,4)}, v12, s[16:19], s65 offen{ST}")
    a("s_branch K1_CFLAG")
    a.label("K1_HELPER")
    a(f"""
    s_and_b32 s43, s3, 1
    s_lshl_b32 s64, s62, 8
    s_lshl_b32 s65, s43, 7
    s_add_u32 s64, s64, s65
    v_lshrrev_b32 v20, 3, v1
    v_and_b32 v21, 7, v1
    """)
    a(f"""
    s_cmp_lt_u32 s63, 10
    s_cbranch_scc1 K1_HSSM
    s_mul_i32 s66, s43, 10240
    s_add_u32 s66, s66, {WBASE}
    v_add_u32 v18, s66, v11
    v_add_u32 v53, s64, v1
    v_lshlrev_b32 v53, 3, v53
    """)
    helper_loop(a, True, {})
    a("s_mov_b32 s47, 0\ns_branch K1_P2")
    a.label("K1_HSSM")
    LR = 85
    def preload():
        srd(a, 20, 44, P*2); srd(a, 24, 46, P*2); srd(a, 28, 52, P*2)
        a(f"""
        s_lshl_b32 s65, s63, 7
        v_lshlrev_b32 v22, 1, v1
        v_add_u32 v22, s65, v22
        s_lshl_b32 s90, s63, 13
        s_lshl_b32 s91, s62, 10
        s_add_u32 s91, s91, s90
        buffer_load_ushort v{LR}, v22, s[20:23], 0 offen
        buffer_load_ushort v{LR+1}, v22, s[24:27], 0 offen
        buffer_load_ushort v{LR+2}, v22, s[28:31], 0 offen
        """)
    LM = 8; L16 = 188; L256 = 190
    def csq(d, s, t=22):
        a(f"""
        v_mul_f32 v{t}, v{s+1}, v{s+1}
        v_mul_f32 v{t+1}, v{s}, v{s+1}
        v_fma_f32 v{d}, v{s}, v{s}, -v{t}
        v_add_f32 v{d+1}, v{t+1}, v{t+1}
        """)
    def pre():
        lam_calc(a, LR, LR+1, LR+2, 148, LM, LM+1, coef=(6, 7))
        a(f"""
        v_add_f32 v6, v6, v6
        v_add_f32 v7, v7, v7
        v_lshlrev_b32 v22, 3, v1
        v_add_u32 v22, {LDS_UV}, v22
        ds_write_b64 v22, v[6:7]
        """)
    def pre2():
        csq(LM+2, LM); csq(LM+2, LM+2); csq(LM+2, LM+2)
        csq(L16, LM+2)
        csq(L256, L16); csq(L256, L256); csq(L256, L256); csq(L256, L256)
        a(f"""
        v_lshlrev_b32 v22, 4, v1
        v_add_u32 v23, {LDS_LAM}, v22
        ds_write_b128 v23, {vr(LM,4)}
        s_waitcnt lgkmcnt(0)
        """)
    a(f"""
    s_mul_i32 s67, s43, 10240
    s_add_u32 s67, s67, {WBASE}
    v_add_u32 v18, s67, v10
    v_xor_b32 v16, 64, v18
    v_bfe_u32 v53, v1, 2, 2
    v_lshlrev_b32 v53, 4, v53
    v_and_b32 v22, 1, v1
    v_lshl_add_u32 v53, v22, 3, v53
    v_bfe_u32 v22, v1, 1, 1
    v_add_u32 v53, v53, v22
    v_lshl_add_u32 v53, v30, 1, v53
    v_add_u32 v53, s64, v53
    v_lshlrev_b32 v53, 3, v53
    """)
    helper_loop(a, False, {"preload": preload, ("side", 1): pre, ("side", 4): pre2})
    a("s_mov_b32 s47, 0\ns_cmp_lg_u32 s43, 0\ns_cbranch_scc1 K1_P2")
    a(f"""
    v_lshlrev_b32 v22, 4, v1
    v_lshlrev_b32 v23, 3, v1
    v_add_u32 v23, {LDS_E16}, v23
    v_add_u32 v24, 4096, v22
    """)
    if os.environ.get("CPRI", "1") == "1": a("s_setprio 3")
    lds_spin(a, "K1_SE", 25, 20, "s_cmp_ge_u32 s66, 4", init=True)
    EV = 32
    def ev(R): return EV + 2*R
    for R in range(16):
        a(f"ds_read_b64 {vr(ev(R),2)}, v23 offset:{512*R}")
    def cfma(d, lam, s, add):
        a(f"""
        v_fma_f32 v{d}, v{lam}, v{s}, v{add}
        v_fma_f32 v{d+1}, v{lam}, v{s+1}, v{add+1}
        v_fma_f32 v{d}, -v{lam+1}, v{s+1}, v{d}
        v_fma_f32 v{d+1}, v{lam+1}, v{s}, v{d+1}
        """)
    A0, A1 = 96, 100
    a(f"v_mov_b32 v{A0+2}, s95\nv_mov_b32 v{A0+3}, 0")
    a("s_waitcnt lgkmcnt(0)")
    cur = ev(0)
    for R in range(1, 16):
        d = A0 if (R & 1) else A1
        cfma(d, L16, cur, ev(R)); cur = d
    assert cur == A0
    a(f"""
    buffer_store_dwordx4 {vr(A0,4)}, v22, s[76:79], s91 offen sc1
    s_mov_b32 s67, 0
    s_cmp_eq_u32 s62, 0
    s_cbranch_scc1 K1_POLLOK
    """)
    PV = 64
    a.label("K1_POLL")
    for rb in range(7):
        a(f"buffer_load_dwordx4 {vr(PV+4*rb,4)}, v{22 if rb < 4 else 24}, s[76:79], s90 offen offset:{1024*(rb%4)} sc1")
    a("s_waitcnt vmcnt(0)\ns_mov_b64 s[68:69], -1")
    lab = a.newlabel("K1_CHK")
    for rb in range(7):
        a(f"""
        s_cmp_le_u32 s62, {rb}
        s_cbranch_scc1 {lab}
        v_cmp_eq_u32 vcc, s95, v{PV+4*rb+2}
        s_and_b64 s[68:69], s[68:69], vcc
        """)
    a.label(lab)
    a(f"""
    s_cmp_eq_u64 s[68:69], -1
    s_cbranch_scc1 K1_POLLOK
    s_add_u32 s67, s67, 1
    s_cmp_lt_u32 s67, 100000
    s_sleep 1
    s_cbranch_scc1 K1_POLL
    """)
    a.label("K1_POLLOK")
    a("v_mov_b32 v104, 0\nv_mov_b32 v105, 0")
    lab = a.newlabel("K1_CAR")
    for rb in range(7):
        a(f"s_cmp_le_u32 s62, {rb}\ns_cbranch_scc1 {lab}")
        cfma(106, L256, 104, PV+4*rb)
        a("v_mov_b32 v104, v106\nv_mov_b32 v105, v107")
    a.label(lab)
    cur = 104
    for R in range(16):
        t = 108 + 2*(R & 1)
        a(f"""
        v_mul_f32 v{t}, v6, v{cur}
        v_mul_f32 v{t+1}, v6, v{cur+1}
        v_fma_f32 v{t}, -v7, v{cur+1}, v{t}
        v_fma_f32 v{t+1}, v7, v{cur}, v{t+1}
        """)
        if R < 15:
            d = A0 if (R & 1) else A1
            cfma(d, L16, cur, ev(R)); cur = d
        a(f"ds_write_b64 v23, {vr(t,2)} offset:{LDS_S-LDS_E16+512*R}")
    a("v_mov_b32 v4, 1\nds_write_b32 v25, v4 offset:24\ns_mov_b32 s47, 0\ns_setprio 0")
    phase2(a)
    a.label("K1_END")
    a("s_endpgm")
    return a.text(), kd("gemm1_kernel", 192+60, 102, 192), f"; @launch kernel=gemm1_kernel grid=(256,1,1) block=(512,1,1) lds={LDS_TOTAL}"
```

```python
from gen_common import *
import os
EXP = os.environ.get('EXP', '')
LTD = os.environ.get('LTD', '0') == '1'
PF = os.environ.get('PF', '0' if LTD else '1') == '1'

ACC = 32
TBA = tuple(int(x) for x in os.environ.get("TBA", "1,0").split(",")) if os.environ.get("TBA", "1,0") else None
XBASE = 0
WBASE = 98304
SPARE = 159744
LDS_TOTAL = 163840
LDS_E16 = 73728
LDS_S = LDS_E16
LDS_LAM = SPARE
LDS_STA = SPARE + 1024
LDS_STM = SPARE + 2048
LDS_CS = SPARE + 3072
LDS_UV = SPARE + 3584
LDS_SYNC = 158720
WS_FLG = 0x1760000
FLG_BYTES = 16384
M2 = int(os.environ.get("M2", "0"))
PSL = int(os.environ.get("PSL", "8")); PSH = int(os.environ.get("PSH", "4")); WS6 = int(os.environ.get("WS6", "0"))
NH = int(os.environ.get("NH", "3")); NW = int(os.environ.get("NW", "5")); NL = int(os.environ.get("NL", "3"))
RPS = int(os.environ.get("RPS", "7"))
DEF = [int(x) for x in os.environ.get("DEF", "1,4").split(",") if x]
TAG = 0x5ca1ab1e
DBG_RB = 0
DBG_CT = 8
ST = " sc1"
WRN = 6

def acc(i, jj): return ACC + 4*(jj*4 + i)
def XF(par, i): return 16*par + 4*i
def WR(phi): return 32 + 4*(phi % WRN)

def consumer_loop(a, glu, hooks={}):
    NJ = 5 if glu else 4
    NJ2 = 2*NJ
    SLOT = 20480
    P3 = 6*NJ2
    def wread(phi, last=False):
        n, jj = divmod(phi, NJ2)
        if last and n >= 2: return
        s, ks = (n >> 1) % 3, n & 1
        mat, j = divmod(jj, NJ)
        off = s*SLOT
        if glu:
            for h in range(2):
                o = off + mat*10240 + (8*h + 32*ks)*160 + 32*j
                a.lds(f"ds_read_b64_tr_b16 {ar(WR(phi) + 2*h, 2)}, v8 offset:{o}", ("W", phi % P3))
        else:
            a.lds(f"ds_read_b128 {ar(WR(phi), 4)}, v{8+ks} offset:{off + mat*10240 + j*2048 + (1024 if j >= 2 else 0)}", ("W", phi % P3))
    def xread(n, i, last=False):
        if last and n >= 2: return
        s, ks = (n >> 1) % 3, n & 1
        a.lds(f"ds_read_b128 {ar(XF(n & 1, i), 4)}, v{2 + s*2 + ks} offset:{i*2048}", ("X", n % 6))
    BJ = NJ2 - 3
    def kstep(n, last=False):
        ks = n & 1
        for jj in range(NJ2):
            phi = n*NJ2 + jj
            if ks == 1 and jj == BJ and not last:
                a.lgwait_all()
                a("s_mul_i32 s86, s87, 3") if os.environ.get("CST") else None
                a.dstamp(17 + (n >> 1), "s86") if os.environ.get("CST") else None
                a("s_barrier")
                if "touch" in hooks and not TBA:
                    lt = a.newlabel("K1_CT")
                    a(f"s_cmp_ge_u32 s87, {(9 - PFD - (n >> 1) - 1)//3 + 1}\ns_cbranch_scc1 {lt}")
                    hooks["touch"]()
                    a.label(lt)
            if TBA and "touch" in hooks and not last and (n, jj) == TBA:
                lt = a.newlabel("K1_CT")
                a(f"s_cmp_ge_u32 s87, 2\ns_cbranch_scc1 {lt}")
                for _ in range(3): hooks["touch"]()
                a.label(lt)
            a.lgwait([("W", phi % P3), ("X", n % 6)])
            todo = []
            if ks == 0:
                todo.append(("w", phi + 4))
                if 2 <= jj < 6: todo.append(("x", n + 1, jj - 2))
            else:
                if jj + 4 < NJ2: todo.append(("w", phi + 4))
                elif jj == BJ: todo += [("w", phi + 3), ("x", n+1, 0), ("w", phi + 4), ("x", n+1, 1)]
                elif jj == BJ + 1: todo += [("w", phi + 4), ("x", n+1, 2), ("x", n+1, 3)]
                elif jj == BJ + 2: todo.append(("w", phi + 4))
            for i in range(4):
                c = vr(acc(i, jj), 4)
                xa = ar(XF(n & 1, i), 4); wa = ar(WR(phi), 4)
                if glu: a(f"v_mfma_f32_16x16x32_bf16 {c}, {wa}, {xa}, {c}")
                else:   a(f"v_mfma_f32_16x16x32_bf16 {c}, {xa}, {wa}, {c}")
                if todo:
                    t = todo.pop(0)
                    if t[0] == "w": wread(t[1], last)
                    else: xread(t[1], t[2], last)
            assert not todo
    a.stamp(1)
    for r in range(ACC, ACC + 16*NJ2): a(f"v_mov_b32 v{r}, 0")
    a("s_mov_b32 s87, 0")
    a("s_barrier")
    a.stamp(2); a.lines.append("  ;@CSTAMP 3")
    if "touch" in hooks and not TBA: hooks["touch"]()
    wread(0); xread(0, 0); wread(1); xread(0, 1); wread(2); xread(0, 2); xread(0, 3); wread(3)
    entry = list(a.lg)
    lab = a.newlabel("K1_CL")
    a.label(lab)
    for n in range(6): kstep(n)
    assert a.lg == entry, (a.lg, entry)
    a(f"s_add_u32 s87, s87, 1\ns_cmp_lt_u32 s87, 3\ns_cbranch_scc1 {lab}")
    a.stamp(11); a.lines.append("  ;@CSTAMP 4")
    kstep(0, True); kstep(1, True)
    a("s_waitcnt vmcnt(0)")
    a.stamp(12)
    if os.environ.get("CPRI", "1") == "1": a("s_setprio 3")
    a("s_barrier")

NLW = int(os.environ.get("NLW", "3"))
LT = int(os.environ.get("LT", "3"))
def loader_code(a):
    if os.environ.get("LPRI", "0") == "1": a("s_setprio 3")
    a(f"""
    s_and_b32 s43, s3, 1
    v_and_b32 v31, 15, v1
    s_lshr_b32 s65, s61, 3
    s_lshl_b32 s65, s65, 4
    s_mov_b32 s15, 0x20000
    s_cmp_lt_u32 s63, 10
    s_cselect_b64 vcc, -1, 0
    s_cbranch_scc1 K1_LT_SSM
    s_sub_u32 s63, s63, 10
    s_cmp_eq_u32 s43, 0
    s_cselect_b32 s12, s56, s58
    s_cselect_b32 s13, s57, s59
    s_mov_b32 s14, {D*F*2}
    s_mul_i32 s40, s63, 160
    s_mov_b32 s33, {64*3456}
    s_mul_i32 s65, s65, 3456
    v_mul_u32_u24 v22, 3456, v31
    v_bfe_u32 v23, v1, 4, 1
    v_mul_u32_u24 v23, 156, v23
    v_add_u32 v22, v22, v23
    s_mov_b32 exec_lo, -1
    s_branch K1_LT_GO
    """)
    a.label("K1_LT_SSM")
    a(f"""
    s_cmp_eq_u32 s43, 0
    s_cselect_b32 s12, s48, s50
    s_cselect_b32 s13, s49, s51
    s_mov_b32 s14, {P*D*2}
    s_mul_i32 s40, s63, {64*1280}
    s_mov_b32 s33, 128
    s_mul_i32 s65, s65, 1280
    v_mul_u32_u24 v22, 1280, v31
    s_mov_b32 exec_lo, 0xffff
    """)
    a.label("K1_LT_GO")
    a(f"""
    s_mov_b32 exec_hi, 0
    s_add_u32 s65, s65, s40
    s_lshl_b32 s66, s62, 8
    s_and_b32 s67, s61, 7
    s_lshl_b32 s67, s67, 5
    s_add_u32 s66, s66, s67
    s_lshl_b32 s67, s43, 4
    s_add_u32 s66, s66, s67
    s_mul_i32 s66, s66, 1280
    v_mul_u32_u24 v23, 1280, v31
    """)
    a.stamp(12)
    for t in range(LT):
        a(f"buffer_load_dword v{26+t}, v22, s[12:15], s65 offen\nbuffer_load_dword v{40+t}, v23, s[8:11], s66 offen offset:{128*t}\ns_add_u32 s65, s65, s33")
    a(f"""
    s_mov_b64 exec, -1
    v_mov_b32 v17, v22
    v_mul_u32_u24 v18, 1280, v31
    s_mov_b32 s88, s65
    s_add_u32 s89, s66, {128*LT}
    s_lshl_b32 s64, s62, 8
    s_lshl_b32 s65, s43, 7
    s_add_u32 s64, s64, s65
    s_mul_i32 s20, s64, 1280
    s_lshl_b32 s41, s43, 14
    v_lshrrev_b32 v20, 3, v1
    v_and_b32 v21, 7, v1
    s_movk_i32 s66, {16*1280}
    s_movk_i32 s67, {8*1280}
    s_cmp_lg_u64 vcc, 0
    s_cselect_b32 s66, {2*1280}, s66
    v_lshrrev_b32 v23, 4, v1
    v_xor_b32 v23, v23, v21
    v_bfe_u32 v24, v1, 5, 1
    v_lshlrev_b32 v24, 4, v24
    v_bfe_u32 v25, v1, 3, 1
    v_lshl_add_u32 v24, v25, 3, v24
    v_bfe_u32 v25, v1, 4, 1
    v_add_u32 v24, v24, v25
    v_cndmask_b32 v24, v20, v24, vcc
    v_mul_u32_u24 v24, 1280, v24
    v_lshl_add_u32 v4, v23, 4, v24
    s_cselect_b32 s67, {32*1280}, s67
    v_xor_b32 v5, 64, v4
    v_add_u32 v5, s67, v5
    s_add_u32 s21, s20, s66
    s_add_u32 s22, s21, s66
    s_add_u32 s23, s22, s66
    s_add_u32 s24, s20, {64*1280}
    s_add_u32 s25, s21, {64*1280}
    s_add_u32 s26, s22, {64*1280}
    s_add_u32 s27, s23, {64*1280}
    s_mov_b32 s36, 0
    s_mov_b32 s37, s41
    s_mul_i32 s42, s43, 10240
    s_add_u32 s42, s42, {WBASE}
    s_mov_b32 s30, s42
    s_add_u32 s31, s30, 5120
    s_cbranch_vccnz K1_LW_SSM
    s_mov_b32 s39, {32*3456}
    s_mov_b32 s34, 0
    """)
    for n in range(5):
        a(f"""
        v_add_u32 v22, {64*n}, v1
        v_mul_u32_u24 v23, 6554, v22
        v_lshrrev_b32 v23, 16, v23
        v_mul_u32_u24 v24, 10, v23
        v_sub_u32 v24, v22, v24
        v_and_b32 v25, 0x33, v23
        v_bfe_u32 v6, v23, 2, 1
        v_lshl_or_b32 v25, v6, 3, v25
        v_bfe_u32 v6, v23, 3, 1
        v_lshl_or_b32 v25, v6, 2, v25
        v_mul_u32_u24 v25, 3456, v25
        v_lshl_add_u32 v{12+n}, v24, 4, v25
        """)
    a("s_branch K1_LW_GO")
    a.label("K1_LW_SSM")
    a(f"""
    s_mov_b32 s39, {32*1280}
    s_mov_b32 s34, 0x40000000
    v_mul_u32_u24 v24, 1280, v20
    v_lshl_add_u32 v12, v23, 4, v24
    v_xor_b32 v13, 64, v12
    v_add_u32 v13, {8*1280}, v13
    v_add_u32 v14, {16*1280}, v12
    v_add_u32 v15, {16*1280}, v13
    v_mov_b32 v16, v12
    """)
    a.label("K1_LW_GO")
    def xdma(lo, hi):
        for k in range(lo, hi):
            c, q = divmod(k, 8)
            a(f"s_add_u32 m0, s37, {c*8192 + q*1024}\ns_add_u32 s68, s{20 + 4*c + (q >> 1)}, s36\nbuffer_load_dwordx4 v{4+(q & 1)}, s[8:11], s68 offen lds")
    def wdma(c, cnt=5):
        if cnt: a(f"s_add_u32 s69, s40, s39" if c else "s_mov_b32 s69, s40")
        for n in range(cnt):
            if n == 4: a("s_add_u32 s69, s69, s34")
            a(f"s_add_u32 m0, s{30+c}, {n*1024}\ns_nop 0\nbuffer_load_dwordx4 v{12+n}, s[12:15], s69 offen lds")
    def adv():
        a(f"""
        s_add_u32 s40, s40, s33
        s_add_u32 s36, s36, 128
        s_add_u32 s37, s37, 32768
        s_add_u32 s30, s30, 20480
        s_cmp_ge_u32 s37, 98304
        s_cselect_b32 s37, s41, s37
        s_cselect_b32 s30, s42, s30
        s_add_u32 s31, s30, 5120
        """)
    NV = 26
    def ltouch():
        if LTD: a("buffer_load_dword v19, v17, s[12:15], s88 offen\nbuffer_load_dword v19, v18, s[8:11], s89 offen\ns_add_u32 s88, s88, s33\ns_add_u32 s89, s89, 128")
    NT = 4 if LTD else 0
    a(f"s_load_dwordx4 s[80:83], s[0:1], {KA['cre']}\ns_load_dwordx2 s[84:85], s[0:1], {KA['wd']}")
    a(f"s_waitcnt vmcnt({2*LT-2})")
    a.stamp(1)
    xdma(0, 16); wdma(0); wdma(1); adv()
    a(f"s_waitcnt vmcnt({NV//2})")
    xdma(0, 13)
    a(f"s_waitcnt vmcnt(13)\ns_mov_b32 s87, 0")
    a.stamp(2)
    a("s_barrier")
    a.stamp(16)
    xdma(13, 16); wdma(0); wdma(1); adv(); ltouch()
    a.label("K1_LL")
    xdma(0, 16); wdma(0, NLW); adv(); ltouch()
    NF = NV; NV = 16 + NLW
    a(f"s_cmp_lg_u32 s87, {RPS}\ns_cbranch_scc1 K1_LNR")
    repack_issue(a)
    a.label("K1_LNR")
    a(f"s_add_u32 s87, s87, 1")
    a.dstamp(16, "s87")
    a(f"s_waitcnt vmcnt({NV + NT})")
    a.dstamp(2, "s87")
    a("s_barrier")
    a("s_cmp_lt_u32 s87, 8\ns_cbranch_scc1 K1_LL")
    if RPS <= 6:
        a(f"s_waitcnt vmcnt({NV + NT//2})")
        repack_finish(a)
        a(f"s_waitcnt vmcnt({10 + NT//2})")
    else:
        a("s_waitcnt vmcnt(11)")
    a.stamp(11)
    a("s_barrier")
    a.stamp(25)
    if RPS > 6:
        a("s_waitcnt vmcnt(0)")
        repack_finish(a)
        a("s_barrier")
    a("""
    s_mov_b64 exec, 1
    s_waitcnt vmcnt(0)
    buffer_store_dword v46, v2, s[20:23], s66 offen sc1
    s_mov_b64 exec, -1
    """)
    a.stamp(13)
    a(f"s_mov_b32 s47, {1 if RPS <= 6 else 0}\ns_setprio 0\ns_branch K1_P2")

def repack_issue(a):
    a(f"""
    s_waitcnt lgkmcnt(0)
    s_lshl_b32 s70, s35, 1
    s_add_u32 s70, s70, s43
    s_mul_i32 s65, s70, 40960
    s_mul_i32 s66, s62, 160
    s_add_u32 s65, s65, s66
    """)
    srd(a, 72, 54, 256)
    a("v_mov_b32 v40, 0\nbuffer_load_dword v46, v40, s[72:75], 0 offen sc1")
    srd(a, 72, 84, F*D*2)
    for n in range(5):
        a(f"""
        v_add_u32 v40, {64*n}, v1
        v_mul_u32_u24 v41, 6554, v40
        v_lshrrev_b32 v41, 16, v41
        v_mul_u32_u24 v42, 10, v41
        v_sub_u32 v42, v40, v42
        v_mul_u32_u24 v41, 1280, v41
        v_lshl_add_u32 v40, v42, 4, v41
        buffer_load_dwordx4 {vr(48+4*n,4)}, v40, s[72:75], s65 offen
        """)
    a(f"""
    s_sub_u32 s71, 63, s70
    s_bitcmp1_b32 s71, 1
    s_cselect_b32 s76, s82, s80
    s_cselect_b32 s77, s83, s81
    s_mov_b32 s78, {D*P*2}
    s_mov_b32 s79, 0x20000
    s_lshr_b32 s65, s71, 2
    s_lshl_b32 s65, s65, 7
    s_and_b32 s66, s71, 1
    s_lshl_b32 s66, s66, 6
    s_add_u32 s65, s65, s66
    s_mul_i32 s66, s62, {80*1280}
    s_add_u32 s65, s65, s66
    s_cmp_lt_u32 s71, 40
    s_cselect_b32 s65, s65, 0x40000000
    v_mul_u32_u24 v40, 1280, v31
    v_lshrrev_b32 v41, 4, v1
    v_lshl_add_u32 v40, v41, 4, v40
    """)
    for dt in range(5):
        a(f"buffer_load_dwordx4 {vr(68+4*dt,4)}, v40, s[76:79], s65 offen\ns_add_u32 s65, s65, {16*1280}")

def repack_finish(a):
    srd(a, 16, 4, WP_BYTES, WS_WP)
    srd(a, 20, 4, FLG_BYTES, WS_FLG)
    a(f"""
    s_mul_i32 s65, s43, 5120
    s_add_u32 s65, s65, {WBASE + 20480}
    v_lshlrev_b32 v2, 4, v1
    v_add_u32 v3, s65, v2
    v_lshrrev_b32 v6, 4, v1
    v_bfe_u32 v4, v1, 2, 2
    v_lshl_add_u32 v4, v6, 2, v4
    v_mul_u32_u24 v4, 160, v4
    v_and_b32 v5, 3, v1
    v_lshl_add_u32 v4, v5, 3, v4
    v_add_u32 v4, s65, v4
    """)
    for n in range(5): a(f"ds_write_b128 v3, {vr(48+4*n,4)} offset:{1024*n}")
    a(f"""
    s_mul_i32 s68, s62, {5*NS2*1024}
    s_lshl_b32 s65, s71, 10
    s_add_u32 s65, s65, s68
    s_cmp_lt_u32 s71, 40
    s_cselect_b32 s65, s65, 0x40000000
    s_waitcnt lgkmcnt(0)
    """)
    for dt in range(5):
        for h in range(2): a(f"ds_read_b64_tr_b16 {vr(88+4*dt+2*h,2)}, v4 offset:{2560*h + 32*dt}")
    for dt in range(5):
        a(f"buffer_store_dwordx4 {vr(68+4*dt,4)}, v2, s[16:19], s65 offen sc1\ns_add_u32 s65, s65, {NS2*1024}")
    a(f"""
    s_mul_i32 s65, s70, 52429
    s_lshr_b32 s65, s65, 18
    s_mul_i32 s66, s65, 5
    s_sub_u32 s66, s70, s66
    s_add_u32 s67, s70, 2
    s_mul_i32 s67, s67, 52429
    s_lshr_b32 s67, s67, 18
    s_sub_u32 s67, s70, s67
    s_add_u32 s67, s67, 40
    s_add_u32 s65, s65, 84
    s_cmp_eq_u32 s66, 2
    s_cselect_b32 s65, s65, s67
    s_lshl_b32 s65, s65, 10
    s_add_u32 s65, s65, s68
    s_cmp_lt_u32 s70, 54
    s_cselect_b32 s65, s65, 0x40000000
    s_waitcnt lgkmcnt(0)
    """)
    for dt in range(5):
        a(f"buffer_store_dwordx4 {vr(88+4*dt,4)}, v2, s[16:19], s65 offen sc1\ns_add_u32 s65, s65, {NS2*1024}")
    a(f"""
    s_lshl_b32 s66, s70, 2
    s_lshl_b32 s67, s62, 8
    s_add_u32 s66, s66, s67
    s_add_u32 s66, s66, 8192
    v_mov_b32 v2, 0
    """)

def helper_loop(a, glu, hooks={}):
    NJ = 5 if glu else 4
    SLOT = 20480
    NG = 14 if glu else 8
    def colsum(s, dst):
        off = (s % 3)*SLOT
        for ks in range(2):
            for j in range(NJ):
                r = 88 + 20*ks + 4*j
                if glu:
                    for h in range(2): a(f"ds_read_b64_tr_b16 {vr(r+2*h,2)}, v18 offset:{off + (8*h + 32*ks)*160 + 32*j}")
                else:
                    a(f"ds_read_b128 {vr(r,4)}, v{18 if ks == 0 else 16} offset:{off + j*2048 + (1024 if j >= 2 else 0)}")
            if ks == 0 and glu: a("s_waitcnt lgkmcnt(2)")
        for ks in range(2):
            a(f"s_waitcnt lgkmcnt({(2*NJ if glu else NJ) if ks == 0 else 0})")
            for j in range(NJ):
                a(f"v_mfma_f32_16x16x32_bf16 {vr(dst+4*j,4)}, v[56:59], {vr(88+20*ks+4*j,4)}, {vr(dst+4*j,4)}")
    def pick(dst):
        a(f"s_nop 7\nv_mov_b32 v24, v{dst}")
        for g in range(1, 4):
            a(f"v_cmp_eq_u32 vcc, {g}, v30\ns_nop 1\nv_cndmask_b32 v24, v24, v{dst+4*g}, vcc")
        if glu: a(f"v_mov_b32 v25, v{dst+16}")
    def remote_colsum(s):
        l4 = a.newlabel("K1_LC")
        a(f"s_cmp_lg_u32 s62, {s}\ns_cbranch_scc1 {l4}")
        colsum(s, 128); pick(128)
        a("v_mov_b32 v22, v24\nv_mov_b32 v23, s95\nbuffer_store_dwordx2 v[22:23], v17, s[28:31], s93 offen sc1")
        if glu: a("v_mov_b32 v28, v25\nv_mov_b32 v29, s95\ns_mov_b64 exec, 0xffff\nbuffer_store_dwordx2 v[28:29], v17, s[28:31], s93 offen offset:512 sc1\ns_mov_b64 exec, -1")
        a.label(l4)
    def red16(v):
        for r in (8, 4, 2, 1):
            a(f"s_nop 1\nv_add_f32_dpp v{v}, v{v}, v{v} row_ror:{r} row_mask:0xf bank_mask:0xf")
    inv640 = 0x3acccccd
    U = 148
    def stats_a():
        a("s_waitcnt vmcnt(0)")
        for k in range(20):
            a(f"v_lshlrev_b32 v{U+2*k}, 16, v{60+k}\nv_and_b32 v{U+1+2*k}, 0xffff0000, v{60+k}")
        a(f"v_pk_add_f32 v[22:23], {vr(U,2)}, {vr(U+2,2)}\nv_pk_add_f32 v[28:29], {vr(U+4,2)}, {vr(U+6,2)}")
        for k in range(U+8, U+40, 4):
            a(f"v_pk_add_f32 v[22:23], v[22:23], v[{k}:{k+1}]\nv_pk_add_f32 v[28:29], v[28:29], v[{k+2}:{k+3}]")
        a("v_pk_add_f32 v[22:23], v[22:23], v[28:29]\ns_nop 0\nv_add_f32 v22, v22, v23")
        red16(22)
        a(f"v_mul_f32 v80, {inv640:#x}, v22\nbuffer_load_dword v52, v55, s[20:23], 0 offen sc1")
    def stats_b():
        for k in range(U, U+40, 2):
            a(f"v_pk_add_f32 v[{k}:{k+1}], v[{k}:{k+1}], v[80:81] op_sel_hi:[1,0] neg_lo:[0,1] neg_hi:[0,1]")
        a(f"v_pk_mul_f32 v[22:23], {vr(U,2)}, {vr(U,2)}\nv_pk_mul_f32 v[28:29], {vr(U+2,2)}, {vr(U+2,2)}")
        for k in range(U+4, U+40, 4):
            a(f"v_pk_fma_f32 v[22:23], v[{k}:{k+1}], v[{k}:{k+1}], v[22:23]\nv_pk_fma_f32 v[28:29], v[{k+2}:{k+3}], v[{k+2}:{k+3}], v[28:29]")
        a("v_pk_add_f32 v[22:23], v[22:23], v[28:29]\ns_nop 0\nv_add_f32 v25, v22, v23")
        red16(25)
        a(f"v_mul_f32 v25, {inv640:#x}, v25")
        bf16r(a, 25, 25)
        a("v_add_f32 v25, 0x3727c5ac, v25")
        bf16r(a, 25, 25)
        a("""
        v_sqrt_f32 v25, v25
        s_nop 0
        v_cvt_pk_bf16_f32 v24, v25, v80
        v_mov_b32 v25, s95
        s_mov_b32 exec_lo, 0x10001
        s_mov_b32 exec_hi, 0x10001
        buffer_store_dwordx2 v[24:25], v26, s[24:27], 0 offen sc1
        s_mov_b64 exec, -1
        """)
    def gather_issue():
        a("buffer_load_dwordx2 v[26:27], v53, s[24:27], 0 offen sc1")
        a("buffer_load_dwordx2 v[28:29], v53, s[24:27], 0 offen offset:512 sc1")
        for r in range(6):
            a(f"s_add_u32 s66, s92, {r*1280}")
            a(f"buffer_load_dwordx2 {vr(60+2*r,2)}, v17, s[28:31], s66 offen sc1")
            if glu: a(f"buffer_load_dwordx2 {vr(72+2*r,2)}, v17, s[28:31], s66 offen offset:512 sc1")
    def get_epoch():
        lp = a.newlabel("K1_EP"); lo = a.newlabel("K1_EO")
        a("s_mov_b32 s67, 0")
        a.label(lp)
        a(f"""
        s_waitcnt vmcnt(0)
        v_readfirstlane_b32 s95, v52
        s_add_u32 s67, s67, 1
        s_cmp_lg_u32 s95, 0
        s_cbranch_scc1 {lo}
        s_sleep 4
        buffer_load_dword v52, v55, s[20:23], 0 offen sc1
        s_cmp_lt_u32 s67, 100000
        s_cbranch_scc1 {lp}
        """)
        a.label(lo)
    a(f"""
    s_lshl_b32 s66, s62, 8
    s_lshl_b32 s67, s35, 3
    s_add_u32 s66, s66, s67
    s_lshl_b32 s67, s43, 2
    s_add_u32 s66, s66, s67
    s_mul_i32 s94, s66, 1280
    v_mul_u32_u24 v54, 1280, v30
    v_lshl_add_u32 v54, v31, 4, v54
    v_add_u32 v26, s66, v30
    v_lshlrev_b32 v26, 3, v26
    """)
    for q in range(5):
        a(f"buffer_load_dwordx4 {vr(60+4*q,4)}, v54, s[8:11], s94 offen offset:{256*q}")
    if "preload" in hooks: hooks["preload"]()
    srd(a, 20, 54, 256)
    le = a.newlabel("K1_E0")
    a(f"""
    v_mov_b32 v55, 0
    s_or_b32 s66, s2, s43
    s_cmp_lg_u32 s66, 0
    s_cbranch_scc1 {le}
    s_memrealtime s[66:67]
    s_waitcnt lgkmcnt(0)
    s_or_b32 s66, s66, 1
    v_mov_b32 v52, s66
    s_mov_b64 exec, 1
    buffer_store_dword v52, v55, s[20:23], 0 offen sc1
    s_mov_b64 exec, -1
    """)
    a.label(le)
    srd(a, 24, 4, L*8, WS_STAT); srd(a, 28, 4, CSP_BYTES, WS_CSP)
    for r in range(32, 52): a(f"v_mov_b32 v{r}, 0")
    for r in range(128, 148): a(f"v_mov_b32 v{r}, 0")
    for r in range(56, 60): a(f"v_mov_b32 v{r}, 0x3f803f80")
    a(f"""
    s_lshl_b32 s92, s35, 3
    s_add_u32 s93, s92, s62
    s_lshl_b32 s93, s93, 1
    s_add_u32 s93, s93, s43
    s_mul_i32 s93, s93, 640
    s_lshl_b32 s92, s92, 1
    s_add_u32 s92, s92, s43
    s_mul_i32 s92, s92, 640
    v_lshlrev_b32 v19, 2, v1
    v_lshlrev_b32 v17, 3, v1
    """)
    WVO = [2, 3, 4, 5, 12]
    pcs = [(c, n) for c in range(2) for n in range(NJ) if c == 1 or n >= NLW]
    p0, p1 = (56, 58) if glu else (48, 50)
    KADV = 64*3456 if glu else 128
    def wsetup():
        a(f"""
        s_cmp_eq_u32 s43, 0
        s_cselect_b32 s12, s{p0}, s{p1}
        s_cselect_b32 s13, s{p0+1}, s{p1+1}
        s_mov_b32 s14, {D*F*2 if glu else P*D*2}
        s_mov_b32 s15, 0x20000
        s_mul_i32 s42, s43, 10240
        s_add_u32 s42, s42, {WBASE}
        """)
        if glu:
            a(f"s_sub_u32 s40, s35, 10\ns_mul_i32 s40, s40, 160")
            for n in range(5):
                a(f"""
                v_add_u32 v22, {64*n}, v1
                v_mul_u32_u24 v23, 6554, v22
                v_lshrrev_b32 v23, 16, v23
                v_mul_u32_u24 v24, 10, v23
                v_sub_u32 v24, v22, v24
                v_and_b32 v25, 0x33, v23
                v_bfe_u32 v6, v23, 2, 1
                v_lshl_or_b32 v25, v6, 3, v25
                v_bfe_u32 v6, v23, 3, 1
                v_lshl_or_b32 v25, v6, 2, v25
                v_mul_u32_u24 v25, 3456, v25
                v_lshl_add_u32 v{WVO[n]}, v24, 4, v25
                """)
        else:
            a(f"""
            s_mul_i32 s40, s35, {64*1280}
            v_xor_b32 v23, v30, v21
            v_mul_u32_u24 v24, 1280, v20
            v_lshl_add_u32 v2, v23, 4, v24
            v_xor_b32 v3, 64, v2
            v_add_u32 v3, {8*1280}, v3
            v_add_u32 v4, {16*1280}, v2
            v_add_u32 v5, {16*1280}, v3
            """)
    def hdma(st):
        for c, n in pcs:
            a(f"s_add_u32 m0, s42, {(st % 3)*SLOT + c*5120 + n*1024}\ns_add_u32 s41, s40, {st*KADV + c*32*(3456 if glu else 1280)}\nbuffer_load_dwordx4 v{WVO[n]}, s[12:15], s41 offen lds")
    wsetup()
    stats_a()
    q = []
    nxt = 2
    for s in range(10):
        if s >= 2:
            last = max(i for i, t in enumerate(q) if t == s)
            a(f"s_waitcnt vmcnt({len(q) - 1 - last})")
        a.stamp(2 + s)
        a("s_barrier")
        a.stamp(16 + s)
        if s == 0: get_epoch(); stats_b()
        while nxt <= min(9, s + 2 - (1 if s in DEF else 0)):
            hdma(nxt); q += [nxt]*len(pcs); nxt += 1
        if s == 8: q += ["g"]*NG
        if s <= 5 and "norc" not in EXP: remote_colsum(s)
        if ("side", s) in hooks: hooks[("side", s)]()
        if s == 8: gather_issue()
        if s >= 6: colsum(s, 32)
    pick(32)
    a.stamp(12)
    a(f"""
    s_mov_b64 s[32:33], 0xffff
    s_mul_i32 s65, s43, {NJ*64}
    v_add_u32 v22, s65, v19
    v_add_u32 v22, {LDS_CS}, v22
    s_lshl_b32 s65, s43, 9
    v_add_u32 v23, s65, v19
    v_add_u32 v23, {LDS_STA}, v23
    s_mov_b32 s67, 0
    v_mov_b32 v84, s95
    v_mov_b32 v85, 0
    v_mov_b32 v86, 0
    v_mov_b32 v87, 0
    v_mov_b32 v88, {LDS_SYNC}
    ds_write_b128 v88, v[84:87]
    ds_write_b64 v88, v[86:87] offset:16
    ds_write_b64 v88, v[86:87] offset:24
    s_waitcnt vmcnt(0)
    """)
    lp = a.newlabel("K1_GP"); lo = a.newlabel("K1_GO")
    a.label(lp)
    tags = [27, 29] + [61+2*r for r in range(6)]
    a(f"v_cmp_eq_u32 s[68:69], s95, v{tags[0]}")
    for t in tags[1:]: a(f"v_cmp_eq_u32 vcc, s95, v{t}\ns_and_b64 s[68:69], s[68:69], vcc")
    if glu:
        for r in range(6): a(f"v_cmp_eq_u32 vcc, s95, v{73+2*r}\ns_or_b64 vcc, vcc, 0xffffffffffff0000\ns_and_b64 s[68:69], s[68:69], vcc" if False else
                             f"v_cmp_eq_u32 vcc, s95, v{73+2*r}\ns_orn2_b64 vcc, vcc, s[32:33]\ns_and_b64 s[68:69], s[68:69], vcc")
    a(f"""
    s_cmp_eq_u64 s[68:69], -1
    s_cbranch_scc1 {lo}
    s_add_u32 s67, s67, 1
    s_cmp_ge_u32 s67, 100000
    s_cbranch_scc1 {lo}
    s_sleep 4
    """)
    gather_issue()
    a(f"s_waitcnt vmcnt(0)\ns_branch {lp}")
    a.label(lo)
    a("""
    v_lshlrev_b32 v27, 16, v26
    v_lshlrev_b32 v29, 16, v28
    v_and_b32 v26, 0xffff0000, v26
    v_and_b32 v28, 0xffff0000, v28
    v_rcp_f32 v27, v27
    v_rcp_f32 v29, v29
    ds_write_b32 v23, v26 offset:1024
    ds_write_b32 v23, v28 offset:1280
    ds_write_b32 v23, v27
    ds_write_b32 v23, v29 offset:256
    """)
    for r in range(6):
        a(f"v_add_f32 v24, v24, v{60+2*r}")
        if glu: a(f"v_add_f32 v25, v25, v{72+2*r}")
    a("ds_write_b32 v22, v24")
    if glu: a("s_mov_b64 exec, 0xffff\nds_write_b32 v22, v25 offset:256\ns_mov_b64 exec, -1")
    a.stamp(13)
    a("s_waitcnt lgkmcnt(0)\ns_barrier")
    a.stamp(14)

PFD = int(os.environ.get("PFD", "4"))
PF0 = int(os.environ.get("PF0", "2"))
def prefetch_setup(a, glu):
    if not PF: return {}
    KADV = 64*3456 if glu else 128
    p0, p1 = (56, 58) if glu else (48, 50)
    a(f"""
    s_cmp_eq_u32 s3, 0
    s_cselect_b32 s12, s{p0}, s{p1}
    s_cselect_b32 s13, s{p0+1}, s{p1+1}
    s_mov_b32 s14, {D*F*2 if glu else P*D*2}
    s_mov_b32 s15, 0x20000
    s_mov_b32 s81, {KADV}
    s_lshr_b32 s82, s61, 3
    s_lshl_b32 s82, s82, 4
    """)
    if glu:
        a(f"""
        s_mul_i32 s80, s82, 3456
        s_mul_i32 s82, s63, 160
        s_add_u32 s80, s80, s82
        v_mul_u32_u24 v14, 3456, v31
        v_bfe_u32 v15, v1, 4, 1
        v_mul_u32_u24 v15, 156, v15
        v_add_u32 v14, v14, v15
        s_mov_b32 s83, 32
        """)
    else:
        a(f"""
        s_lshl_b32 s80, s63, 6
        s_add_u32 s80, s80, s82
        s_mul_i32 s80, s80, 1280
        v_mul_u32_u24 v14, 1280, v31
        s_mov_b32 s83, 16
        """)
    a(f"""
    s_lshl_b32 s82, s62, 8
    s_and_b32 s84, s61, 7
    s_lshl_b32 s84, s84, 5
    s_add_u32 s82, s82, s84
    s_mul_i32 s82, s82, 1280
    v_mul_u32_u24 v15, 1280, v1
    s_cmp_eq_u32 s3, 2
    s_cselect_b32 s12, s8, s12
    s_cselect_b32 s13, s9, s13
    s_cselect_b32 s14, s10, s14
    s_cselect_b32 s80, s82, s80
    s_cselect_b32 s81, 128, s81
    s_cselect_b32 s83, 32, s83
    s_cselect_b64 vcc, -1, 0
    s_cmp_eq_u32 s3, 3
    s_cselect_b32 s83, 0, s83
    v_cndmask_b32 v14, v14, v15, vcc
    v_cmp_gt_u32 vcc, s83, v1
    v_mov_b32 v15, 0x40000000
    s_nop 0
    v_cndmask_b32 v14, v15, v14, vcc
    """)
    def touch():
        a("s_add_u32 s80, s80, s81\nbuffer_load_dword v16, v14, s[12:15], s80 offen")
    for _ in range(LT - 1): a("s_add_u32 s80, s80, s81")
    for _ in range(PFD - LT): touch()
    return {"touch": touch}

def lds_spin(a, lab, va, off, cond, init=False, vt=4):
    if init: a(f"v_mov_b32 v{va}, {LDS_SYNC}")
    a("s_mov_b32 s67, 0")
    a.label(lab)
    a(f"""
    ds_read_b32 v{vt}, v{va} offset:{off}
    s_add_u32 s67, s67, 1
    s_waitcnt lgkmcnt(0)
    v_readfirstlane_b32 s66, v{vt}
    {cond}
    s_cbranch_scc1 {lab}_OK
    s_cmp_ge_u32 s67, 1000000
    s_cbranch_scc1 {lab}_OK
    s_sleep 1
    s_branch {lab}
    """)
    a.label(lab + "_OK")

def consumer_flag(a):
    srd(a, 20, 4, FLG_BYTES, WS_FLG)
    a(f"""
    s_lshl_b32 s66, s62, 2
    s_add_u32 s66, s66, s3
    s_lshl_b32 s66, s66, 8
    s_lshl_b32 s67, s35, 2
    s_add_u32 s66, s66, s67
    v_mov_b32 v2, 0
    v_mov_b32 v3, s95
    v_mov_b32 v4, {LDS_SYNC}
    v_mov_b32 v5, 1
    s_mov_b64 exec, 1
    s_mov_b32 s47, 0
    s_mov_b32 s67, 0
    """)
    a.stamp(16)
    a("""
    s_waitcnt vmcnt(0)
    buffer_store_dword v3, v2, s[20:23], s66 offen sc1
    ds_add_u32 v4, v5 offset:12
    s_mov_b64 exec, -1
    s_setprio 0
    """)
    a.stamp(17)
    a.label("K1_CW")
    a("""
    ds_read_b32 v6, v4 offset:12
    s_add_u32 s67, s67, 1
    s_waitcnt lgkmcnt(0)
    v_readfirstlane_b32 s66, v6
    s_and_b32 s66, s66, 15
    s_cmp_ge_u32 s66, 4
    s_cbranch_scc1 K1_P2
    s_cmp_ge_u32 s67, 1000000
    s_cbranch_scc1 K1_P2
    s_sleep 1
    s_branch K1_CW
    """)

M2MAP = ['''s_bfe_u32 s49, s50, 0x10003
    s_lshl_b32 s49, s49, 2
    s_bfe_u32 s65, s50, 0x20001
    s_add_u32 s49, s49, s65
    s_lshr_b32 s48, s50, 4
    s_lshl_b32 s48, s48, 1
    s_and_b32 s65, s50, 1
    s_add_u32 s48, s48, s65''',
    's_and_b32 s49, s50, 7\ns_lshr_b32 s48, s50, 3',
    '''s_lshr_b32 s49, s50, 3
    s_lshl_b32 s49, s49, 1
    s_bfe_u32 s65, s50, 0x10002
    s_add_u32 s49, s49, s65
    s_and_b32 s48, s50, 3'''][M2]
def phase2(a):
    PA = 16
    def pacc(j, i): return PA + 4*(j*4 + i)
    HB = 96
    def hreg(n, i): return HB + 16*(n % NH) + 4*i
    def bH(n, i): return vr(hreg(n, i), 4)
    WV = HB + 16*NH; nwv = (192 - WV)//20
    assert 20*(NW - nwv) <= 60
    def wreg(n, j):
        b = n % NW
        return vr(WV + 20*b + 4*j, 4) if b < nwv else ar(20*(b - nwv) + 4*j, 4)
    NK = 12
    a.label("K1_P2")
    a.vm = []
    a(f"""
    s_and_b32 s46, s3, 3
    s_mov_b32 s50, s35
    {M2MAP}
    s_lshl_b32 s51, s48, 6
    s_lshl_b32 s65, s62, 2
    s_add_u32 s48, s48, s65
    s_mul_i32 s52, s49, {5*NS2*1024}
    s_add_u32 s53, s52, {NS2*1024}
    s_add_u32 s54, s52, {2*NS2*1024}
    s_add_u32 s55, s52, {3*NS2*1024}
    s_add_u32 s56, s52, {4*NS2*1024}
    s_xor_b32 s65, s3, 2
    s_cmp_ge_u32 s3, 4
    s_cselect_b32 s65, s65, s3
    s_mul_i32 s36, s65, 20480
    s_movk_i32 s41, 4096
    s_cselect_b32 s40, s41, {(-81920) & 0xffffffff}
    s_cselect_b32 s41, 12288, s41
    s_mov_b32 s66, {76*1024}
    s_cselect_b32 s66, {40*1024}, s66
    s_cmp_eq_u32 s3, 3
    s_cselect_b32 s38, 0x40000000, 0
    s_sub_u32 s40, s40, s38
    s_add_u32 s38, s38, 4096
    s_cmp_eq_u32 s3, 7
    s_cselect_b32 s39, 0x40000000, 0
    s_add_u32 s39, s39, 4096
    s_lshl_b32 s65, s46, 10
    s_add_u32 s65, s65, s66
    v_lshlrev_b32 v2, 4, v1
    v_add_u32 v3, s65, v2
    v_mov_b32 v4, v3
    v_add_u32 v13, s36, v2
    v_and_b32 v5, 15, v1
    v_lshrrev_b32 v6, 4, v1
    v_mov_b32 v9, {LDS_SYNC}
    """)
    srd(a, 8, 4, HP_BYTES, WS_HP)
    srd(a, 12, 4, WP_BYTES, WS_WP)
    srd(a, 20, 4, FLG_BYTES, WS_FLG)
    for i in range(4):
        a(f"s_xor_b32 s65, s46, {i}\ns_lshl_b32 s66, s48, 2\ns_add_u32 s65, s65, s66\ns_mul_i32 s{32+i}, s65, {NS2*1024}")
    a(f"""
    s_lshl_b32 s65, s48, 6
    s_lshl_b32 s66, s46, 4
    s_add_u32 s65, s65, s66
    v_add_u32 v7, s65, v5
    v_lshlrev_b32 v12, 2, v6
    s_mul_i32 s66, s49, 80
    v_add_u32 v12, s66, v12
    v_mul_u32_u24 v7, 640, v7
    v_add_u32 v7, v7, v12
    v_lshlrev_b32 v8, 1, v7
    v_lshlrev_b32 v7, 2, v7
    v_lshlrev_b32 v12, 1, v12
    """)
    srd(a, 28, 100, L*D*4)
    def dma(n):
        for j in range(5):
            a(f"s_add_u32 m0, s36, {(n - NW)*5120 + j*1024}\ns_nop 0")
            a.vmem(f"buffer_load_dwordx4 v4, s[12:15], s{52+j} offen sc1 lds", ("W", n))
        a(f"v_add_u32 v4, { {0: 's38', 1: 's40', 8: 's41', 10: 's39'}.get(n, '4096')}, v4")
    def loadW(n, j):
        if NW <= n < NW + NL:
            a(f"ds_read_b128 {wreg(n, j)}, v13 offset:{(n - NW)*5120 + j*1024}")
            return
        a.vmem(f"buffer_load_dwordx4 {wreg(n, j)}, v4, s[12:15], s{52+j} offen sc1", ("W", n))
        if j == 4: a(f"v_add_u32 v4, { {0: 's38', 1: 's40', 8: 's41', 10: 's39'}.get(n, '4096')}, v4")
    def loadH(n):
        for i in range(4):
            a.vmem(f"buffer_load_dwordx4 {bH(n,i)}, v3, s[8:11], s{32+i} offen sc1", ("H", n))
        a(f"v_add_u32 v3, { {0: 's38', 1: 's40', 8: 's41', 10: 's39'}.get(n, '4096')}, v3")
    def wait_flags(tag, poller, off, mask, word):
        a(f"s_mov_b32 s67, 0\n{poller}\ns_cbranch_scc0 K1_P2SPIN{tag}")
        a.label(f"K1_P2POLL{tag}")
        a(f"""
        buffer_load_dword v6, v5, s[20:23], {off} offen sc1
        s_waitcnt vmcnt(0)
        v_cmp_eq_u32 vcc, s95, v6
        s_add_u32 s67, s67, 1
        {mask}
        s_cbranch_scc1 K1_P2SET{tag}
        s_cmp_ge_u32 s67, 100000
        s_cbranch_scc1 K1_P2SET{tag}
        s_sleep {PSL if tag == "W" else PSH}
        s_branch K1_P2POLL{tag}
        """)
        a.label(f"K1_P2SET{tag}")
        a(f"v_mov_b32 v6, 1\nds_write_b32 {word}, v6\ns_branch K1_P2GO{tag}".replace("@", ""))
        a.label(f"K1_P2SPIN{tag}")
        a(f"""
        ds_read_b32 v6, {word}
        s_add_u32 s67, s67, 1
        s_waitcnt lgkmcnt(0)
        v_readfirstlane_b32 s66, v6
        s_cmp_lg_u32 s66, 0
        s_cbranch_scc1 K1_P2GO{tag}
        s_cmp_ge_u32 s67, 1000000
        s_cbranch_scc1 K1_P2GO{tag}
        s_sleep 1
        s_branch K1_P2SPIN{tag}
        """)
        a.label(f"K1_P2GO{tag}")
    a("s_cmp_lt_u32 s3, 4\ns_cbranch_scc1 K1_P2W")
    EX = HB
    srd(a, 16, 6, XN_BYTES)
    srd(a, 24, 96, D*2)
    for jd in range(5):
        a(f"buffer_load_dwordx2 {vr(EX+2*jd,2)}, v8, s[16:19], 0 offen offset:{32*jd}")
        a(f"buffer_load_dwordx2 {vr(EX+10+2*jd,2)}, v12, s[24:27], 0 offen offset:{32*jd}")
    a(f"""
    v_bfe_u32 v14, v1, 1, 2
    v_lshlrev_b32 v14, 4, v14
    v_and_b32 v10, 1, v1
    v_lshl_add_u32 v14, v10, 1, v14
    v_bfe_u32 v10, v1, 3, 1
    v_add_u32 v14, v14, v10
    s_lshl_b32 s65, s46, 2
    v_add_u32 v14, s65, v14
    s_lshl_b32 s65, s46, 4
    v_add_u32 v10, s65, v5
    s_cmp_lt_u32 s50, 10
    s_cselect_b64 vcc, -1, 0
    v_cndmask_b32 v14, v10, v14, vcc
    v_add_u32 v14, s51, v14
    v_lshlrev_b32 v14, 2, v14
    v_add_u32 v14, {LDS_STA}, v14
    """)
    a.label("K1_P2BAR")
    a("""
    s_cmp_eq_u32 s47, 0
    s_cbranch_scc1 K1_P2E
    s_barrier
    s_sub_u32 s47, s47, 1
    s_branch K1_P2BAR
    """)
    a.label("K1_P2E")
    a(f"""
    ds_read_b32 v11, v14
    ds_read_b32 v10, v14 offset:1024
    ds_read_b32 v12, v9
    v_mov_b32 v14, 16
    s_waitcnt lgkmcnt(0)
    v_readfirstlane_b32 s95, v12
    s_mov_b64 exec, 1
    ds_add_u32 v9, v14 offset:12
    s_mov_b64 exec, -1
    """)
    a.label("K1_P2W")
    a(f"""
    v_lshlrev_b32 v5, 2, v1
    s_lshl_b32 s65, s49, 8
    s_add_u32 s65, s65, 8192
    v_add_u32 v14, 16, v9
    """)
    def ssm_hold(t):
        a(f"s_cmp_ge_u32 s50, 10\ns_cbranch_scc1 K1_HL{t}_OK")
        lds_spin(a, f"K1_HL{t}", 9, 24, "s_cmp_lg_u32 s66, 0", vt=6)
    a.stamp(21)
    if WS6 == 2: ssm_hold("A")
    wait_flags("W", "s_cmp_eq_u32 s3, 4", "s65", "s_cmp_eq_u64 vcc, -1", "v14")
    a.stamp(22)
    for n in range(NW):
        for j in range(5): loadW(n, j)
    if WS6 == 1: ssm_hold("A")
    for n in range(NW, NW + NL): dma(n)
    for r in range(PA, PA + 80): a(f"v_mov_b32 v{r}, 0")
    a(f"s_cmp_lt_u32 s3, 4\ns_cbranch_scc1 K1_P2W2\ns_waitcnt vmcnt({5*(NW + NL)})")
    for jd in range(5):
        for h in range(2):
            x = EX+2*jd+h; ds = EX+10+2*jd+h; T = pacc(jd, 0) + 2*h
            a(f"""
            v_lshlrev_b32 v14, 16, v{x}
            v_and_b32 v15, 0xffff0000, v{x}
            v_sub_f32 v12, v14, v10
            v_sub_f32 v8, v15, v10
            v_cvt_pk_bf16_f32 v12, v12, v8
            v_and_b32 v8, 0xffff0000, v12
            v_lshlrev_b32 v12, 16, v12
            v_mul_f32 v12, v12, v11
            v_mul_f32 v8, v8, v11
            v_cvt_pk_bf16_f32 v12, v12, v8
            v_and_b32 v8, 0xffff0000, v12
            v_lshlrev_b32 v12, 16, v12
            v_lshlrev_b32 v5, 16, v{ds}
            v_and_b32 v6, 0xffff0000, v{ds}
            v_mul_f32 v12, v12, v5
            v_mul_f32 v8, v8, v6
            v_cvt_pk_bf16_f32 v12, v12, v8
            v_and_b32 v8, 0xffff0000, v12
            v_lshlrev_b32 v12, 16, v12
            v_add_f32 v{T}, v12, v14
            v_add_f32 v{T+1}, v8, v15
            """)
    a.label("K1_P2W2")
    a(f"""
    v_add_u32 v10, 4, v9
    v_add_u32 v11, 8, v9
    v_and_b32 v5, 31, v1
    v_lshlrev_b32 v5, 2, v5
    s_lshl_b32 s65, s48, 8
    """)
    a.stamp(26)
    if os.environ.get("HOLD", "1") == "1": lds_spin(a, "K1_HD", 9, 12, "s_and_b32 s66, s66, 15\ns_cmp_ge_u32 s66, 4", vt=6)
    wait_flags("H", "s_cmp_eq_u32 s3, 4", "s65", "s_or_b32 s66, vcc_lo, 0x3ff\ns_cmp_eq_u32 s66, -1", "v10")
    a.stamp(27)
    loadH(0); loadH(1)
    a("s_cmp_ge_u32 s3, 4\ns_cbranch_scc1 K1_P2GOS")
    wait_flags("S", "s_cmp_eq_u32 s3, 0", "s65", "s_and_b32 s66, vcc_lo, 0x3ff\ns_cmp_eq_u32 s66, 0x3ff", "v11")
    a.stamp(23); a.lines.append("  ;@CSTAMP 24")
    for n in range(2, NH): loadH(n)
    PRI = os.environ.get("PRI", "")
    for n in range(NK):
        if PRI and n == 0:
            lp = a.newlabel("K1_PR"); a(f"s_cmp_lt_u32 s3, 4\ns_cbranch_scc1 {lp}\ns_setprio 2"); a.label(lp)
        if PRI and n == int(PRI): a("s_setprio 0")
        a.vmwait([("H", n), ("W", n)], "lgkmcnt(0)" if NW <= n < NW + NL else "")
        if n in (1, 5, 9): a.stamp(18 + n//4)
        sk = None
        if n in (1, 11):
            sk = a.newlabel("K1_P2SK")
            a(f"s_cmp_eq_u32 s3, {3 if n == 1 else 7}\ns_cbranch_scc1 {sk}")
        if n >= 9:
            lo = a.newlabel("K1_P2O"); le = a.newlabel("K1_P2X")
            h0 = hreg(n, 0)
            a(f"s_cmp_lt_u32 s3, 4\ns_cbranch_scc1 {le}\ns_bitcmp1_b32 s3, 0\ns_cbranch_scc1 {lo}")
            for p in range(2):
                for e in range(2): a(f"v_swap_b32 v{h0+8*p+2+e}, v{h0+8*p+4+e}")
            a(f"s_branch {le}")
            a.label(lo)
            for p in range(2):
                for e in range(2): a(f"v_swap_b32 v{h0+8*p+e}, v{h0+8*p+6+e}")
            a.label(le)
            a("s_nop 1")
        for j in range(5):
            for i in range(4):
                a(f"v_mfma_f32_16x16x32_bf16 {vr(pacc(j,i),4)}, {wreg(n, j)}, {bH(n,i)}, {vr(pacc(j,i),4)}")
            if n + NW < NK and j >= 1 and sk is None: loadW(n + NW, j - 1)
        if sk:
            a.label(sk)
            if n + NW < NK:
                for j in range(4): loadW(n + NW, j)
        if n + NH < NK: loadH(n + NH)
        if n + NW < NK: loadW(n + NW, 4)
    a.label("K1_P2FIN")
    a.stamp(28); a.lines.append("  ;@CSTAMP 25")
    a(f"""
    v_add_u32 v10, s36, v2
    s_mov_b32 s67, 0
    """)
    a.label("K1_P2G")
    a(f"""
    ds_read_b32 v6, v9 offset:12
    s_add_u32 s67, s67, 1
    s_waitcnt vmcnt(0) lgkmcnt(0)
    v_readfirstlane_b32 s66, v6
    s_cmp_ge_u32 s66, 68
    s_cbranch_scc1 K1_P2GD
    s_cmp_ge_u32 s67, 1000000
    s_cbranch_scc1 K1_P2GD
    s_sleep 1
    s_branch K1_P2G
    """)
    a.label("K1_P2GD")
    for i in range(1, 4):
        for j in range(5):
            a(f"ds_write_b128 v10, {vr(pacc(j,i),4)} offset:{((i-1)*5 + j)*1024}")
    RA = HB
    for m in range(1, 8):
        a(f"""
        s_xor_b32 s65, s3, {m}
        s_xor_b32 s66, s65, 2
        s_cmp_ge_u32 s65, 4
        s_cselect_b32 s65, s66, s65
        s_mul_i32 s65, s65, 20480
        s_add_u32 s65, s65, {(((m & 3) + 3) & 3)*5120}
        v_add_u32 v{RA+m-1}, s65, v2
        """)
    a("s_cmp_lt_u32 s3, 4\ns_cbranch_scc1 K1_P2FB")
    for grp in range(2):
        own = [0, 1, 2] if grp == 0 else [3, 4]
        oth = [3, 4] if grp == 0 else [0, 1, 2]
        if grp: a.label("K1_P2FB")
        for j in oth: a(f"ds_write_b128 v10, {vr(pacc(j,0),4)} offset:{(15 + j)*1024}")
        a("s_waitcnt lgkmcnt(0)\ns_barrier")
        a.stamp(29)
        D0 = HB + 8
        for x, j in enumerate(own):
            for m in range(7):
                a(f"ds_read_b128 {vr(D0+28*x+4*m,4)}, v{RA+m} offset:{j*1024}")
        for x, j in enumerate(own):
            rem = 7*(len(own) - 1 - x)
            d = D0 + 28*x; T = pacc(j, 0)
            a(f"s_waitcnt lgkmcnt({min(15, rem + 3)})")
            for h in range(2):
                a(f"v_pk_add_f32 {vr(d+2*h,2)}, {vr(d+2*h,2)}, {vr(d+4+2*h,2)}")
                a(f"v_pk_add_f32 {vr(d+8+2*h,2)}, {vr(d+8+2*h,2)}, {vr(d+12+2*h,2)}")
            for h in range(2): a(f"v_pk_add_f32 {vr(T+2*h,2)}, {vr(T+2*h,2)}, {vr(d+2*h,2)}")
            for h in range(2): a(f"v_pk_add_f32 {vr(T+2*h,2)}, {vr(T+2*h,2)}, {vr(d+8+2*h,2)}")
            a(f"s_waitcnt lgkmcnt({min(15, rem)})")
            for h in range(2): a(f"v_pk_add_f32 {vr(d+16+2*h,2)}, {vr(d+16+2*h,2)}, {vr(d+20+2*h,2)}")
            for h in range(2): a(f"v_pk_add_f32 {vr(T+2*h,2)}, {vr(T+2*h,2)}, {vr(d+24+2*h,2)}")
            for h in range(2): a(f"v_pk_add_f32 {vr(T+2*h,2)}, {vr(T+2*h,2)}, {vr(d+16+2*h,2)}")
            a(f"buffer_store_dwordx4 {vr(T,4)}, v7, s[28:31], 0 offen offset:{64*j} sc1")
        a.stamp(30)
        a("s_endpgm")

XM = int(os.environ.get("XM", "0"))
XMAP = ["s_lshr_b32 s62, s60, 2\ns_and_b32 s63, s60, 3",
        "s_and_b32 s62, s60, 1\ns_lshr_b32 s63, s60, 1\ns_add_u32 s63, s63, 2\ns_and_b32 s63, s63, 3",
        "s_and_b32 s62, s60, 1\ns_lshr_b32 s63, s60, 1"][XM]
def gen_k1():
    a = Asm()
    a.raw(".p2align 8\n.type gemm1_kernel,@function\ngemm1_kernel:")
    a(f"""
    s_cmp_ge_u32 s2, 256
    s_cbranch_scc1 K1_END
    s_load_dwordx2 s[4:5], s[0:1], {KA['ws']}
    s_load_dwordx2 s[6:7], s[0:1], {KA['x']}
    s_load_dwordx4 s[44:47], s[0:1], {KA['lre']}
    s_load_dwordx4 s[48:51], s[0:1], {KA['bre']}
    s_load_dwordx2 s[52:53], s[0:1], {KA['ldt']}
    s_load_dwordx2 s[54:55], s[0:1], {KA['dbg']}
    s_load_dwordx4 s[56:59], s[0:1], {KA['wg']}
    s_load_dwordx2 s[96:97], s[0:1], {KA['dsk']}
    s_load_dwordx2 s[100:101], s[0:1], {KA['out']}
    v_and_b32 v1, 63, v0
    v_lshrrev_b32 v2, 6, v0
    s_nop 0
    v_readfirstlane_b32 s3, v2
    s_and_b32 s60, s2, 7
    s_lshr_b32 s61, s2, 3
    {XMAP}
    s_lshl_b32 s62, s62, 2
    s_lshr_b32 s64, s61, 3
    s_add_u32 s62, s62, s64
    s_lshl_b32 s63, s63, 3
    s_and_b32 s64, s61, 7
    s_add_u32 s63, s63, s64
    s_mov_b32 s35, s63
    s_waitcnt lgkmcnt(0)
    """)
    srd(a, 8, 6, XN_BYTES)
    a("""
    s_sub_u32 s65, s3, 4
    s_cmp_ge_u32 s65, 2
    s_cbranch_scc1 K1_NOTLOADER
    """)
    loader_code(a)
    a.label("K1_NOTLOADER")
    if os.environ.get("CPF", "1") == "1":
        a(f"""
        s_cmp_lg_u32 s3, 3
        s_cbranch_scc1 K1_NOCPF
        s_getpc_b64 s[66:67]
        K1_PCREF:
        s_sub_u32 s66, s66, K1_PCREF-gemm1_kernel
        s_subb_u32 s67, s67, 0
        s_lshl_b32 s65, s61, 11
        v_lshlrev_b32 v14, 7, v1
        v_add_u32 v14, s65, v14
        v_cmp_gt_u32 vcc, CODE_END-gemm1_kernel, v14
        s_and_b64 exec, vcc, 0xffff
        s_cbranch_execz K1_CPFSKIP
        global_load_dword v15, v14, s[66:67]
        K1_CPFSKIP:
        s_mov_b64 exec, -1
        K1_NOCPF:
        """)
    srd(a, 16, 4, HP_BYTES, WS_HP)
    srd(a, 76, 4, AGG_BYTES, WS_AGG)
    a(f"""
    v_lshrrev_b32 v30, 4, v1
    v_and_b32 v31, 15, v1
    v_lshrrev_b32 v10, 1, v31
    v_xor_b32 v10, v10, v30
    v_lshlrev_b32 v11, 7, v31
    v_lshl_add_u32 v10, v10, 4, v11
    v_bfe_u32 v14, v1, 2, 2
    v_bfe_u32 v15, v1, 4, 1
    v_lshl_add_u32 v14, v15, 2, v14
    v_bfe_u32 v15, v1, 5, 1
    v_lshl_add_u32 v14, v15, 4, v14
    v_mul_u32_u24 v14, 160, v14
    v_and_b32 v15, 3, v1
    v_lshl_add_u32 v11, v15, 3, v14
    s_cmp_ge_u32 s3, 4
    s_cbranch_scc1 K1_HELPER
    """)
    a(f"""
    s_lshl_b32 s65, s3, 13
    v_add_u32 v2, s65, v10
    v_xor_b32 v3, 64, v2
    v_add_u32 v4, 32768, v2
    v_add_u32 v5, 32768, v3
    v_add_u32 v6, 65536, v2
    v_add_u32 v7, 65536, v3
    s_lshl_b32 s64, s62, 4
    s_lshl_b32 s65, s3, 2
    s_add_u32 s64, s64, s65
    s_mul_i32 s64, s64, {NS2*1024}
    v_lshlrev_b32 v12, 4, v1
    s_cmp_lt_u32 s63, 10
    s_cbranch_scc1 K1_SSM
    """)
    a(f"""
    s_sub_u32 s63, s63, 10
    v_add_u32 v8, {WBASE}, v11
    s_lshr_b32 s65, s63, 1
    s_and_b32 s66, s63, 1
    s_lshl_b32 s67, s65, 2
    s_lshl_b32 s68, s66, 1
    s_add_u32 s67, s67, s68
    s_add_u32 s67, s67, 40
    s_lshl_b32 s67, s67, 10
    s_add_u32 s70, s67, s64
    s_add_u32 s71, s70, 1024
    s_cmp_eq_u32 s63, 21
    s_cselect_b32 s71, 0x40000000, s71
    s_add_u32 s67, s65, 84
    s_lshl_b32 s67, s67, 10
    s_mul_i32 s68, s66, {NS2*1024}
    s_add_u32 s67, s67, s68
    s_add_u32 s72, s67, s64
    """)
    consumer_loop(a, True, prefetch_setup(a, True))
    a(f"""
    s_lshl_b32 s65, s3, 8
    v_lshlrev_b32 v2, 2, v31
    v_add_u32 v2, s65, v2
    v_add_u32 v2, {LDS_STA}, v2
    v_lshlrev_b32 v3, 4, v30
    v_add_u32 v3, {LDS_CS}, v3
    """)
    for i in range(4):
        a(f"ds_read_b32 v{4+i}, v2 offset:{64*i}")
        a(f"ds_read_b32 v{8+i}, v2 offset:{1024+64*i}")
    a(f"v_mov_b32 v15, {LDS_SYNC}\nds_read_b32 v14, v15")
    a("s_cmp_eq_u32 s66, 1\ns_waitcnt lgkmcnt(0)\nv_readfirstlane_b32 s95, v14")
    for i in range(4): a(f"v_mul_f32 v{4+i}, v{4+i}, v{4+i}")
    a("s_cbranch_scc1 K1_GLU_ODD")
    for odd in range(2):
        if odd: a.label("K1_GLU_ODD")
        groups = [(4,), (0, 1), (2, 3)] if not odd else [(0,), (1, 2), (3, 4)]
        k = 0
        for gi, grp in enumerate(groups):
            for x, j in enumerate(grp):
                a(f"ds_read_b128 {vr(14+8*x,4)}, v3 offset:{64*j}")
                a(f"ds_read_b128 {vr(18+8*x,4)}, v3 offset:{320+64*j}")
            a("s_waitcnt lgkmcnt(0)")
            for i in range(4):
                mi = 8 + (i & ~1); msel = i & 1
                ai = 4 + (i & ~1)
                sel = f"op_sel:[0,{msel},0] op_sel_hi:[1,{msel},1] neg_lo:[0,1,0] neg_hi:[0,1,0]"
                sel2 = f"op_sel:[0,{msel}] op_sel_hi:[1,{msel}]"
                for x, j in enumerate(grp):
                    G = acc(i, j); U = acc(i, 5+j)
                    for h in range(2):
                        a(f"v_pk_fma_f32 {vr(G+2*h,2)}, {vr(14+8*x+2*h,2)}, {vr(mi,2)}, {vr(G+2*h,2)} {sel}")
                        a(f"v_pk_fma_f32 {vr(U+2*h,2)}, {vr(18+8*x+2*h,2)}, {vr(mi,2)}, {vr(U+2*h,2)} {sel}")
                    for h in range(2):
                        a(f"v_pk_mul_f32 {vr(G+2*h,2)}, {vr(G+2*h,2)}, {vr(U+2*h,2)}")
                    for h in range(2):
                        a(f"v_pk_mul_f32 {vr(G+2*h,2)}, {vr(G+2*h,2)}, {vr(ai,2)} {sel2}")
                if gi == 0:
                    T = acc(i & ~1, 5+grp[0]); G = acc(i, grp[0]); o = 2*(i & 1)
                    a(f"v_cvt_pk_bf16_f32 v{T+o}, v{G}, v{G+1}")
                    a(f"v_cvt_pk_bf16_f32 v{T+o+1}, v{G+2}, v{G+3}")
                    if i & 1:
                        a(f"s_add_u32 s75, s72, {(i-1)*NS2*1024}")
                        a(f"buffer_store_dwordx4 {vr(T,4)}, v12, s[16:19], s75 offen{ST}")
                    continue
                T = acc(i, 5+grp[0])
                for x, j in enumerate(grp):
                    G = acc(i, j)
                    a(f"v_cvt_pk_bf16_f32 v{T+2*x}, v{G}, v{G+1}")
                    a(f"v_cvt_pk_bf16_f32 v{T+2*x+1}, v{G+2}, v{G+3}")
                a(f"s_add_u32 s75, s{69+gi}, {i*NS2*1024}")
                a(f"buffer_store_dwordx4 {vr(T,4)}, v12, s[16:19], s75 offen{ST}")
        if odd == 0: a("s_branch K1_CFLAG")
    a.label("K1_CFLAG")
    consumer_flag(a)
    a.label("K1_SSM")
    a.lg = []
    a(f"""
    v_add_u32 v8, {WBASE}, v10
    v_xor_b32 v9, 64, v8
    s_lshl_b32 s65, s63, 12
    s_add_u32 s64, s64, s65
    """)
    consumer_loop(a, False, prefetch_setup(a, False))
    LAM = 14
    a(f"""
    v_lshlrev_b32 v13, 4, v31
    v_add_u32 v13, {LDS_LAM}, v13
    s_lshl_b32 s65, s3, 8
    v_lshlrev_b32 v2, 4, v30
    v_add_u32 v2, s65, v2
    v_add_u32 v2, {LDS_STA}, v2
    v_lshlrev_b32 v3, 2, v31
    v_add_u32 v3, {LDS_CS}, v3
    """)
    for i in range(4):
        a(f"ds_read_b128 {vr(160+4*i,4)}, v2 offset:{64*i}")
        a(f"ds_read_b128 {vr(176+4*i,4)}, v2 offset:{1024+64*i}")
    for jj in range(8):
        a(f"ds_read_b32 v{4+jj}, v3 offset:{64*jj}")
    a(f"v_mov_b32 v15, {LDS_SYNC}\nds_read_b32 v14, v15")
    a("s_waitcnt lgkmcnt(0)\nv_readfirstlane_b32 s95, v14")
    for j in range(4):
        a(f"ds_read_b128 {vr(LAM+4*j,4)}, v13 offset:{256*j}")
    for j in range(4):
        for jj in (j, 4+j):
            cs = 4 + (jj & ~1); sl = jj & 1
            for i in range(4):
                A = acc(i, jj)
                for h in range(2):
                    a(f"v_pk_fma_f32 {vr(A+2*h,2)}, {vr(176+4*i+2*h,2)}, {vr(cs,2)}, {vr(A+2*h,2)} op_sel:[0,{sl},0] op_sel_hi:[1,{sl},1] neg_lo:[0,1,0] neg_hi:[0,1,0]")
            for i in range(4):
                A = acc(i, jj)
                for h in range(2):
                    a(f"v_pk_mul_f32 {vr(A+2*h,2)}, {vr(A+2*h,2)}, {vr(160+4*i+2*h,2)}")
    a(f"""
    s_lshl_b32 s65, s3, 2
    v_add_u32 v10, s65, v30
    v_lshlrev_b32 v10, 9, v10
    v_lshl_add_u32 v10, v31, 3, v10
    v_add_u32 v10, {LDS_E16}, v10
    s_waitcnt lgkmcnt(0)
    """)
    def BR(j, sg): return acc(sg >> 1, j) + 2*(sg & 1)
    def BI(j, sg): return acc(sg >> 1, 4+j) + 2*(sg & 1)
    E = 160
    def ER(q, j): return E + 16*q + 4*j
    def EI(q, j): return E + 16*q + 4*j + 2
    def step(dR, dI, pR, pI, bR, bI, lam):
        return [
          f"v_pk_fma_f32 {vr(dR,2)}, {vr(lam,2)}, {vr(pR,2)}, {vr(bR,2)} op_sel_hi:[0,1,1]",
          f"v_pk_fma_f32 {vr(dI,2)}, {vr(lam,2)}, {vr(pI,2)}, {vr(bI,2)} op_sel_hi:[0,1,1]",
          f"v_pk_fma_f32 {vr(dR,2)}, {vr(lam,2)}, {vr(pI,2)}, {vr(dR,2)} op_sel:[1,0,0] op_sel_hi:[1,1,1] neg_lo:[1,0,0] neg_hi:[1,0,0]",
          f"v_pk_fma_f32 {vr(dI,2)}, {vr(lam,2)}, {vr(pR,2)}, {vr(dI,2)} op_sel:[1,0,0] op_sel_hi:[1,1,1]"]
    for sg in range(1, 8):
        q = sg & 1
        cols = []
        for j in range(4):
            pR, pI = (BR(j, 0), BI(j, 0)) if sg == 1 else (ER(q ^ 1, j), EI(q ^ 1, j))
            cols.append(step(ER(q, j), EI(q, j), pR, pI, BR(j, sg), BI(j, sg), LAM+4*j))
        for k in range(4):
            for j in range(4): a(cols[j][k])
    for j in range(4):
        c = ER(0, j); r = ER(1, j); im = EI(1, j); l8 = LAM+4*j+2
        a(f"""
        v_fma_f32 v{c}, v{l8}, v{r}, v{r+1}
        v_fma_f32 v{c+1}, v{l8}, v{im}, v{im+1}
        v_fma_f32 v{c}, -v{l8+1}, v{im}, v{c}
        v_fma_f32 v{c+1}, v{l8+1}, v{r}, v{c+1}
        ds_write_b64 v10, {vr(c,2)} offset:{128*j}
        """)
    a(f"""
    s_mul_i32 s65, s3, 18432
    v_mul_u32_u24 v2, 144, v31
    v_lshl_add_u32 v2, v30, 5, v2
    v_add_u32 v2, s65, v2
    v_bfe_u32 v3, v1, 2, 2
    v_lshl_add_u32 v3, v30, 3, v3
    v_mul_u32_u24 v3, 144, v3
    v_and_b32 v4, 3, v1
    v_lshl_add_u32 v3, v4, 3, v3
    v_add_u32 v3, s65, v3
    v_mov_b32 v13, {LDS_SYNC}
    v_mov_b32 v4, 1
    s_mov_b64 exec, 1
    ds_add_u32 v13, v4 offset:20
    s_mov_b64 exec, -1
    """)
    a.stamp(13)
    a(f"v_lshlrev_b32 v13, 3, v31\nv_add_u32 v13, {LDS_UV}, v13")
    for j in range(4):
        a(f"ds_read_b64 {vr([4,6,8,170][j],2)}, v13 offset:{128*j}")
    a("s_waitcnt lgkmcnt(0)")
    for j in range(4):
        U = [4,6,8,170][j]
        allp = [(acc(i, j)+2*h, acc(i, 4+j)+2*h) for i in range(4) for h in range(2)] + [(ER(1, j), EI(1, j))]
        for prs in (allp[:5], allp[5:]):
            for k, (R, I) in enumerate(prs):
                a(f"v_pk_mul_f32 {vr(160+2*k,2)}, {vr(R,2)}, {vr(U,2)} op_sel:[0,1] op_sel_hi:[1,1]")
            for k, (R, I) in enumerate(prs):
                a(f"v_pk_mul_f32 {vr(R,2)}, {vr(R,2)}, {vr(U,2)} op_sel:[0,0] op_sel_hi:[1,0]")
            for k, (R, I) in enumerate(prs):
                a(f"v_pk_fma_f32 {vr(R,2)}, {vr(I,2)}, {vr(U,2)}, {vr(R,2)} op_sel:[0,1,0] op_sel_hi:[1,1,1] neg_lo:[0,1,0] neg_hi:[0,1,0]")
            for k, (R, I) in enumerate(prs):
                a(f"v_pk_fma_f32 {vr(I,2)}, {vr(I,2)}, {vr(U,2)}, {vr(160+2*k,2)} op_sel:[0,0,0] op_sel_hi:[1,0,1]")
    a.stamp(15)
    lds_spin(a, "K1_SS", 13, 24, "s_cmp_lg_u32 s66, 0", init=True)
    a.stamp(14)
    for j in range(4):
        h = ER(0, j)
        a(f"ds_read_b32 v{h}, v10 offset:{LDS_S-LDS_E16+128*j}")
        a(f"ds_read_b32 v{h+2}, v10 offset:{LDS_S-LDS_E16+128*j+4}")
    a("s_waitcnt lgkmcnt(0)")
    for j in range(4):
        h = ER(0, j); l8 = LAM+4*j+2
        a(f"""
        v_fma_f32 v{h+1}, v{l8}, v{h}, v{ER(1,j)}
        v_fma_f32 v{h+3}, v{l8}, v{h+2}, v{EI(1,j)}
        v_fma_f32 v{h+1}, -v{l8+1}, v{h+2}, v{h+1}
        v_fma_f32 v{h+3}, v{l8+1}, v{h}, v{h+3}
        """)
    for sg in range(8):
        cols = []
        for j in range(4):
            pR, pI = (ER(0, j), EI(0, j)) if sg == 0 else (BR(j, sg-1), BI(j, sg-1))
            cols.append(step(BR(j, sg), BI(j, sg), pR, pI, BR(j, sg), BI(j, sg), LAM+4*j))
        for k in range(4):
            for j in range(4): a(cols[j][k])
    for jj in range(8):
        im, j = divmod(jj, 4)
        t = 160 + 8*(jj % 4)
        for i in range(4):
            A = acc(i, jj)
            ng = "-" if im else ""
            a(f"v_cvt_pk_bf16_f32 v{t+i}, {ng}v{A}, {ng}v{A+2}")
            a(f"v_cvt_pk_bf16_f32 v{t+4+i}, {ng}v{A+1}, {ng}v{A+3}")
        o = (32*(2*im + (j >> 1)) + 16*(j & 1))*144
        a(f"ds_write_b128 v2, {vr(t,4)} offset:{o}")
        a(f"ds_write_b128 v2, {vr(t+4,4)} offset:{o+16}")
    a("s_waitcnt lgkmcnt(0)")
    for i in range(4):
        for j in range(4):
            d = ACC + 4*(i*4+j)
            for h in range(2):
                a(f"ds_read_b64_tr_b16 {vr(d+2*h,2)}, v3 offset:{(32*j+4*h)*144 + 32*i}")
    k = 0
    for i in range(4):
        for j in range(4):
            d = ACC + 4*(i*4+j)
            k += 1
            a(f"s_waitcnt lgkmcnt({min(15, 32-2*k)})")
            a(f"s_add_u32 s65, s64, {(i*NS2 + j)*1024}")
            a(f"buffer_store_dwordx4 {vr(d,4)}, v12, s[16:19], s65 offen{ST}")
    a("s_branch K1_CFLAG")
    a.label("K1_HELPER")
    a(f"""
    s_and_b32 s43, s3, 1
    s_lshl_b32 s64, s62, 8
    s_lshl_b32 s65, s43, 7
    s_add_u32 s64, s64, s65
    v_lshrrev_b32 v20, 3, v1
    v_and_b32 v21, 7, v1
    """)
    a(f"""
    s_cmp_lt_u32 s63, 10
    s_cbranch_scc1 K1_HSSM
    s_mul_i32 s66, s43, 10240
    s_add_u32 s66, s66, {WBASE}
    v_add_u32 v18, s66, v11
    v_add_u32 v53, s64, v1
    v_lshlrev_b32 v53, 3, v53
    """)
    helper_loop(a, True, {})
    a("s_mov_b32 s47, 0\ns_branch K1_P2")
    a.label("K1_HSSM")
    LR = 85
    def preload():
        srd(a, 20, 44, P*2); srd(a, 24, 46, P*2); srd(a, 28, 52, P*2)
        a(f"""
        s_lshl_b32 s65, s63, 7
        v_lshlrev_b32 v22, 1, v1
        v_add_u32 v22, s65, v22
        s_lshl_b32 s90, s63, 13
        s_lshl_b32 s91, s62, 10
        s_add_u32 s91, s91, s90
        buffer_load_ushort v{LR}, v22, s[20:23], 0 offen
        buffer_load_ushort v{LR+1}, v22, s[24:27], 0 offen
        buffer_load_ushort v{LR+2}, v22, s[28:31], 0 offen
        """)
    LM = 8; L16 = 188; L256 = 190
    def csq(d, s, t=22):
        a(f"""
        v_mul_f32 v{t}, v{s+1}, v{s+1}
        v_mul_f32 v{t+1}, v{s}, v{s+1}
        v_fma_f32 v{d}, v{s}, v{s}, -v{t}
        v_add_f32 v{d+1}, v{t+1}, v{t+1}
        """)
    def pre():
        lam_calc(a, LR, LR+1, LR+2, 148, LM, LM+1, coef=(6, 7))
        a(f"""
        v_add_f32 v6, v6, v6
        v_add_f32 v7, v7, v7
        v_lshlrev_b32 v22, 3, v1
        v_add_u32 v22, {LDS_UV}, v22
        ds_write_b64 v22, v[6:7]
        """)
    def pre2():
        csq(LM+2, LM); csq(LM+2, LM+2); csq(LM+2, LM+2)
        csq(L16, LM+2)
        csq(L256, L16); csq(L256, L256); csq(L256, L256); csq(L256, L256)
        a(f"""
        v_lshlrev_b32 v22, 4, v1
        v_add_u32 v23, {LDS_LAM}, v22
        ds_write_b128 v23, {vr(LM,4)}
        s_waitcnt lgkmcnt(0)
        """)
    a(f"""
    s_mul_i32 s67, s43, 10240
    s_add_u32 s67, s67, {WBASE}
    v_add_u32 v18, s67, v10
    v_xor_b32 v16, 64, v18
    v_bfe_u32 v53, v1, 2, 2
    v_lshlrev_b32 v53, 4, v53
    v_and_b32 v22, 1, v1
    v_lshl_add_u32 v53, v22, 3, v53
    v_bfe_u32 v22, v1, 1, 1
    v_add_u32 v53, v53, v22
    v_lshl_add_u32 v53, v30, 1, v53
    v_add_u32 v53, s64, v53
    v_lshlrev_b32 v53, 3, v53
    """)
    helper_loop(a, False, {"preload": preload, ("side", 1): pre, ("side", 4): pre2})
    a("s_mov_b32 s47, 0\ns_cmp_lg_u32 s43, 0\ns_cbranch_scc1 K1_P2")
    a(f"""
    v_lshlrev_b32 v22, 4, v1
    v_lshlrev_b32 v23, 3, v1
    v_add_u32 v23, {LDS_E16}, v23
    v_add_u32 v24, 4096, v22
    """)
    if os.environ.get("CPRI", "1") == "1": a("s_setprio 3")
    lds_spin(a, "K1_SE", 25, 20, "s_cmp_ge_u32 s66, 4", init=True)
    EV = 32
    def ev(R): return EV + 2*R
    for R in range(16):
        a(f"ds_read_b64 {vr(ev(R),2)}, v23 offset:{512*R}")
    def cfma(d, lam, s, add):
        a(f"""
        v_fma_f32 v{d}, v{lam}, v{s}, v{add}
        v_fma_f32 v{d+1}, v{lam}, v{s+1}, v{add+1}
        v_fma_f32 v{d}, -v{lam+1}, v{s+1}, v{d}
        v_fma_f32 v{d+1}, v{lam+1}, v{s}, v{d+1}
        """)
    A0, A1 = 96, 100
    a(f"v_mov_b32 v{A0+2}, s95\nv_mov_b32 v{A0+3}, 0")
    a("s_waitcnt lgkmcnt(0)")
    cur = ev(0)
    for R in range(1, 16):
        d = A0 if (R & 1) else A1
        cfma(d, L16, cur, ev(R)); cur = d
    assert cur == A0
    a(f"""
    buffer_store_dwordx4 {vr(A0,4)}, v22, s[76:79], s91 offen sc1
    s_mov_b32 s67, 0
    s_cmp_eq_u32 s62, 0
    s_cbranch_scc1 K1_POLLOK
    """)
    PV = 64
    a.label("K1_POLL")
    for rb in range(7):
        a(f"buffer_load_dwordx4 {vr(PV+4*rb,4)}, v{22 if rb < 4 else 24}, s[76:79], s90 offen offset:{1024*(rb%4)} sc1")
    a("s_waitcnt vmcnt(0)\ns_mov_b64 s[68:69], -1")
    lab = a.newlabel("K1_CHK")
    for rb in range(7):
        a(f"""
        s_cmp_le_u32 s62, {rb}
        s_cbranch_scc1 {lab}
        v_cmp_eq_u32 vcc, s95, v{PV+4*rb+2}
        s_and_b64 s[68:69], s[68:69], vcc
        """)
    a.label(lab)
    a(f"""
    s_cmp_eq_u64 s[68:69], -1
    s_cbranch_scc1 K1_POLLOK
    s_add_u32 s67, s67, 1
    s_cmp_lt_u32 s67, 100000
    s_sleep 1
    s_cbranch_scc1 K1_POLL
    """)
    a.label("K1_POLLOK")
    a("v_mov_b32 v104, 0\nv_mov_b32 v105, 0")
    lab = a.newlabel("K1_CAR")
    for rb in range(7):
        a(f"s_cmp_le_u32 s62, {rb}\ns_cbranch_scc1 {lab}")
        cfma(106, L256, 104, PV+4*rb)
        a("v_mov_b32 v104, v106\nv_mov_b32 v105, v107")
    a.label(lab)
    cur = 104
    for R in range(16):
        t = 108 + 2*(R & 1)
        a(f"""
        v_mul_f32 v{t}, v6, v{cur}
        v_mul_f32 v{t+1}, v6, v{cur+1}
        v_fma_f32 v{t}, -v7, v{cur+1}, v{t}
        v_fma_f32 v{t+1}, v7, v{cur}, v{t+1}
        """)
        if R < 15:
            d = A0 if (R & 1) else A1
            cfma(d, L16, cur, ev(R)); cur = d
        a(f"ds_write_b64 v23, {vr(t,2)} offset:{LDS_S-LDS_E16+512*R}")
    a("v_mov_b32 v4, 1\nds_write_b32 v25, v4 offset:24\ns_mov_b32 s47, 0\ns_setprio 0")
    phase2(a)
    a.label("K1_END")
    a("s_endpgm")
    return a.text(), kd("gemm1_kernel", 192+60, 102, 192), f"; @launch kernel=gemm1_kernel grid=(256,1,1) block=(512,1,1) lds={LDS_TOTAL}"
```

```python
from gen_common import *
import os
EXP = os.environ.get('EXP', '')
LTD = os.environ.get('LTD', '0') == '1'
PF = os.environ.get('PF', '0' if LTD else '1') == '1'

ACC = 32
TBA = tuple(int(x) for x in os.environ.get("TBA", "1,0").split(",")) if os.environ.get("TBA", "1,0") else None
XBASE = 0
WBASE = 98304
SPARE = 159744
LDS_TOTAL = 163840
LDS_E16 = 73728
LDS_S = LDS_E16
LDS_LAM = SPARE
LDS_STA = SPARE + 1024
LDS_STM = SPARE + 2048
LDS_CS = SPARE + 3072
LDS_UV = SPARE + 3584
LDS_SYNC = 158720
WS_FLG = 0x1760000
FLG_BYTES = 16384
M2 = int(os.environ.get("M2", "0"))
PSL = int(os.environ.get("PSL", "8")); PSH = int(os.environ.get("PSH", "4")); WS6 = int(os.environ.get("WS6", "0"))
NH = int(os.environ.get("NH", "3")); NW = int(os.environ.get("NW", "5")); NL = int(os.environ.get("NL", "3"))
RPS = int(os.environ.get("RPS", "6"))
H0 = int(os.environ.get("H0", "3"))
DEF = [int(x) for x in os.environ.get("DEF", "1,4,7").split(",") if x]
TAG = 0x5ca1ab1e
DBG_RB = 0
DBG_CT = 8
ST = " sc1"
WRN = 6

def acc(i, jj): return ACC + 4*(jj*4 + i)
def XF(par, i): return 16*par + 4*i
def WR(phi): return 32 + 4*(phi % WRN)

def consumer_loop(a, glu, hooks={}):
    NJ = 5 if glu else 4
    NJ2 = 2*NJ
    SLOT = 20480
    P3 = 6*NJ2
    def wread(phi, last=False):
        n, jj = divmod(phi, NJ2)
        if last and n >= 2: return
        s, ks = (n >> 1) % 3, n & 1
        mat, j = divmod(jj, NJ)
        off = s*SLOT
        if glu:
            for h in range(2):
                o = off + mat*10240 + (8*h + 32*ks)*160 + 32*j
                a.lds(f"ds_read_b64_tr_b16 {ar(WR(phi) + 2*h, 2)}, v8 offset:{o}", ("W", phi % P3))
        else:
            a.lds(f"ds_read_b128 {ar(WR(phi), 4)}, v{8+ks} offset:{off + mat*10240 + j*2048 + (1024 if j >= 2 else 0)}", ("W", phi % P3))
    def xread(n, i, last=False):
        if last and n >= 2: return
        s, ks = (n >> 1) % 3, n & 1
        a.lds(f"ds_read_b128 {ar(XF(n & 1, i), 4)}, v{2 + s*2 + ks} offset:{i*2048}", ("X", n % 6))
    BJ = NJ2 - 3
    def kstep(n, last=False):
        ks = n & 1
        for jj in range(NJ2):
            phi = n*NJ2 + jj
            if ks == 1 and jj == BJ and not last:
                a.lgwait_all()
                a("s_mul_i32 s86, s87, 3") if os.environ.get("CST") else None
                a.dstamp(17 + (n >> 1), "s86") if os.environ.get("CST") else None
                a("s_barrier")
                if "touch" in hooks and not TBA:
                    lt = a.newlabel("K1_CT")
                    a(f"s_cmp_ge_u32 s87, {(9 - PFD - (n >> 1) - 1)//3 + 1}\ns_cbranch_scc1 {lt}")
                    hooks["touch"]()
                    a.label(lt)
            if TBA and "touch" in hooks and not last and (n, jj) == TBA:
                lt = a.newlabel("K1_CT")
                a(f"s_cmp_ge_u32 s87, 2\ns_cbranch_scc1 {lt}")
                for _ in range(3): hooks["touch"]()
                a.label(lt)
            a.lgwait([("W", phi % P3), ("X", n % 6)])
            todo = []
            if ks == 0:
                todo.append(("w", phi + 4))
                if 2 <= jj < 6: todo.append(("x", n + 1, jj - 2))
            else:
                if jj + 4 < NJ2: todo.append(("w", phi + 4))
                elif jj == BJ: todo += [("w", phi + 3), ("x", n+1, 0), ("w", phi + 4), ("x", n+1, 1)]
                elif jj == BJ + 1: todo += [("w", phi + 4), ("x", n+1, 2), ("x", n+1, 3)]
                elif jj == BJ + 2: todo.append(("w", phi + 4))
            for i in range(4):
                c = vr(acc(i, jj), 4)
                xa = ar(XF(n & 1, i), 4); wa = ar(WR(phi), 4)
                if glu: a(f"v_mfma_f32_16x16x32_bf16 {c}, {wa}, {xa}, {c}")
                else:   a(f"v_mfma_f32_16x16x32_bf16 {c}, {xa}, {wa}, {c}")
                if todo:
                    t = todo.pop(0)
                    if t[0] == "w": wread(t[1], last)
                    else: xread(t[1], t[2], last)
            assert not todo
    a.stamp(1)
    for r in range(ACC, ACC + 16*NJ2): a(f"v_mov_b32 v{r}, 0")
    a("s_mov_b32 s87, 0")
    a("s_barrier")
    a.stamp(2); a.lines.append("  ;@CSTAMP 3")
    if "touch" in hooks and not TBA: hooks["touch"]()
    wread(0); xread(0, 0); wread(1); xread(0, 1); wread(2); xread(0, 2); xread(0, 3); wread(3)
    entry = list(a.lg)
    lab = a.newlabel("K1_CL")
    a.label(lab)
    for n in range(6): kstep(n)
    assert a.lg == entry, (a.lg, entry)
    a(f"s_add_u32 s87, s87, 1\ns_cmp_lt_u32 s87, 3\ns_cbranch_scc1 {lab}")
    a.stamp(11); a.lines.append("  ;@CSTAMP 4")
    kstep(0, True); kstep(1, True)
    a("s_waitcnt vmcnt(0)")
    a.stamp(12)
    if os.environ.get("CPRI", "1") == "1": a("s_setprio 3")
    a("s_barrier")

NLW = int(os.environ.get("NLW", "3"))
LT = int(os.environ.get("LT", "3"))
def loader_code(a):
    if os.environ.get("LPRI", "0") == "1": a("s_setprio 3")
    a(f"""
    s_and_b32 s43, s3, 1
    v_and_b32 v31, 15, v1
    s_lshr_b32 s65, s61, 3
    s_lshl_b32 s65, s65, 4
    s_mov_b32 s15, 0x20000
    s_cmp_lt_u32 s63, 10
    s_cselect_b64 vcc, -1, 0
    s_cbranch_scc1 K1_LT_SSM
    s_sub_u32 s63, s63, 10
    s_cmp_eq_u32 s43, 0
    s_cselect_b32 s12, s56, s58
    s_cselect_b32 s13, s57, s59
    s_mov_b32 s14, {D*F*2}
    s_mul_i32 s40, s63, 160
    s_mov_b32 s33, {64*3456}
    s_mul_i32 s65, s65, 3456
    v_mul_u32_u24 v22, 3456, v31
    v_bfe_u32 v23, v1, 4, 1
    v_mul_u32_u24 v23, 156, v23
    v_add_u32 v22, v22, v23
    s_mov_b32 exec_lo, -1
    s_branch K1_LT_GO
    """)
    a.label("K1_LT_SSM")
    a(f"""
    s_cmp_eq_u32 s43, 0
    s_cselect_b32 s12, s48, s50
    s_cselect_b32 s13, s49, s51
    s_mov_b32 s14, {P*D*2}
    s_mul_i32 s40, s63, {64*1280}
    s_mov_b32 s33, 128
    s_mul_i32 s65, s65, 1280
    v_mul_u32_u24 v22, 1280, v31
    s_mov_b32 exec_lo, 0xffff
    """)
    a.label("K1_LT_GO")
    a(f"""
    s_mov_b32 exec_hi, 0
    s_add_u32 s65, s65, s40
    s_lshl_b32 s66, s62, 8
    s_and_b32 s67, s61, 7
    s_lshl_b32 s67, s67, 5
    s_add_u32 s66, s66, s67
    s_lshl_b32 s67, s43, 4
    s_add_u32 s66, s66, s67
    s_mul_i32 s66, s66, 1280
    v_mul_u32_u24 v23, 1280, v31
    """)
    a.stamp(12)
    for t in range(LT):
        a(f"buffer_load_dword v{26+t}, v22, s[12:15], s65 offen\nbuffer_load_dword v{40+t}, v23, s[8:11], s66 offen offset:{128*t}\ns_add_u32 s65, s65, s33")
    a(f"""
    s_mov_b64 exec, -1
    v_mov_b32 v17, v22
    v_mul_u32_u24 v18, 1280, v31
    s_mov_b32 s88, s65
    s_add_u32 s89, s66, {128*LT}
    s_lshl_b32 s64, s62, 8
    s_lshl_b32 s65, s43, 7
    s_add_u32 s64, s64, s65
    s_mul_i32 s20, s64, 1280
    s_lshl_b32 s41, s43, 14
    v_lshrrev_b32 v20, 3, v1
    v_and_b32 v21, 7, v1
    s_movk_i32 s66, {16*1280}
    s_movk_i32 s67, {8*1280}
    s_cmp_lg_u64 vcc, 0
    s_cselect_b32 s66, {2*1280}, s66
    v_lshrrev_b32 v23, 4, v1
    v_xor_b32 v23, v23, v21
    v_bfe_u32 v24, v1, 5, 1
    v_lshlrev_b32 v24, 4, v24
    v_bfe_u32 v25, v1, 3, 1
    v_lshl_add_u32 v24, v25, 3, v24
    v_bfe_u32 v25, v1, 4, 1
    v_add_u32 v24, v24, v25
    v_cndmask_b32 v24, v20, v24, vcc
    v_mul_u32_u24 v24, 1280, v24
    v_lshl_add_u32 v4, v23, 4, v24
    s_cselect_b32 s67, {32*1280}, s67
    v_xor_b32 v5, 64, v4
    v_add_u32 v5, s67, v5
    s_add_u32 s21, s20, s66
    s_add_u32 s22, s21, s66
    s_add_u32 s23, s22, s66
    s_add_u32 s24, s20, {64*1280}
    s_add_u32 s25, s21, {64*1280}
    s_add_u32 s26, s22, {64*1280}
    s_add_u32 s27, s23, {64*1280}
    s_mov_b32 s36, 0
    s_mov_b32 s37, s41
    s_mul_i32 s42, s43, 10240
    s_add_u32 s42, s42, {WBASE}
    s_mov_b32 s30, s42
    s_add_u32 s31, s30, 5120
    s_cbranch_vccnz K1_LW_SSM
    s_mov_b32 s39, {32*3456}
    s_mov_b32 s34, 0
    """)
    for n in range(5):
        a(f"""
        v_add_u32 v22, {64*n}, v1
        v_mul_u32_u24 v23, 6554, v22
        v_lshrrev_b32 v23, 16, v23
        v_mul_u32_u24 v24, 10, v23
        v_sub_u32 v24, v22, v24
        v_and_b32 v25, 0x33, v23
        v_bfe_u32 v6, v23, 2, 1
        v_lshl_or_b32 v25, v6, 3, v25
        v_bfe_u32 v6, v23, 3, 1
        v_lshl_or_b32 v25, v6, 2, v25
        v_mul_u32_u24 v25, 3456, v25
        v_lshl_add_u32 v{12+n}, v24, 4, v25
        """)
    a("s_branch K1_LW_GO")
    a.label("K1_LW_SSM")
    a(f"""
    s_mov_b32 s39, {32*1280}
    s_mov_b32 s34, 0x40000000
    v_mul_u32_u24 v24, 1280, v20
    v_lshl_add_u32 v12, v23, 4, v24
    v_xor_b32 v13, 64, v12
    v_add_u32 v13, {8*1280}, v13
    v_add_u32 v14, {16*1280}, v12
    v_add_u32 v15, {16*1280}, v13
    v_mov_b32 v16, v12
    """)
    a.label("K1_LW_GO")
    def xdma(lo, hi):
        for k in range(lo, hi):
            c, q = divmod(k, 8)
            a(f"s_add_u32 m0, s37, {c*8192 + q*1024}\ns_add_u32 s68, s{20 + 4*c + (q >> 1)}, s36\nbuffer_load_dwordx4 v{4+(q & 1)}, s[8:11], s68 offen lds")
    def wdma(c, cnt=5, lo=0):
        if cnt > lo: a(f"s_add_u32 s69, s40, s39" if c else "s_mov_b32 s69, s40")
        for n in range(lo, cnt):
            if n == 4: a("s_add_u32 s69, s69, s34")
            a(f"s_add_u32 m0, s{30+c}, {n*1024}\ns_nop 0\nbuffer_load_dwordx4 v{12+n}, s[12:15], s69 offen lds")
    def adv():
        a(f"""
        s_add_u32 s40, s40, s33
        s_add_u32 s36, s36, 128
        s_add_u32 s37, s37, 32768
        s_add_u32 s30, s30, 20480
        s_cmp_ge_u32 s37, 98304
        s_cselect_b32 s37, s41, s37
        s_cselect_b32 s30, s42, s30
        s_add_u32 s31, s30, 5120
        """)
    NV = 26
    def ltouch():
        if LTD: a("buffer_load_dword v19, v17, s[12:15], s88 offen\nbuffer_load_dword v19, v18, s[8:11], s89 offen\ns_add_u32 s88, s88, s33\ns_add_u32 s89, s89, 128")
    NT = 4 if LTD else 0
    a(f"s_load_dwordx4 s[80:83], s[0:1], {KA['cre']}\ns_load_dwordx2 s[84:85], s[0:1], {KA['wd']}")
    a(f"s_waitcnt vmcnt({2*LT-2})")
    a.stamp(1)
    xdma(0, 16); wdma(0); wdma(1); adv()
    a(f"s_waitcnt vmcnt({NV//2})")
    xdma(0, 13)
    a(f"s_waitcnt vmcnt(13)\ns_mov_b32 s87, 0")
    a.stamp(2)
    a("s_barrier")
    a.stamp(16)
    xdma(13, 16); wdma(0); wdma(1); adv(); ltouch()
    if H0 == 3: wdma(0, 5, NLW); wdma(1)
    a.label("K1_LL")
    xdma(0, 16); wdma(0, NLW); adv(); ltouch()
    NF = NV; NV = 16 + NLW
    a(f"s_cmp_lg_u32 s87, {RPS}\ns_cbranch_scc1 K1_LNR")
    repack_issue(a)
    a.label("K1_LNR")
    a(f"s_add_u32 s87, s87, 1")
    a.dstamp(16, "s87")
    a(f"s_waitcnt vmcnt({NV + NT})")
    a.dstamp(2, "s87")
    a("s_barrier")
    a("s_cmp_lt_u32 s87, 8\ns_cbranch_scc1 K1_LL")
    if RPS <= 6:
        a("s_waitcnt vmcnt(0)")
        repack_finish(a)
    else:
        a("s_waitcnt vmcnt(11)")
    a.stamp(11)
    a("s_barrier")
    a.stamp(25)
    if RPS > 6:
        a("s_waitcnt vmcnt(0)")
        repack_finish(a)
        a("s_barrier")
    a("""
    s_mov_b64 exec, 1
    s_waitcnt vmcnt(0)
    buffer_store_dword v46, v2, s[20:23], s66 offen sc1
    s_mov_b64 exec, -1
    """)
    a.stamp(13)
    a(f"s_mov_b32 s47, {1 if RPS <= 6 else 0}\ns_setprio 0\ns_branch K1_P2")

def repack_issue(a):
    a(f"""
    s_waitcnt lgkmcnt(0)
    s_lshl_b32 s70, s35, 1
    s_add_u32 s70, s70, s43
    s_mul_i32 s65, s70, 40960
    s_mul_i32 s66, s62, 160
    s_add_u32 s65, s65, s66
    """)
    srd(a, 72, 54, 256)
    a("v_mov_b32 v40, 0\nbuffer_load_dword v46, v40, s[72:75], 0 offen sc1")
    srd(a, 72, 84, F*D*2)
    for n in range(5):
        a(f"""
        v_add_u32 v40, {64*n}, v1
        v_mul_u32_u24 v41, 6554, v40
        v_lshrrev_b32 v41, 16, v41
        v_mul_u32_u24 v42, 10, v41
        v_sub_u32 v42, v40, v42
        v_mul_u32_u24 v41, 1280, v41
        v_lshl_add_u32 v40, v42, 4, v41
        buffer_load_dwordx4 {vr(48+4*n,4)}, v40, s[72:75], s65 offen
        """)
    a(f"""
    s_sub_u32 s71, 63, s70
    s_bitcmp1_b32 s71, 1
    s_cselect_b32 s76, s82, s80
    s_cselect_b32 s77, s83, s81
    s_mov_b32 s78, {D*P*2}
    s_mov_b32 s79, 0x20000
    s_lshr_b32 s65, s71, 2
    s_lshl_b32 s65, s65, 7
    s_and_b32 s66, s71, 1
    s_lshl_b32 s66, s66, 6
    s_add_u32 s65, s65, s66
    s_mul_i32 s66, s62, {80*1280}
    s_add_u32 s65, s65, s66
    s_cmp_lt_u32 s71, 40
    s_cselect_b32 s65, s65, 0x40000000
    v_mul_u32_u24 v40, 1280, v31
    v_lshrrev_b32 v41, 4, v1
    v_lshl_add_u32 v40, v41, 4, v40
    """)
    for dt in range(5):
        a(f"buffer_load_dwordx4 {vr(68+4*dt,4)}, v40, s[76:79], s65 offen\ns_add_u32 s65, s65, {16*1280}")

def repack_finish(a):
    srd(a, 16, 4, WP_BYTES, WS_WP)
    srd(a, 20, 4, FLG_BYTES, WS_FLG)
    a(f"""
    s_mul_i32 s65, s43, 5120
    s_add_u32 s65, s65, {WBASE + 20480}
    v_lshlrev_b32 v2, 4, v1
    v_add_u32 v3, s65, v2
    v_lshrrev_b32 v6, 4, v1
    v_bfe_u32 v4, v1, 2, 2
    v_lshl_add_u32 v4, v6, 2, v4
    v_mul_u32_u24 v4, 160, v4
    v_and_b32 v5, 3, v1
    v_lshl_add_u32 v4, v5, 3, v4
    v_add_u32 v4, s65, v4
    """)
    for n in range(5): a(f"ds_write_b128 v3, {vr(48+4*n,4)} offset:{1024*n}")
    a(f"""
    s_mul_i32 s68, s62, {5*NS2*1024}
    s_lshl_b32 s65, s71, 10
    s_add_u32 s65, s65, s68
    s_cmp_lt_u32 s71, 40
    s_cselect_b32 s65, s65, 0x40000000
    s_waitcnt lgkmcnt(0)
    """)
    for dt in range(5):
        for h in range(2): a(f"ds_read_b64_tr_b16 {vr(88+4*dt+2*h,2)}, v4 offset:{2560*h + 32*dt}")
    for dt in range(5):
        a(f"buffer_store_dwordx4 {vr(68+4*dt,4)}, v2, s[16:19], s65 offen sc1\ns_add_u32 s65, s65, {NS2*1024}")
    a(f"""
    s_mul_i32 s65, s70, 52429
    s_lshr_b32 s65, s65, 18
    s_mul_i32 s66, s65, 5
    s_sub_u32 s66, s70, s66
    s_add_u32 s67, s70, 2
    s_mul_i32 s67, s67, 52429
    s_lshr_b32 s67, s67, 18
    s_sub_u32 s67, s70, s67
    s_add_u32 s67, s67, 40
    s_add_u32 s65, s65, 84
    s_cmp_eq_u32 s66, 2
    s_cselect_b32 s65, s65, s67
    s_lshl_b32 s65, s65, 10
    s_add_u32 s65, s65, s68
    s_cmp_lt_u32 s70, 54
    s_cselect_b32 s65, s65, 0x40000000
    s_waitcnt lgkmcnt(0)
    """)
    for dt in range(5):
        a(f"buffer_store_dwordx4 {vr(88+4*dt,4)}, v2, s[16:19], s65 offen sc1\ns_add_u32 s65, s65, {NS2*1024}")
    a(f"""
    s_lshl_b32 s66, s70, 2
    s_lshl_b32 s67, s62, 8
    s_add_u32 s66, s66, s67
    s_add_u32 s66, s66, 8192
    v_mov_b32 v2, 0
    """)

def helper_loop(a, glu, hooks={}):
    NJ = 5 if glu else 4
    SLOT = 20480
    NG = 14 if glu else 8
    def colsum(s, dst):
        off = (s % 3)*SLOT
        for ks in range(2):
            for j in range(NJ):
                r = 88 + 20*ks + 4*j
                if glu:
                    for h in range(2): a(f"ds_read_b64_tr_b16 {vr(r+2*h,2)}, v18 offset:{off + (8*h + 32*ks)*160 + 32*j}")
                else:
                    a(f"ds_read_b128 {vr(r,4)}, v{18 if ks == 0 else 16} offset:{off + j*2048 + (1024 if j >= 2 else 0)}")
            if ks == 0 and glu: a("s_waitcnt lgkmcnt(2)")
        for ks in range(2):
            a(f"s_waitcnt lgkmcnt({(2*NJ if glu else NJ) if ks == 0 else 0})")
            for j in range(NJ):
                a(f"v_mfma_f32_16x16x32_bf16 {vr(dst+4*j,4)}, v[56:59], {vr(88+20*ks+4*j,4)}, {vr(dst+4*j,4)}")
    def pick(dst):
        a(f"s_nop 7\nv_mov_b32 v24, v{dst}")
        for g in range(1, 4):
            a(f"v_cmp_eq_u32 vcc, {g}, v30\ns_nop 1\nv_cndmask_b32 v24, v24, v{dst+4*g}, vcc")
        if glu: a(f"v_mov_b32 v25, v{dst+16}")
    def remote_colsum(s):
        l4 = a.newlabel("K1_LC")
        a(f"s_cmp_lg_u32 s62, {s}\ns_cbranch_scc1 {l4}")
        colsum(s, 128); pick(128)
        a("v_mov_b32 v22, v24\nv_mov_b32 v23, s95\nbuffer_store_dwordx2 v[22:23], v17, s[28:31], s93 offen sc1")
        if glu: a("v_mov_b32 v28, v25\nv_mov_b32 v29, s95\ns_mov_b64 exec, 0xffff\nbuffer_store_dwordx2 v[28:29], v17, s[28:31], s93 offen offset:512 sc1\ns_mov_b64 exec, -1")
        a.label(l4)
    def red16(v):
        for r in (8, 4, 2, 1):
            a(f"s_nop 1\nv_add_f32_dpp v{v}, v{v}, v{v} row_ror:{r} row_mask:0xf bank_mask:0xf")
    inv640 = 0x3acccccd
    U = 148
    def stats_a():
        a("s_waitcnt vmcnt(0)")
        for k in range(20):
            a(f"v_lshlrev_b32 v{U+2*k}, 16, v{60+k}\nv_and_b32 v{U+1+2*k}, 0xffff0000, v{60+k}")
        a(f"v_pk_add_f32 v[22:23], {vr(U,2)}, {vr(U+2,2)}\nv_pk_add_f32 v[28:29], {vr(U+4,2)}, {vr(U+6,2)}")
        for k in range(U+8, U+40, 4):
            a(f"v_pk_add_f32 v[22:23], v[22:23], v[{k}:{k+1}]\nv_pk_add_f32 v[28:29], v[28:29], v[{k+2}:{k+3}]")
        a("v_pk_add_f32 v[22:23], v[22:23], v[28:29]\ns_nop 0\nv_add_f32 v22, v22, v23")
        red16(22)
        a(f"v_mul_f32 v80, {inv640:#x}, v22\nbuffer_load_dword v52, v55, s[20:23], 0 offen sc1")
    def stats_b():
        for k in range(U, U+40, 2):
            a(f"v_pk_add_f32 v[{k}:{k+1}], v[{k}:{k+1}], v[80:81] op_sel_hi:[1,0] neg_lo:[0,1] neg_hi:[0,1]")
        a(f"v_pk_mul_f32 v[22:23], {vr(U,2)}, {vr(U,2)}\nv_pk_mul_f32 v[28:29], {vr(U+2,2)}, {vr(U+2,2)}")
        for k in range(U+4, U+40, 4):
            a(f"v_pk_fma_f32 v[22:23], v[{k}:{k+1}], v[{k}:{k+1}], v[22:23]\nv_pk_fma_f32 v[28:29], v[{k+2}:{k+3}], v[{k+2}:{k+3}], v[28:29]")
        a("v_pk_add_f32 v[22:23], v[22:23], v[28:29]\ns_nop 0\nv_add_f32 v25, v22, v23")
        red16(25)
        a(f"v_mul_f32 v25, {inv640:#x}, v25")
        bf16r(a, 25, 25)
        a("v_add_f32 v25, 0x3727c5ac, v25")
        bf16r(a, 25, 25)
        a("""
        v_sqrt_f32 v25, v25
        s_nop 0
        v_cvt_pk_bf16_f32 v24, v25, v80
        v_mov_b32 v25, s95
        s_mov_b32 exec_lo, 0x10001
        s_mov_b32 exec_hi, 0x10001
        buffer_store_dwordx2 v[24:25], v26, s[24:27], 0 offen sc1
        s_mov_b64 exec, -1
        """)
    def gather_issue():
        a("buffer_load_dwordx2 v[26:27], v53, s[24:27], 0 offen sc1")
        a("buffer_load_dwordx2 v[28:29], v53, s[24:27], 0 offen offset:512 sc1")
        for r in range(6):
            a(f"s_add_u32 s66, s92, {r*1280}")
            a(f"buffer_load_dwordx2 {vr(60+2*r,2)}, v17, s[28:31], s66 offen sc1")
            if glu: a(f"buffer_load_dwordx2 {vr(72+2*r,2)}, v17, s[28:31], s66 offen offset:512 sc1")
    def get_epoch():
        lp = a.newlabel("K1_EP"); lo = a.newlabel("K1_EO")
        a("s_mov_b32 s67, 0")
        a.label(lp)
        a(f"""
        s_waitcnt vmcnt(0)
        v_readfirstlane_b32 s95, v52
        s_add_u32 s67, s67, 1
        s_cmp_lg_u32 s95, 0
        s_cbranch_scc1 {lo}
        s_sleep 4
        buffer_load_dword v52, v55, s[20:23], 0 offen sc1
        s_cmp_lt_u32 s67, 100000
        s_cbranch_scc1 {lp}
        """)
        a.label(lo)
    a(f"""
    s_lshl_b32 s66, s62, 8
    s_lshl_b32 s67, s35, 3
    s_add_u32 s66, s66, s67
    s_lshl_b32 s67, s43, 2
    s_add_u32 s66, s66, s67
    s_mul_i32 s94, s66, 1280
    v_mul_u32_u24 v54, 1280, v30
    v_lshl_add_u32 v54, v31, 4, v54
    v_add_u32 v26, s66, v30
    v_lshlrev_b32 v26, 3, v26
    """)
    for q in range(5):
        a(f"buffer_load_dwordx4 {vr(60+4*q,4)}, v54, s[8:11], s94 offen offset:{256*q}")
    if "preload" in hooks: hooks["preload"]()
    srd(a, 20, 54, 256)
    le = a.newlabel("K1_E0")
    a(f"""
    v_mov_b32 v55, 0
    s_or_b32 s66, s2, s43
    s_cmp_lg_u32 s66, 0
    s_cbranch_scc1 {le}
    s_memrealtime s[66:67]
    s_waitcnt lgkmcnt(0)
    s_or_b32 s66, s66, 1
    v_mov_b32 v52, s66
    s_mov_b64 exec, 1
    buffer_store_dword v52, v55, s[20:23], 0 offen sc1
    s_mov_b64 exec, -1
    """)
    a.label(le)
    srd(a, 24, 4, L*8, WS_STAT); srd(a, 28, 4, CSP_BYTES, WS_CSP)
    for r in range(32, 52): a(f"v_mov_b32 v{r}, 0")
    for r in range(128, 148): a(f"v_mov_b32 v{r}, 0")
    for r in range(56, 60): a(f"v_mov_b32 v{r}, 0x3f803f80")
    a(f"""
    s_lshl_b32 s92, s35, 3
    s_add_u32 s93, s92, s62
    s_lshl_b32 s93, s93, 1
    s_add_u32 s93, s93, s43
    s_mul_i32 s93, s93, 640
    s_lshl_b32 s92, s92, 1
    s_add_u32 s92, s92, s43
    s_mul_i32 s92, s92, 640
    v_lshlrev_b32 v19, 2, v1
    v_lshlrev_b32 v17, 3, v1
    """)
    WVO = [2, 3, 4, 5, 12]
    pcs = [(c, n) for c in range(2) for n in range(NJ) if c == 1 or n >= NLW]
    p0, p1 = (56, 58) if glu else (48, 50)
    KADV = 64*3456 if glu else 128
    def wsetup():
        a(f"""
        s_cmp_eq_u32 s43, 0
        s_cselect_b32 s12, s{p0}, s{p1}
        s_cselect_b32 s13, s{p0+1}, s{p1+1}
        s_mov_b32 s14, {D*F*2 if glu else P*D*2}
        s_mov_b32 s15, 0x20000
        s_mul_i32 s42, s43, 10240
        s_add_u32 s42, s42, {WBASE}
        """)
        if glu:
            a(f"s_sub_u32 s40, s35, 10\ns_mul_i32 s40, s40, 160")
            for n in range(5):
                a(f"""
                v_add_u32 v22, {64*n}, v1
                v_mul_u32_u24 v23, 6554, v22
                v_lshrrev_b32 v23, 16, v23
                v_mul_u32_u24 v24, 10, v23
                v_sub_u32 v24, v22, v24
                v_and_b32 v25, 0x33, v23
                v_bfe_u32 v6, v23, 2, 1
                v_lshl_or_b32 v25, v6, 3, v25
                v_bfe_u32 v6, v23, 3, 1
                v_lshl_or_b32 v25, v6, 2, v25
                v_mul_u32_u24 v25, 3456, v25
                v_lshl_add_u32 v{WVO[n]}, v24, 4, v25
                """)
        else:
            a(f"""
            s_mul_i32 s40, s35, {64*1280}
            v_xor_b32 v23, v30, v21
            v_mul_u32_u24 v24, 1280, v20
            v_lshl_add_u32 v2, v23, 4, v24
            v_xor_b32 v3, 64, v2
            v_add_u32 v3, {8*1280}, v3
            v_add_u32 v4, {16*1280}, v2
            v_add_u32 v5, {16*1280}, v3
            """)
    def hdma(st):
        for c, n in pcs:
            a(f"s_add_u32 m0, s42, {(st % 3)*SLOT + c*5120 + n*1024}\ns_add_u32 s41, s40, {st*KADV + c*32*(3456 if glu else 1280)}\nbuffer_load_dwordx4 v{WVO[n]}, s[12:15], s41 offen lds")
    wsetup()
    stats_a()
    q = []
    nxt = H0
    for s in range(10):
        if s >= H0:
            last = max(i for i, t in enumerate(q) if t == s)
            a(f"s_waitcnt vmcnt({len(q) - 1 - last})")
        a.stamp(2 + s)
        a("s_barrier")
        a.stamp(16 + s)
        if s == 0: get_epoch(); stats_b()
        while nxt <= min(9, s + 2 - (1 if s in DEF else 0)):
            hdma(nxt); q += [nxt]*len(pcs); nxt += 1
        if s == 8: q += ["g"]*NG
        if s <= 5 and "norc" not in EXP: remote_colsum(s)
        if ("side", s) in hooks: hooks[("side", s)]()
        if s == 8: gather_issue()
        if s >= 6: colsum(s, 32)
    pick(32)
    a.stamp(12)
    a(f"""
    s_mov_b64 s[32:33], 0xffff
    s_mul_i32 s65, s43, {NJ*64}
    v_add_u32 v22, s65, v19
    v_add_u32 v22, {LDS_CS}, v22
    s_lshl_b32 s65, s43, 9
    v_add_u32 v23, s65, v19
    v_add_u32 v23, {LDS_STA}, v23
    s_mov_b32 s67, 0
    v_mov_b32 v84, s95
    v_mov_b32 v85, 0
    v_mov_b32 v86, 0
    v_mov_b32 v87, 0
    v_mov_b32 v88, {LDS_SYNC}
    ds_write_b128 v88, v[84:87]
    ds_write_b64 v88, v[86:87] offset:16
    ds_write_b64 v88, v[86:87] offset:24
    s_waitcnt vmcnt(0)
    """)
    lp = a.newlabel("K1_GP"); lo = a.newlabel("K1_GO")
    a.label(lp)
    tags = [27, 29] + [61+2*r for r in range(6)]
    a(f"v_cmp_eq_u32 s[68:69], s95, v{tags[0]}")
    for t in tags[1:]: a(f"v_cmp_eq_u32 vcc, s95, v{t}\ns_and_b64 s[68:69], s[68:69], vcc")
    if glu:
        for r in range(6): a(f"v_cmp_eq_u32 vcc, s95, v{73+2*r}\ns_or_b64 vcc, vcc, 0xffffffffffff0000\ns_and_b64 s[68:69], s[68:69], vcc" if False else
                             f"v_cmp_eq_u32 vcc, s95, v{73+2*r}\ns_orn2_b64 vcc, vcc, s[32:33]\ns_and_b64 s[68:69], s[68:69], vcc")
    a(f"""
    s_cmp_eq_u64 s[68:69], -1
    s_cbranch_scc1 {lo}
    s_add_u32 s67, s67, 1
    s_cmp_ge_u32 s67, 100000
    s_cbranch_scc1 {lo}
    s_sleep 4
    """)
    gather_issue()
    a(f"s_waitcnt vmcnt(0)\ns_branch {lp}")
    a.label(lo)
    a("""
    v_lshlrev_b32 v27, 16, v26
    v_lshlrev_b32 v29, 16, v28
    v_and_b32 v26, 0xffff0000, v26
    v_and_b32 v28, 0xffff0000, v28
    v_rcp_f32 v27, v27
    v_rcp_f32 v29, v29
    ds_write_b32 v23, v26 offset:1024
    ds_write_b32 v23, v28 offset:1280
    ds_write_b32 v23, v27
    ds_write_b32 v23, v29 offset:256
    """)
    for r in range(6):
        a(f"v_add_f32 v24, v24, v{60+2*r}")
        if glu: a(f"v_add_f32 v25, v25, v{72+2*r}")
    a("ds_write_b32 v22, v24")
    if glu: a("s_mov_b64 exec, 0xffff\nds_write_b32 v22, v25 offset:256\ns_mov_b64 exec, -1")
    a.stamp(13)
    a("s_waitcnt lgkmcnt(0)\ns_barrier")
    a.stamp(14)

PFD = int(os.environ.get("PFD", "4"))
PF0 = int(os.environ.get("PF0", "2"))
def prefetch_setup(a, glu):
    if not PF: return {}
    KADV = 64*3456 if glu else 128
    p0, p1 = (56, 58) if glu else (48, 50)
    a(f"""
    s_cmp_eq_u32 s3, 0
    s_cselect_b32 s12, s{p0}, s{p1}
    s_cselect_b32 s13, s{p0+1}, s{p1+1}
    s_mov_b32 s14, {D*F*2 if glu else P*D*2}
    s_mov_b32 s15, 0x20000
    s_mov_b32 s81, {KADV}
    s_lshr_b32 s82, s61, 3
    s_lshl_b32 s82, s82, 4
    """)
    if glu:
        a(f"""
        s_mul_i32 s80, s82, 3456
        s_mul_i32 s82, s63, 160
        s_add_u32 s80, s80, s82
        v_mul_u32_u24 v14, 3456, v31
        v_bfe_u32 v15, v1, 4, 1
        v_mul_u32_u24 v15, 156, v15
        v_add_u32 v14, v14, v15
        s_mov_b32 s83, 32
        """)
    else:
        a(f"""
        s_lshl_b32 s80, s63, 6
        s_add_u32 s80, s80, s82
        s_mul_i32 s80, s80, 1280
        v_mul_u32_u24 v14, 1280, v31
        s_mov_b32 s83, 16
        """)
    a(f"""
    s_lshl_b32 s82, s62, 8
    s_and_b32 s84, s61, 7
    s_lshl_b32 s84, s84, 5
    s_add_u32 s82, s82, s84
    s_mul_i32 s82, s82, 1280
    v_mul_u32_u24 v15, 1280, v1
    s_cmp_eq_u32 s3, 2
    s_cselect_b32 s12, s8, s12
    s_cselect_b32 s13, s9, s13
    s_cselect_b32 s14, s10, s14
    s_cselect_b32 s80, s82, s80
    s_cselect_b32 s81, 128, s81
    s_cselect_b32 s83, 32, s83
    s_cselect_b64 vcc, -1, 0
    s_cmp_eq_u32 s3, 3
    s_cselect_b32 s83, 0, s83
    v_cndmask_b32 v14, v14, v15, vcc
    v_cmp_gt_u32 vcc, s83, v1
    v_mov_b32 v15, 0x40000000
    s_nop 0
    v_cndmask_b32 v14, v15, v14, vcc
    """)
    def touch():
        a("s_add_u32 s80, s80, s81\nbuffer_load_dword v16, v14, s[12:15], s80 offen")
    for _ in range(LT - 1): a("s_add_u32 s80, s80, s81")
    for _ in range(PFD - LT): touch()
    return {"touch": touch}

def lds_spin(a, lab, va, off, cond, init=False, vt=4):
    if init: a(f"v_mov_b32 v{va}, {LDS_SYNC}")
    a("s_mov_b32 s67, 0")
    a.label(lab)
    a(f"""
    ds_read_b32 v{vt}, v{va} offset:{off}
    s_add_u32 s67, s67, 1
    s_waitcnt lgkmcnt(0)
    v_readfirstlane_b32 s66, v{vt}
    {cond}
    s_cbranch_scc1 {lab}_OK
    s_cmp_ge_u32 s67, 1000000
    s_cbranch_scc1 {lab}_OK
    s_sleep 1
    s_branch {lab}
    """)
    a.label(lab + "_OK")

def consumer_flag(a):
    srd(a, 20, 4, FLG_BYTES, WS_FLG)
    a(f"""
    s_lshl_b32 s66, s62, 2
    s_add_u32 s66, s66, s3
    s_lshl_b32 s66, s66, 8
    s_lshl_b32 s67, s35, 2
    s_add_u32 s66, s66, s67
    v_mov_b32 v2, 0
    v_mov_b32 v3, s95
    v_mov_b32 v4, {LDS_SYNC}
    v_mov_b32 v5, 1
    s_mov_b64 exec, 1
    s_mov_b32 s47, 0
    s_mov_b32 s67, 0
    """)
    a.stamp(16)
    a("""
    s_waitcnt vmcnt(0)
    buffer_store_dword v3, v2, s[20:23], s66 offen sc1
    ds_add_u32 v4, v5 offset:12
    s_mov_b64 exec, -1
    s_setprio 0
    """)
    a.stamp(17)
    a.label("K1_CW")
    a("""
    ds_read_b32 v6, v4 offset:12
    s_add_u32 s67, s67, 1
    s_waitcnt lgkmcnt(0)
    v_readfirstlane_b32 s66, v6
    s_and_b32 s66, s66, 15
    s_cmp_ge_u32 s66, 4
    s_cbranch_scc1 K1_P2
    s_cmp_ge_u32 s67, 1000000
    s_cbranch_scc1 K1_P2
    s_sleep 1
    s_branch K1_CW
    """)

M2MAP = ['''s_bfe_u32 s49, s50, 0x10003
    s_lshl_b32 s49, s49, 2
    s_bfe_u32 s65, s50, 0x20001
    s_add_u32 s49, s49, s65
    s_lshr_b32 s48, s50, 4
    s_lshl_b32 s48, s48, 1
    s_and_b32 s65, s50, 1
    s_add_u32 s48, s48, s65''',
    's_and_b32 s49, s50, 7\ns_lshr_b32 s48, s50, 3',
    '''s_lshr_b32 s49, s50, 3
    s_lshl_b32 s49, s49, 1
    s_bfe_u32 s65, s50, 0x10002
    s_add_u32 s49, s49, s65
    s_and_b32 s48, s50, 3'''][M2]
def phase2(a):
    PA = 16
    def pacc(j, i): return PA + 4*(j*4 + i)
    HB = 96
    def hreg(n, i): return HB + 16*(n % NH) + 4*i
    def bH(n, i): return vr(hreg(n, i), 4)
    WV = HB + 16*NH; nwv = (192 - WV)//20
    assert 20*(NW - nwv) <= 60
    def wreg(n, j):
        b = n % NW
        return vr(WV + 20*b + 4*j, 4) if b < nwv else ar(20*(b - nwv) + 4*j, 4)
    NK = 12
    a.label("K1_P2")
    a.vm = []
    a(f"""
    s_and_b32 s46, s3, 3
    s_mov_b32 s50, s35
    {M2MAP}
    s_lshl_b32 s51, s48, 6
    s_lshl_b32 s65, s62, 2
    s_add_u32 s48, s48, s65
    s_mul_i32 s52, s49, {5*NS2*1024}
    s_add_u32 s53, s52, {NS2*1024}
    s_add_u32 s54, s52, {2*NS2*1024}
    s_add_u32 s55, s52, {3*NS2*1024}
    s_add_u32 s56, s52, {4*NS2*1024}
    s_xor_b32 s65, s3, 2
    s_cmp_ge_u32 s3, 4
    s_cselect_b32 s65, s65, s3
    s_mul_i32 s36, s65, 20480
    s_movk_i32 s41, 4096
    s_cselect_b32 s40, s41, {(-81920) & 0xffffffff}
    s_cselect_b32 s41, 12288, s41
    s_mov_b32 s66, {76*1024}
    s_cselect_b32 s66, {40*1024}, s66
    s_cmp_eq_u32 s3, 3
    s_cselect_b32 s38, 0x40000000, 0
    s_sub_u32 s40, s40, s38
    s_add_u32 s38, s38, 4096
    s_cmp_eq_u32 s3, 7
    s_cselect_b32 s39, 0x40000000, 0
    s_add_u32 s39, s39, 4096
    s_lshl_b32 s65, s46, 10
    s_add_u32 s65, s65, s66
    v_lshlrev_b32 v2, 4, v1
    v_add_u32 v3, s65, v2
    v_mov_b32 v4, v3
    v_add_u32 v13, s36, v2
    v_and_b32 v5, 15, v1
    v_lshrrev_b32 v6, 4, v1
    v_mov_b32 v9, {LDS_SYNC}
    """)
    srd(a, 8, 4, HP_BYTES, WS_HP)
    srd(a, 12, 4, WP_BYTES, WS_WP)
    srd(a, 20, 4, FLG_BYTES, WS_FLG)
    for i in range(4):
        a(f"s_xor_b32 s65, s46, {i}\ns_lshl_b32 s66, s48, 2\ns_add_u32 s65, s65, s66\ns_mul_i32 s{32+i}, s65, {NS2*1024}")
    a(f"""
    s_lshl_b32 s65, s48, 6
    s_lshl_b32 s66, s46, 4
    s_add_u32 s65, s65, s66
    v_add_u32 v7, s65, v5
    v_lshlrev_b32 v12, 2, v6
    s_mul_i32 s66, s49, 80
    v_add_u32 v12, s66, v12
    v_mul_u32_u24 v7, 640, v7
    v_add_u32 v7, v7, v12
    v_lshlrev_b32 v8, 1, v7
    v_lshlrev_b32 v7, 2, v7
    v_lshlrev_b32 v12, 1, v12
    """)
    srd(a, 28, 100, L*D*4)
    def dma(n):
        for j in range(5):
            a(f"s_add_u32 m0, s36, {(n - NW)*5120 + j*1024}\ns_nop 0")
            a.vmem(f"buffer_load_dwordx4 v4, s[12:15], s{52+j} offen sc1 lds", ("W", n))
        a(f"v_add_u32 v4, { {0: 's38', 1: 's40', 8: 's41', 10: 's39'}.get(n, '4096')}, v4")
    def loadW(n, j):
        if NW <= n < NW + NL:
            a(f"ds_read_b128 {wreg(n, j)}, v13 offset:{(n - NW)*5120 + j*1024}")
            return
        a.vmem(f"buffer_load_dwordx4 {wreg(n, j)}, v4, s[12:15], s{52+j} offen sc1", ("W", n))
        if j == 4: a(f"v_add_u32 v4, { {0: 's38', 1: 's40', 8: 's41', 10: 's39'}.get(n, '4096')}, v4")
    def loadH(n):
        for i in range(4):
            a.vmem(f"buffer_load_dwordx4 {bH(n,i)}, v3, s[8:11], s{32+i} offen sc1", ("H", n))
        a(f"v_add_u32 v3, { {0: 's38', 1: 's40', 8: 's41', 10: 's39'}.get(n, '4096')}, v3")
    def wait_flags(tag, poller, off, mask, word):
        a(f"s_mov_b32 s67, 0\n{poller}\ns_cbranch_scc0 K1_P2SPIN{tag}")
        a.label(f"K1_P2POLL{tag}")
        a(f"""
        buffer_load_dword v6, v5, s[20:23], {off} offen sc1
        s_waitcnt vmcnt(0)
        v_cmp_eq_u32 vcc, s95, v6
        s_add_u32 s67, s67, 1
        {mask}
        s_cbranch_scc1 K1_P2SET{tag}
        s_cmp_ge_u32 s67, 100000
        s_cbranch_scc1 K1_P2SET{tag}
        s_sleep {PSL if tag == "W" else PSH}
        s_branch K1_P2POLL{tag}
        """)
        a.label(f"K1_P2SET{tag}")
        a(f"v_mov_b32 v6, 1\nds_write_b32 {word}, v6\ns_branch K1_P2GO{tag}".replace("@", ""))
        a.label(f"K1_P2SPIN{tag}")
        a(f"""
        ds_read_b32 v6, {word}
        s_add_u32 s67, s67, 1
        s_waitcnt lgkmcnt(0)
        v_readfirstlane_b32 s66, v6
        s_cmp_lg_u32 s66, 0
        s_cbranch_scc1 K1_P2GO{tag}
        s_cmp_ge_u32 s67, 1000000
        s_cbranch_scc1 K1_P2GO{tag}
        s_sleep 1
        s_branch K1_P2SPIN{tag}
        """)
        a.label(f"K1_P2GO{tag}")
    a("s_cmp_lt_u32 s3, 4\ns_cbranch_scc1 K1_P2W")
    EX = HB
    srd(a, 16, 6, XN_BYTES)
    srd(a, 24, 96, D*2)
    for jd in range(5):
        a(f"buffer_load_dwordx2 {vr(EX+2*jd,2)}, v8, s[16:19], 0 offen offset:{32*jd}")
        a(f"buffer_load_dwordx2 {vr(EX+10+2*jd,2)}, v12, s[24:27], 0 offen offset:{32*jd}")
    a(f"""
    v_bfe_u32 v14, v1, 1, 2
    v_lshlrev_b32 v14, 4, v14
    v_and_b32 v10, 1, v1
    v_lshl_add_u32 v14, v10, 1, v14
    v_bfe_u32 v10, v1, 3, 1
    v_add_u32 v14, v14, v10
    s_lshl_b32 s65, s46, 2
    v_add_u32 v14, s65, v14
    s_lshl_b32 s65, s46, 4
    v_add_u32 v10, s65, v5
    s_cmp_lt_u32 s50, 10
    s_cselect_b64 vcc, -1, 0
    v_cndmask_b32 v14, v10, v14, vcc
    v_add_u32 v14, s51, v14
    v_lshlrev_b32 v14, 2, v14
    v_add_u32 v14, {LDS_STA}, v14
    """)
    a.label("K1_P2BAR")
    a("""
    s_cmp_eq_u32 s47, 0
    s_cbranch_scc1 K1_P2E
    s_barrier
    s_sub_u32 s47, s47, 1
    s_branch K1_P2BAR
    """)
    a.label("K1_P2E")
    a(f"""
    ds_read_b32 v11, v14
    ds_read_b32 v10, v14 offset:1024
    ds_read_b32 v12, v9
    v_mov_b32 v14, 16
    s_waitcnt lgkmcnt(0)
    v_readfirstlane_b32 s95, v12
    s_mov_b64 exec, 1
    ds_add_u32 v9, v14 offset:12
    s_mov_b64 exec, -1
    """)
    a.label("K1_P2W")
    a(f"""
    v_lshlrev_b32 v5, 2, v1
    s_lshl_b32 s65, s49, 8
    s_add_u32 s65, s65, 8192
    v_add_u32 v14, 16, v9
    """)
    def ssm_hold(t):
        a(f"s_cmp_ge_u32 s50, 10\ns_cbranch_scc1 K1_HL{t}_OK")
        lds_spin(a, f"K1_HL{t}", 9, 24, "s_cmp_lg_u32 s66, 0", vt=6)
    a.stamp(21)
    if WS6 == 2: ssm_hold("A")
    wait_flags("W", "s_cmp_eq_u32 s3, 4", "s65", "s_cmp_eq_u64 vcc, -1", "v14")
    a.stamp(22)
    for n in range(NW):
        for j in range(5): loadW(n, j)
    if WS6 == 1: ssm_hold("A")
    for n in range(NW, NW + NL): dma(n)
    for r in range(PA, PA + 80): a(f"v_mov_b32 v{r}, 0")
    a(f"s_cmp_lt_u32 s3, 4\ns_cbranch_scc1 K1_P2W2\ns_waitcnt vmcnt({5*(NW + NL)})")
    for jd in range(5):
        for h in range(2):
            x = EX+2*jd+h; ds = EX+10+2*jd+h; T = pacc(jd, 0) + 2*h
            a(f"""
            v_lshlrev_b32 v14, 16, v{x}
            v_and_b32 v15, 0xffff0000, v{x}
            v_sub_f32 v12, v14, v10
            v_sub_f32 v8, v15, v10
            v_cvt_pk_bf16_f32 v12, v12, v8
            v_and_b32 v8, 0xffff0000, v12
            v_lshlrev_b32 v12, 16, v12
            v_mul_f32 v12, v12, v11
            v_mul_f32 v8, v8, v11
            v_cvt_pk_bf16_f32 v12, v12, v8
            v_and_b32 v8, 0xffff0000, v12
            v_lshlrev_b32 v12, 16, v12
            v_lshlrev_b32 v5, 16, v{ds}
            v_and_b32 v6, 0xffff0000, v{ds}
            v_mul_f32 v12, v12, v5
            v_mul_f32 v8, v8, v6
            v_cvt_pk_bf16_f32 v12, v12, v8
            v_and_b32 v8, 0xffff0000, v12
            v_lshlrev_b32 v12, 16, v12
            v_add_f32 v{T}, v12, v14
            v_add_f32 v{T+1}, v8, v15
            """)
    a.label("K1_P2W2")
    a(f"""
    v_add_u32 v10, 4, v9
    v_add_u32 v11, 8, v9
    v_and_b32 v5, 31, v1
    v_lshlrev_b32 v5, 2, v5
    s_lshl_b32 s65, s48, 8
    """)
    a.stamp(26)
    if os.environ.get("HOLD", "1") == "1": lds_spin(a, "K1_HD", 9, 12, "s_and_b32 s66, s66, 15\ns_cmp_ge_u32 s66, 4", vt=6)
    wait_flags("H", "s_cmp_eq_u32 s3, 4", "s65", "s_or_b32 s66, vcc_lo, 0x3ff\ns_cmp_eq_u32 s66, -1", "v10")
    a.stamp(27)
    loadH(0); loadH(1)
    a("s_cmp_ge_u32 s3, 4\ns_cbranch_scc1 K1_P2GOS")
    wait_flags("S", "s_cmp_eq_u32 s3, 0", "s65", "s_and_b32 s66, vcc_lo, 0x3ff\ns_cmp_eq_u32 s66, 0x3ff", "v11")
    a.stamp(23); a.lines.append("  ;@CSTAMP 24")
    for n in range(2, NH): loadH(n)
    PRI = os.environ.get("PRI", "")
    for n in range(NK):
        if PRI and n == 0:
            lp = a.newlabel("K1_PR"); a(f"s_cmp_lt_u32 s3, 4\ns_cbranch_scc1 {lp}\ns_setprio 2"); a.label(lp)
        if PRI and n == int(PRI): a("s_setprio 0")
        a.vmwait([("H", n), ("W", n)], "lgkmcnt(0)" if NW <= n < NW + NL else "")
        if n in (1, 5, 9): a.stamp(18 + n//4)
        sk = None
        if n in (1, 11):
            sk = a.newlabel("K1_P2SK")
            a(f"s_cmp_eq_u32 s3, {3 if n == 1 else 7}\ns_cbranch_scc1 {sk}")
        if n >= 9:
            lo = a.newlabel("K1_P2O"); le = a.newlabel("K1_P2X")
            h0 = hreg(n, 0)
            a(f"s_cmp_lt_u32 s3, 4\ns_cbranch_scc1 {le}\ns_bitcmp1_b32 s3, 0\ns_cbranch_scc1 {lo}")
            for p in range(2):
                for e in range(2): a(f"v_swap_b32 v{h0+8*p+2+e}, v{h0+8*p+4+e}")
            a(f"s_branch {le}")
            a.label(lo)
            for p in range(2):
                for e in range(2): a(f"v_swap_b32 v{h0+8*p+e}, v{h0+8*p+6+e}")
            a.label(le)
            a("s_nop 1")
        for j in range(5):
            for i in range(4):
                a(f"v_mfma_f32_16x16x32_bf16 {vr(pacc(j,i),4)}, {wreg(n, j)}, {bH(n,i)}, {vr(pacc(j,i),4)}")
            if n + NW < NK and j >= 1 and sk is None: loadW(n + NW, j - 1)
        if sk:
            a.label(sk)
            if n + NW < NK:
                for j in range(4): loadW(n + NW, j)
        if n + NH < NK: loadH(n + NH)
        if n + NW < NK: loadW(n + NW, 4)
    a.label("K1_P2FIN")
    a.stamp(28); a.lines.append("  ;@CSTAMP 25")
    a(f"""
    v_add_u32 v10, s36, v2
    s_mov_b32 s67, 0
    """)
    a.label("K1_P2G")
    a(f"""
    ds_read_b32 v6, v9 offset:12
    s_add_u32 s67, s67, 1
    s_waitcnt vmcnt(0) lgkmcnt(0)
    v_readfirstlane_b32 s66, v6
    s_cmp_ge_u32 s66, 68
    s_cbranch_scc1 K1_P2GD
    s_cmp_ge_u32 s67, 1000000
    s_cbranch_scc1 K1_P2GD
    s_sleep 1
    s_branch K1_P2G
    """)
    a.label("K1_P2GD")
    for i in range(1, 4):
        for j in range(5):
            a(f"ds_write_b128 v10, {vr(pacc(j,i),4)} offset:{((i-1)*5 + j)*1024}")
    RA = HB
    for m in range(1, 8):
        a(f"""
        s_xor_b32 s65, s3, {m}
        s_xor_b32 s66, s65, 2
        s_cmp_ge_u32 s65, 4
        s_cselect_b32 s65, s66, s65
        s_mul_i32 s65, s65, 20480
        s_add_u32 s65, s65, {(((m & 3) + 3) & 3)*5120}
        v_add_u32 v{RA+m-1}, s65, v2
        """)
    a("s_cmp_lt_u32 s3, 4\ns_cbranch_scc1 K1_P2FB")
    for grp in range(2):
        own = [0, 1, 2] if grp == 0 else [3, 4]
        oth = [3, 4] if grp == 0 else [0, 1, 2]
        if grp: a.label("K1_P2FB")
        for j in oth: a(f"ds_write_b128 v10, {vr(pacc(j,0),4)} offset:{(15 + j)*1024}")
        a("s_waitcnt lgkmcnt(0)\ns_barrier")
        a.stamp(29)
        D0 = HB + 8
        for x, j in enumerate(own):
            for m in range(7):
                a(f"ds_read_b128 {vr(D0+28*x+4*m,4)}, v{RA+m} offset:{j*1024}")
        for x, j in enumerate(own):
            rem = 7*(len(own) - 1 - x)
            d = D0 + 28*x; T = pacc(j, 0)
            a(f"s_waitcnt lgkmcnt({min(15, rem + 3)})")
            for h in range(2):
                a(f"v_pk_add_f32 {vr(d+2*h,2)}, {vr(d+2*h,2)}, {vr(d+4+2*h,2)}")
                a(f"v_pk_add_f32 {vr(d+8+2*h,2)}, {vr(d+8+2*h,2)}, {vr(d+12+2*h,2)}")
            for h in range(2): a(f"v_pk_add_f32 {vr(T+2*h,2)}, {vr(T+2*h,2)}, {vr(d+2*h,2)}")
            for h in range(2): a(f"v_pk_add_f32 {vr(T+2*h,2)}, {vr(T+2*h,2)}, {vr(d+8+2*h,2)}")
            a(f"s_waitcnt lgkmcnt({min(15, rem)})")
            for h in range(2): a(f"v_pk_add_f32 {vr(d+16+2*h,2)}, {vr(d+16+2*h,2)}, {vr(d+20+2*h,2)}")
            for h in range(2): a(f"v_pk_add_f32 {vr(T+2*h,2)}, {vr(T+2*h,2)}, {vr(d+24+2*h,2)}")
            for h in range(2): a(f"v_pk_add_f32 {vr(T+2*h,2)}, {vr(T+2*h,2)}, {vr(d+16+2*h,2)}")
            a(f"buffer_store_dwordx4 {vr(T,4)}, v7, s[28:31], 0 offen offset:{64*j} sc1")
        a.stamp(30)
        a("s_endpgm")

XM = int(os.environ.get("XM", "0"))
XMAP = ["s_lshr_b32 s62, s60, 2\ns_and_b32 s63, s60, 3",
        "s_and_b32 s62, s60, 1\ns_lshr_b32 s63, s60, 1\ns_add_u32 s63, s63, 2\ns_and_b32 s63, s63, 3",
        "s_and_b32 s62, s60, 1\ns_lshr_b32 s63, s60, 1"][XM]
def gen_k1():
    a = Asm()
    a.raw(".p2align 8\n.type gemm1_kernel,@function\ngemm1_kernel:")
    a(f"""
    s_cmp_ge_u32 s2, 256
    s_cbranch_scc1 K1_END
    s_load_dwordx2 s[4:5], s[0:1], {KA['ws']}
    s_load_dwordx2 s[6:7], s[0:1], {KA['x']}
    s_load_dwordx4 s[44:47], s[0:1], {KA['lre']}
    s_load_dwordx4 s[48:51], s[0:1], {KA['bre']}
    s_load_dwordx2 s[52:53], s[0:1], {KA['ldt']}
    s_load_dwordx2 s[54:55], s[0:1], {KA['dbg']}
    s_load_dwordx4 s[56:59], s[0:1], {KA['wg']}
    s_load_dwordx2 s[96:97], s[0:1], {KA['dsk']}
    s_load_dwordx2 s[100:101], s[0:1], {KA['out']}
    v_and_b32 v1, 63, v0
    v_lshrrev_b32 v2, 6, v0
    s_nop 0
    v_readfirstlane_b32 s3, v2
    s_and_b32 s60, s2, 7
    s_lshr_b32 s61, s2, 3
    {XMAP}
    s_lshl_b32 s62, s62, 2
    s_lshr_b32 s64, s61, 3
    s_add_u32 s62, s62, s64
    s_lshl_b32 s63, s63, 3
    s_and_b32 s64, s61, 7
    s_add_u32 s63, s63, s64
    s_mov_b32 s35, s63
    s_waitcnt lgkmcnt(0)
    """)
    srd(a, 8, 6, XN_BYTES)
    a("""
    s_sub_u32 s65, s3, 4
    s_cmp_ge_u32 s65, 2
    s_cbranch_scc1 K1_NOTLOADER
    """)
    loader_code(a)
    a.label("K1_NOTLOADER")
    if os.environ.get("CPF", "1") == "1":
        a(f"""
        s_cmp_lg_u32 s3, 3
        s_cbranch_scc1 K1_NOCPF
        s_getpc_b64 s[66:67]
        K1_PCREF:
        s_sub_u32 s66, s66, K1_PCREF-gemm1_kernel
        s_subb_u32 s67, s67, 0
        s_lshl_b32 s65, s61, 11
        v_lshlrev_b32 v14, 7, v1
        v_add_u32 v14, s65, v14
        v_cmp_gt_u32 vcc, CODE_END-gemm1_kernel, v14
        s_and_b64 exec, vcc, 0xffff
        s_cbranch_execz K1_CPFSKIP
        global_load_dword v16, v14, s[66:67]
        K1_CPFSKIP:
        s_mov_b64 exec, -1
        K1_NOCPF:
        """)
    srd(a, 16, 4, HP_BYTES, WS_HP)
    srd(a, 76, 4, AGG_BYTES, WS_AGG)
    a(f"""
    v_lshrrev_b32 v30, 4, v1
    v_and_b32 v31, 15, v1
    v_lshrrev_b32 v10, 1, v31
    v_xor_b32 v10, v10, v30
    v_lshlrev_b32 v11, 7, v31
    v_lshl_add_u32 v10, v10, 4, v11
    v_bfe_u32 v14, v1, 2, 2
    v_bfe_u32 v15, v1, 4, 1
    v_lshl_add_u32 v14, v15, 2, v14
    v_bfe_u32 v15, v1, 5, 1
    v_lshl_add_u32 v14, v15, 4, v14
    v_mul_u32_u24 v14, 160, v14
    v_and_b32 v15, 3, v1
    v_lshl_add_u32 v11, v15, 3, v14
    s_cmp_ge_u32 s3, 4
    s_cbranch_scc1 K1_HELPER
    """)
    a(f"""
    s_lshl_b32 s65, s3, 13
    v_add_u32 v2, s65, v10
    v_xor_b32 v3, 64, v2
    v_add_u32 v4, 32768, v2
    v_add_u32 v5, 32768, v3
    v_add_u32 v6, 65536, v2
    v_add_u32 v7, 65536, v3
    s_lshl_b32 s64, s62, 4
    s_lshl_b32 s65, s3, 2
    s_add_u32 s64, s64, s65
    s_mul_i32 s64, s64, {NS2*1024}
    v_lshlrev_b32 v12, 4, v1
    s_cmp_lt_u32 s63, 10
    s_cbranch_scc1 K1_SSM
    """)
    a(f"""
    s_sub_u32 s63, s63, 10
    v_add_u32 v8, {WBASE}, v11
    s_lshr_b32 s65, s63, 1
    s_and_b32 s66, s63, 1
    s_lshl_b32 s67, s65, 2
    s_lshl_b32 s68, s66, 1
    s_add_u32 s67, s67, s68
    s_add_u32 s67, s67, 40
    s_lshl_b32 s67, s67, 10
    s_add_u32 s70, s67, s64
    s_add_u32 s71, s70, 1024
    s_cmp_eq_u32 s63, 21
    s_cselect_b32 s71, 0x40000000, s71
    s_add_u32 s67, s65, 84
    s_lshl_b32 s67, s67, 10
    s_mul_i32 s68, s66, {NS2*1024}
    s_add_u32 s67, s67, s68
    s_add_u32 s72, s67, s64
    """)
    consumer_loop(a, True, prefetch_setup(a, True))
    a(f"""
    s_lshl_b32 s65, s3, 8
    v_lshlrev_b32 v2, 2, v31
    v_add_u32 v2, s65, v2
    v_add_u32 v2, {LDS_STA}, v2
    v_lshlrev_b32 v3, 4, v30
    v_add_u32 v3, {LDS_CS}, v3
    """)
    for i in range(4):
        a(f"ds_read_b32 v{4+i}, v2 offset:{64*i}")
        a(f"ds_read_b32 v{8+i}, v2 offset:{1024+64*i}")
    a(f"v_mov_b32 v15, {LDS_SYNC}\nds_read_b32 v14, v15")
    a("s_cmp_eq_u32 s66, 1\ns_waitcnt lgkmcnt(0)\nv_readfirstlane_b32 s95, v14")
    for i in range(4): a(f"v_mul_f32 v{4+i}, v{4+i}, v{4+i}")
    a("s_cbranch_scc1 K1_GLU_ODD")
    for odd in range(2):
        if odd: a.label("K1_GLU_ODD")
        groups = [(4,), (0, 1), (2, 3)] if not odd else [(0,), (1, 2), (3, 4)]
        k = 0
        for gi, grp in enumerate(groups):
            for x, j in enumerate(grp):
                a(f"ds_read_b128 {vr(14+8*x,4)}, v3 offset:{64*j}")
                a(f"ds_read_b128 {vr(18+8*x,4)}, v3 offset:{320+64*j}")
            a("s_waitcnt lgkmcnt(0)")
            for i in range(4):
                mi = 8 + (i & ~1); msel = i & 1
                ai = 4 + (i & ~1)
                sel = f"op_sel:[0,{msel},0] op_sel_hi:[1,{msel},1] neg_lo:[0,1,0] neg_hi:[0,1,0]"
                sel2 = f"op_sel:[0,{msel}] op_sel_hi:[1,{msel}]"
                for x, j in enumerate(grp):
                    G = acc(i, j); U = acc(i, 5+j)
                    for h in range(2):
                        a(f"v_pk_fma_f32 {vr(G+2*h,2)}, {vr(14+8*x+2*h,2)}, {vr(mi,2)}, {vr(G+2*h,2)} {sel}")
                        a(f"v_pk_fma_f32 {vr(U+2*h,2)}, {vr(18+8*x+2*h,2)}, {vr(mi,2)}, {vr(U+2*h,2)} {sel}")
                    for h in range(2):
                        a(f"v_pk_mul_f32 {vr(G+2*h,2)}, {vr(G+2*h,2)}, {vr(U+2*h,2)}")
                    for h in range(2):
                        a(f"v_pk_mul_f32 {vr(G+2*h,2)}, {vr(G+2*h,2)}, {vr(ai,2)} {sel2}")
                if gi == 0:
                    T = acc(i & ~1, 5+grp[0]); G = acc(i, grp[0]); o = 2*(i & 1)
                    a(f"v_cvt_pk_bf16_f32 v{T+o}, v{G}, v{G+1}")
                    a(f"v_cvt_pk_bf16_f32 v{T+o+1}, v{G+2}, v{G+3}")
                    if i & 1:
                        a(f"s_add_u32 s75, s72, {(i-1)*NS2*1024}")
                        a(f"buffer_store_dwordx4 {vr(T,4)}, v12, s[16:19], s75 offen{ST}")
                    continue
                T = acc(i, 5+grp[0])
                for x, j in enumerate(grp):
                    G = acc(i, j)
                    a(f"v_cvt_pk_bf16_f32 v{T+2*x}, v{G}, v{G+1}")
                    a(f"v_cvt_pk_bf16_f32 v{T+2*x+1}, v{G+2}, v{G+3}")
                a(f"s_add_u32 s75, s{69+gi}, {i*NS2*1024}")
                a(f"buffer_store_dwordx4 {vr(T,4)}, v12, s[16:19], s75 offen{ST}")
        if odd == 0: a("s_branch K1_CFLAG")
    a.label("K1_CFLAG")
    consumer_flag(a)
    a.label("K1_SSM")
    a.lg = []
    a(f"""
    v_add_u32 v8, {WBASE}, v10
    v_xor_b32 v9, 64, v8
    s_lshl_b32 s65, s63, 12
    s_add_u32 s64, s64, s65
    """)
    consumer_loop(a, False, prefetch_setup(a, False))
    LAM = 14
    a(f"""
    v_lshlrev_b32 v13, 4, v31
    v_add_u32 v13, {LDS_LAM}, v13
    s_lshl_b32 s65, s3, 8
    v_lshlrev_b32 v2, 4, v30
    v_add_u32 v2, s65, v2
    v_add_u32 v2, {LDS_STA}, v2
    v_lshlrev_b32 v3, 2, v31
    v_add_u32 v3, {LDS_CS}, v3
    """)
    for i in range(4):
        a(f"ds_read_b128 {vr(160+4*i,4)}, v2 offset:{64*i}")
        a(f"ds_read_b128 {vr(176+4*i,4)}, v2 offset:{1024+64*i}")
    for jj in range(8):
        a(f"ds_read_b32 v{4+jj}, v3 offset:{64*jj}")
    a(f"v_mov_b32 v15, {LDS_SYNC}\nds_read_b32 v14, v15")
    a("s_waitcnt lgkmcnt(0)\nv_readfirstlane_b32 s95, v14")
    for j in range(4):
        a(f"ds_read_b128 {vr(LAM+4*j,4)}, v13 offset:{256*j}")
    for j in range(4):
        for jj in (j, 4+j):
            cs = 4 + (jj & ~1); sl = jj & 1
            for i in range(4):
                A = acc(i, jj)
                for h in range(2):
                    a(f"v_pk_fma_f32 {vr(A+2*h,2)}, {vr(176+4*i+2*h,2)}, {vr(cs,2)}, {vr(A+2*h,2)} op_sel:[0,{sl},0] op_sel_hi:[1,{sl},1] neg_lo:[0,1,0] neg_hi:[0,1,0]")
            for i in range(4):
                A = acc(i, jj)
                for h in range(2):
                    a(f"v_pk_mul_f32 {vr(A+2*h,2)}, {vr(A+2*h,2)}, {vr(160+4*i+2*h,2)}")
    a(f"""
    s_lshl_b32 s65, s3, 2
    v_add_u32 v10, s65, v30
    v_lshlrev_b32 v10, 9, v10
    v_lshl_add_u32 v10, v31, 3, v10
    v_add_u32 v10, {LDS_E16}, v10
    s_waitcnt lgkmcnt(0)
    """)
    def BR(j, sg): return acc(sg >> 1, j) + 2*(sg & 1)
    def BI(j, sg): return acc(sg >> 1, 4+j) + 2*(sg & 1)
    E = 160
    def ER(q, j): return E + 16*q + 4*j
    def EI(q, j): return E + 16*q + 4*j + 2
    def step(dR, dI, pR, pI, bR, bI, lam):
        return [
          f"v_pk_fma_f32 {vr(dR,2)}, {vr(lam,2)}, {vr(pR,2)}, {vr(bR,2)} op_sel_hi:[0,1,1]",
          f"v_pk_fma_f32 {vr(dI,2)}, {vr(lam,2)}, {vr(pI,2)}, {vr(bI,2)} op_sel_hi:[0,1,1]",
          f"v_pk_fma_f32 {vr(dR,2)}, {vr(lam,2)}, {vr(pI,2)}, {vr(dR,2)} op_sel:[1,0,0] op_sel_hi:[1,1,1] neg_lo:[1,0,0] neg_hi:[1,0,0]",
          f"v_pk_fma_f32 {vr(dI,2)}, {vr(lam,2)}, {vr(pR,2)}, {vr(dI,2)} op_sel:[1,0,0] op_sel_hi:[1,1,1]"]
    for sg in range(1, 8):
        q = sg & 1
        cols = []
        for j in range(4):
            pR, pI = (BR(j, 0), BI(j, 0)) if sg == 1 else (ER(q ^ 1, j), EI(q ^ 1, j))
            cols.append(step(ER(q, j), EI(q, j), pR, pI, BR(j, sg), BI(j, sg), LAM+4*j))
        for k in range(4):
            for j in range(4): a(cols[j][k])
    for j in range(4):
        c = ER(0, j); r = ER(1, j); im = EI(1, j); l8 = LAM+4*j+2
        a(f"""
        v_fma_f32 v{c}, v{l8}, v{r}, v{r+1}
        v_fma_f32 v{c+1}, v{l8}, v{im}, v{im+1}
        v_fma_f32 v{c}, -v{l8+1}, v{im}, v{c}
        v_fma_f32 v{c+1}, v{l8+1}, v{r}, v{c+1}
        ds_write_b64 v10, {vr(c,2)} offset:{128*j}
        """)
    a(f"""
    s_mul_i32 s65, s3, 18432
    v_mul_u32_u24 v2, 144, v31
    v_lshl_add_u32 v2, v30, 5, v2
    v_add_u32 v2, s65, v2
    v_bfe_u32 v3, v1, 2, 2
    v_lshl_add_u32 v3, v30, 3, v3
    v_mul_u32_u24 v3, 144, v3
    v_and_b32 v4, 3, v1
    v_lshl_add_u32 v3, v4, 3, v3
    v_add_u32 v3, s65, v3
    v_mov_b32 v13, {LDS_SYNC}
    v_mov_b32 v4, 1
    s_mov_b64 exec, 1
    ds_add_u32 v13, v4 offset:20
    s_mov_b64 exec, -1
    """)
    a.stamp(13)
    a(f"v_lshlrev_b32 v13, 3, v31\nv_add_u32 v13, {LDS_UV}, v13")
    for j in range(4):
        a(f"ds_read_b64 {vr([4,6,8,170][j],2)}, v13 offset:{128*j}")
    a("s_waitcnt lgkmcnt(0)")
    for j in range(4):
        U = [4,6,8,170][j]
        allp = [(acc(i, j)+2*h, acc(i, 4+j)+2*h) for i in range(4) for h in range(2)] + [(ER(1, j), EI(1, j))]
        for prs in (allp[:5], allp[5:]):
            for k, (R, I) in enumerate(prs):
                a(f"v_pk_mul_f32 {vr(160+2*k,2)}, {vr(R,2)}, {vr(U,2)} op_sel:[0,1] op_sel_hi:[1,1]")
            for k, (R, I) in enumerate(prs):
                a(f"v_pk_mul_f32 {vr(R,2)}, {vr(R,2)}, {vr(U,2)} op_sel:[0,0] op_sel_hi:[1,0]")
            for k, (R, I) in enumerate(prs):
                a(f"v_pk_fma_f32 {vr(R,2)}, {vr(I,2)}, {vr(U,2)}, {vr(R,2)} op_sel:[0,1,0] op_sel_hi:[1,1,1] neg_lo:[0,1,0] neg_hi:[0,1,0]")
            for k, (R, I) in enumerate(prs):
                a(f"v_pk_fma_f32 {vr(I,2)}, {vr(I,2)}, {vr(U,2)}, {vr(160+2*k,2)} op_sel:[0,0,0] op_sel_hi:[1,0,1]")
    a.stamp(15)
    lds_spin(a, "K1_SS", 13, 24, "s_cmp_lg_u32 s66, 0", init=True)
    a.stamp(14)
    for j in range(4):
        h = ER(0, j)
        a(f"ds_read_b32 v{h}, v10 offset:{LDS_S-LDS_E16+128*j}")
        a(f"ds_read_b32 v{h+2}, v10 offset:{LDS_S-LDS_E16+128*j+4}")
    a("s_waitcnt lgkmcnt(0)")
    for j in range(4):
        h = ER(0, j); l8 = LAM+4*j+2
        a(f"""
        v_fma_f32 v{h+1}, v{l8}, v{h}, v{ER(1,j)}
        v_fma_f32 v{h+3}, v{l8}, v{h+2}, v{EI(1,j)}
        v_fma_f32 v{h+1}, -v{l8+1}, v{h+2}, v{h+1}
        v_fma_f32 v{h+3}, v{l8+1}, v{h}, v{h+3}
        """)
    for sg in range(8):
        cols = []
        for j in range(4):
            pR, pI = (ER(0, j), EI(0, j)) if sg == 0 else (BR(j, sg-1), BI(j, sg-1))
            cols.append(step(BR(j, sg), BI(j, sg), pR, pI, BR(j, sg), BI(j, sg), LAM+4*j))
        for k in range(4):
            for j in range(4): a(cols[j][k])
    for jj in range(8):
        im, j = divmod(jj, 4)
        t = 160 + 8*(jj % 4)
        for i in range(4):
            A = acc(i, jj)
            ng = "-" if im else ""
            a(f"v_cvt_pk_bf16_f32 v{t+i}, {ng}v{A}, {ng}v{A+2}")
            a(f"v_cvt_pk_bf16_f32 v{t+4+i}, {ng}v{A+1}, {ng}v{A+3}")
        o = (32*(2*im + (j >> 1)) + 16*(j & 1))*144
        a(f"ds_write_b128 v2, {vr(t,4)} offset:{o}")
        a(f"ds_write_b128 v2, {vr(t+4,4)} offset:{o+16}")
    a("s_waitcnt lgkmcnt(0)")
    for i in range(4):
        for j in range(4):
            d = ACC + 4*(i*4+j)
            for h in range(2):
                a(f"ds_read_b64_tr_b16 {vr(d+2*h,2)}, v3 offset:{(32*j+4*h)*144 + 32*i}")
    k = 0
    for i in range(4):
        for j in range(4):
            d = ACC + 4*(i*4+j)
            k += 1
            a(f"s_waitcnt lgkmcnt({min(15, 32-2*k)})")
            a(f"s_add_u32 s65, s64, {(i*NS2 + j)*1024}")
            a(f"buffer_store_dwordx4 {vr(d,4)}, v12, s[16:19], s65 offen{ST}")
    a("s_branch K1_CFLAG")
    a.label("K1_HELPER")
    a(f"""
    s_and_b32 s43, s3, 1
    s_lshl_b32 s64, s62, 8
    s_lshl_b32 s65, s43, 7
    s_add_u32 s64, s64, s65
    v_lshrrev_b32 v20, 3, v1
    v_and_b32 v21, 7, v1
    """)
    a(f"""
    s_cmp_lt_u32 s63, 10
    s_cbranch_scc1 K1_HSSM
    s_mul_i32 s66, s43, 10240
    s_add_u32 s66, s66, {WBASE}
    v_add_u32 v18, s66, v11
    v_add_u32 v53, s64, v1
    v_lshlrev_b32 v53, 3, v53
    """)
    helper_loop(a, True, {})
    a("s_mov_b32 s47, 0\ns_branch K1_P2")
    a.label("K1_HSSM")
    LR = 85
    def preload():
        srd(a, 20, 44, P*2); srd(a, 24, 46, P*2); srd(a, 28, 52, P*2)
        a(f"""
        s_lshl_b32 s65, s63, 7
        v_lshlrev_b32 v22, 1, v1
        v_add_u32 v22, s65, v22
        s_lshl_b32 s90, s63, 13
        s_lshl_b32 s91, s62, 10
        s_add_u32 s91, s91, s90
        buffer_load_ushort v{LR}, v22, s[20:23], 0 offen
        buffer_load_ushort v{LR+1}, v22, s[24:27], 0 offen
        buffer_load_ushort v{LR+2}, v22, s[28:31], 0 offen
        """)
    LM = 8; L16 = 188; L256 = 190
    def csq(d, s, t=22):
        a(f"""
        v_mul_f32 v{t}, v{s+1}, v{s+1}
        v_mul_f32 v{t+1}, v{s}, v{s+1}
        v_fma_f32 v{d}, v{s}, v{s}, -v{t}
        v_add_f32 v{d+1}, v{t+1}, v{t+1}
        """)
    def pre():
        lam_calc(a, LR, LR+1, LR+2, 148, LM, LM+1, coef=(6, 7))
        a(f"""
        v_add_f32 v6, v6, v6
        v_add_f32 v7, v7, v7
        v_lshlrev_b32 v22, 3, v1
        v_add_u32 v22, {LDS_UV}, v22
        ds_write_b64 v22, v[6:7]
        """)
    def pre2():
        csq(LM+2, LM); csq(LM+2, LM+2); csq(LM+2, LM+2)
        csq(L16, LM+2)
        csq(L256, L16); csq(L256, L256); csq(L256, L256); csq(L256, L256)
        a(f"""
        v_lshlrev_b32 v22, 4, v1
        v_add_u32 v23, {LDS_LAM}, v22
        ds_write_b128 v23, {vr(LM,4)}
        s_waitcnt lgkmcnt(0)
        """)
    a(f"""
    s_mul_i32 s67, s43, 10240
    s_add_u32 s67, s67, {WBASE}
    v_add_u32 v18, s67, v10
    v_xor_b32 v16, 64, v18
    v_bfe_u32 v53, v1, 2, 2
    v_lshlrev_b32 v53, 4, v53
    v_and_b32 v22, 1, v1
    v_lshl_add_u32 v53, v22, 3, v53
    v_bfe_u32 v22, v1, 1, 1
    v_add_u32 v53, v53, v22
    v_lshl_add_u32 v53, v30, 1, v53
    v_add_u32 v53, s64, v53
    v_lshlrev_b32 v53, 3, v53
    """)
    helper_loop(a, False, {"preload": preload, ("side", 1): pre, ("side", 4): pre2})
    a("s_mov_b32 s47, 0\ns_cmp_lg_u32 s43, 0\ns_cbranch_scc1 K1_P2")
    a(f"""
    v_lshlrev_b32 v22, 4, v1
    v_lshlrev_b32 v23, 3, v1
    v_add_u32 v23, {LDS_E16}, v23
    v_add_u32 v24, 4096, v22
    """)
    if os.environ.get("CPRI", "1") == "1": a("s_setprio 3")
    lds_spin(a, "K1_SE", 25, 20, "s_cmp_ge_u32 s66, 4", init=True)
    EV = 32
    def ev(R): return EV + 2*R
    for R in range(16):
        a(f"ds_read_b64 {vr(ev(R),2)}, v23 offset:{512*R}")
    def cfma(d, lam, s, add):
        a(f"""
        v_fma_f32 v{d}, v{lam}, v{s}, v{add}
        v_fma_f32 v{d+1}, v{lam}, v{s+1}, v{add+1}
        v_fma_f32 v{d}, -v{lam+1}, v{s+1}, v{d}
        v_fma_f32 v{d+1}, v{lam+1}, v{s}, v{d+1}
        """)
    A0, A1 = 96, 100
    a(f"v_mov_b32 v{A0+2}, s95\nv_mov_b32 v{A0+3}, 0")
    a("s_waitcnt lgkmcnt(0)")
    cur = ev(0)
    for R in range(1, 16):
        d = A0 if (R & 1) else A1
        cfma(d, L16, cur, ev(R)); cur = d
    assert cur == A0
    a(f"""
    buffer_store_dwordx4 {vr(A0,4)}, v22, s[76:79], s91 offen sc1
    s_mov_b32 s67, 0
    s_cmp_eq_u32 s62, 0
    s_cbranch_scc1 K1_POLLOK
    """)
    PV = 64
    a.label("K1_POLL")
    for rb in range(7):
        a(f"buffer_load_dwordx4 {vr(PV+4*rb,4)}, v{22 if rb < 4 else 24}, s[76:79], s90 offen offset:{1024*(rb%4)} sc1")
    a("s_waitcnt vmcnt(0)\ns_mov_b64 s[68:69], -1")
    lab = a.newlabel("K1_CHK")
    for rb in range(7):
        a(f"""
        s_cmp_le_u32 s62, {rb}
        s_cbranch_scc1 {lab}
        v_cmp_eq_u32 vcc, s95, v{PV+4*rb+2}
        s_and_b64 s[68:69], s[68:69], vcc
        """)
    a.label(lab)
    a(f"""
    s_cmp_eq_u64 s[68:69], -1
    s_cbranch_scc1 K1_POLLOK
    s_add_u32 s67, s67, 1
    s_cmp_lt_u32 s67, 100000
    s_sleep 1
    s_cbranch_scc1 K1_POLL
    """)
    a.label("K1_POLLOK")
    a("v_mov_b32 v104, 0\nv_mov_b32 v105, 0")
    lab = a.newlabel("K1_CAR")
    for rb in range(7):
        a(f"s_cmp_le_u32 s62, {rb}\ns_cbranch_scc1 {lab}")
        cfma(106, L256, 104, PV+4*rb)
        a("v_mov_b32 v104, v106\nv_mov_b32 v105, v107")
    a.label(lab)
    cur = 104
    for R in range(16):
        t = 108 + 2*(R & 1)
        a(f"""
        v_mul_f32 v{t}, v6, v{cur}
        v_mul_f32 v{t+1}, v6, v{cur+1}
        v_fma_f32 v{t}, -v7, v{cur+1}, v{t}
        v_fma_f32 v{t+1}, v7, v{cur}, v{t+1}
        """)
        if R < 15:
            d = A0 if (R & 1) else A1
            cfma(d, L16, cur, ev(R)); cur = d
        a(f"ds_write_b64 v23, {vr(t,2)} offset:{LDS_S-LDS_E16+512*R}")
    a("v_mov_b32 v4, 1\nds_write_b32 v25, v4 offset:24\ns_mov_b32 s47, 0\ns_setprio 0")
    phase2(a)
    a.label("K1_END")
    a("s_endpgm")
    return a.text(), kd("gemm1_kernel", 192+60, 102, 192), f"; @launch kernel=gemm1_kernel grid=(256,1,1) block=(512,1,1) lds={LDS_TOTAL}"
```

```python
from gen_common import *
import os
EXP = os.environ.get('EXP', '')
LTD = os.environ.get('LTD', '0') == '1'
PF = os.environ.get('PF', '0' if LTD else '1') == '1'

ACC = 32
TBA = tuple(int(x) for x in os.environ.get("TBA", "1,0").split(",")) if os.environ.get("TBA", "1,0") else None
XBASE = 0
WBASE = 98304
SPARE = 159744
LDS_TOTAL = 163840
LDS_E16 = 73728
LDS_S = LDS_E16
LDS_LAM = SPARE
LDS_STA = SPARE + 1024
LDS_STM = SPARE + 2048
LDS_CS = SPARE + 3072
LDS_UV = SPARE + 3584
LDS_SYNC = 158720
WS_FLG = 0x1760000
FLG_BYTES = 16384
M2 = int(os.environ.get("M2", "0"))
PSL = int(os.environ.get("PSL", "8")); PSH = int(os.environ.get("PSH", "4")); WS6 = int(os.environ.get("WS6", "0"))
NH = int(os.environ.get("NH", "3")); NW = int(os.environ.get("NW", "5")); NL = int(os.environ.get("NL", "3"))
RPS = int(os.environ.get("RPS", "6"))
H0 = int(os.environ.get("H0", "3"))
DEF = [int(x) for x in os.environ.get("DEF", "1,4,7").split(",") if x]
TAG = 0x5ca1ab1e
DBG_RB = 0
DBG_CT = 8
ST = " sc1"
WRN = 6

def acc(i, jj): return ACC + 4*(jj*4 + i)
def XF(par, i): return 16*par + 4*i
def WR(phi): return 32 + 4*(phi % WRN)

def consumer_loop(a, glu, hooks={}):
    NJ = 5 if glu else 4
    NJ2 = 2*NJ
    SLOT = 20480
    P3 = 6*NJ2
    def wread(phi, last=False):
        n, jj = divmod(phi, NJ2)
        if last and n >= 2: return
        s, ks = (n >> 1) % 3, n & 1
        mat, j = divmod(jj, NJ)
        off = s*SLOT
        if glu:
            for h in range(2):
                o = off + mat*10240 + (8*h + 32*ks)*160 + 32*j
                a.lds(f"ds_read_b64_tr_b16 {ar(WR(phi) + 2*h, 2)}, v8 offset:{o}", ("W", phi % P3))
        else:
            a.lds(f"ds_read_b128 {ar(WR(phi), 4)}, v{8+ks} offset:{off + mat*10240 + j*2048 + (1024 if j >= 2 else 0)}", ("W", phi % P3))
    def xread(n, i, last=False):
        if last and n >= 2: return
        s, ks = (n >> 1) % 3, n & 1
        a.lds(f"ds_read_b128 {ar(XF(n & 1, i), 4)}, v{2 + s*2 + ks} offset:{i*2048}", ("X", n % 6))
    BJ = NJ2 - 3
    def kstep(n, last=False):
        ks = n & 1
        for jj in range(NJ2):
            phi = n*NJ2 + jj
            if ks == 1 and jj == BJ and not last:
                a.lgwait_all()
                a("s_mul_i32 s86, s87, 3") if os.environ.get("CST") else None
                a.dstamp(17 + (n >> 1), "s86") if os.environ.get("CST") else None
                a("s_barrier")
                if "touch" in hooks and not TBA:
                    lt = a.newlabel("K1_CT")
                    a(f"s_cmp_ge_u32 s87, {(9 - PFD - (n >> 1) - 1)//3 + 1}\ns_cbranch_scc1 {lt}")
                    hooks["touch"]()
                    a.label(lt)
            if TBA and "touch" in hooks and not last and (n, jj) == TBA:
                lt = a.newlabel("K1_CT")
                a(f"s_cmp_ge_u32 s87, 2\ns_cbranch_scc1 {lt}")
                for _ in range(3): hooks["touch"]()
                a.label(lt)
            a.lgwait([("W", phi % P3), ("X", n % 6)])
            todo = []
            if ks == 0:
                todo.append(("w", phi + 4))
                if 2 <= jj < 6: todo.append(("x", n + 1, jj - 2))
            else:
                if jj + 4 < NJ2: todo.append(("w", phi + 4))
                elif jj == BJ: todo += [("w", phi + 3), ("x", n+1, 0), ("w", phi + 4), ("x", n+1, 1)]
                elif jj == BJ + 1: todo += [("w", phi + 4), ("x", n+1, 2), ("x", n+1, 3)]
                elif jj == BJ + 2: todo.append(("w", phi + 4))
            for i in range(4):
                c = vr(acc(i, jj), 4)
                xa = ar(XF(n & 1, i), 4); wa = ar(WR(phi), 4)
                if glu: a(f"v_mfma_f32_16x16x32_bf16 {c}, {wa}, {xa}, {c}")
                else:   a(f"v_mfma_f32_16x16x32_bf16 {c}, {xa}, {wa}, {c}")
                if todo:
                    t = todo.pop(0)
                    if t[0] == "w": wread(t[1], last)
                    else: xread(t[1], t[2], last)
            assert not todo
    a.stamp(1)
    for r in range(ACC, ACC + 16*NJ2): a(f"v_mov_b32 v{r}, 0")
    a("s_mov_b32 s87, 0")
    a("s_barrier")
    a.stamp(2); a.lines.append("  ;@CSTAMP 3")
    if "touch" in hooks and not TBA: hooks["touch"]()
    wread(0); xread(0, 0); wread(1); xread(0, 1); wread(2); xread(0, 2); xread(0, 3); wread(3)
    entry = list(a.lg)
    lab = a.newlabel("K1_CL")
    a.label(lab)
    for n in range(6): kstep(n)
    assert a.lg == entry, (a.lg, entry)
    a(f"s_add_u32 s87, s87, 1\ns_cmp_lt_u32 s87, 3\ns_cbranch_scc1 {lab}")
    a.stamp(11); a.lines.append("  ;@CSTAMP 4")
    kstep(0, True); kstep(1, True)
    a("s_waitcnt vmcnt(0)")
    a.stamp(12)
    if os.environ.get("CPRI", "1") == "1": a("s_setprio 3")
    a("s_barrier")

NLW = int(os.environ.get("NLW", "3"))
GIS = int(os.environ.get("GIS", "7")); GCS = int(os.environ.get("GCS", "8"))
HPS = int(os.environ.get("HPS", "6"))
EH = os.environ.get("EH", "0") == "1"
EC = os.environ.get("EC", "0") == "1"
LT2 = int(os.environ.get("LT2", "0"))
SST = int(os.environ.get("SST", "-1"))
LT = int(os.environ.get("LT", "3"))
def loader_code(a):
    if os.environ.get("LPRI", "0") == "1": a("s_setprio 3")
    a(f"""
    s_and_b32 s43, s3, 1
    v_and_b32 v31, 15, v1
    s_lshr_b32 s65, s61, 3
    s_lshl_b32 s65, s65, 4
    s_mov_b32 s15, 0x20000
    s_cmp_lt_u32 s63, 10
    s_cselect_b64 vcc, -1, 0
    s_cbranch_scc1 K1_LT_SSM
    s_sub_u32 s63, s63, 10
    s_cmp_eq_u32 s43, 0
    s_cselect_b32 s12, s56, s58
    s_cselect_b32 s13, s57, s59
    s_mov_b32 s14, {D*F*2}
    s_mul_i32 s40, s63, 160
    s_mov_b32 s33, {64*3456}
    s_mul_i32 s65, s65, 3456
    v_mul_u32_u24 v22, 3456, v31
    v_bfe_u32 v23, v1, 4, 1
    v_mul_u32_u24 v23, 156, v23
    v_add_u32 v22, v22, v23
    s_mov_b32 exec_lo, -1
    s_branch K1_LT_GO
    """)
    a.label("K1_LT_SSM")
    a(f"""
    s_cmp_eq_u32 s43, 0
    s_cselect_b32 s12, s48, s50
    s_cselect_b32 s13, s49, s51
    s_mov_b32 s14, {P*D*2}
    s_mul_i32 s40, s63, {64*1280}
    s_mov_b32 s33, 128
    s_mul_i32 s65, s65, 1280
    v_mul_u32_u24 v22, 1280, v31
    s_mov_b32 exec_lo, 0xffff
    """)
    a.label("K1_LT_GO")
    a(f"""
    s_mov_b32 exec_hi, 0
    s_add_u32 s65, s65, s40
    s_lshl_b32 s66, s62, 8
    s_and_b32 s67, s61, 7
    s_lshl_b32 s67, s67, 5
    s_add_u32 s66, s66, s67
    s_lshl_b32 s67, s43, 4
    s_add_u32 s66, s66, s67
    s_mul_i32 s66, s66, 1280
    v_mul_u32_u24 v23, 1280, v31
    """)
    a.stamp(12)
    for t in range(LT):
        a(f"buffer_load_dword v{26+t}, v22, s[12:15], s65 offen\nbuffer_load_dword v{40+t}, v23, s[8:11], s66 offen offset:{128*t}\ns_add_u32 s65, s65, s33")
    a(f"""
    s_mov_b64 exec, -1
    v_mov_b32 v17, v22
    v_mul_u32_u24 v18, 1280, v31
    s_mov_b32 s88, s65
    s_add_u32 s89, s66, {128*LT}
    s_lshl_b32 s64, s62, 8
    s_lshl_b32 s65, s43, 7
    s_add_u32 s64, s64, s65
    s_mul_i32 s20, s64, 1280
    s_lshl_b32 s41, s43, 14
    v_lshrrev_b32 v20, 3, v1
    v_and_b32 v21, 7, v1
    s_movk_i32 s66, {16*1280}
    s_movk_i32 s67, {8*1280}
    s_cmp_lg_u64 vcc, 0
    s_cselect_b32 s66, {2*1280}, s66
    v_lshrrev_b32 v23, 4, v1
    v_xor_b32 v23, v23, v21
    v_bfe_u32 v24, v1, 5, 1
    v_lshlrev_b32 v24, 4, v24
    v_bfe_u32 v25, v1, 3, 1
    v_lshl_add_u32 v24, v25, 3, v24
    v_bfe_u32 v25, v1, 4, 1
    v_add_u32 v24, v24, v25
    v_cndmask_b32 v24, v20, v24, vcc
    v_mul_u32_u24 v24, 1280, v24
    v_lshl_add_u32 v4, v23, 4, v24
    s_cselect_b32 s67, {32*1280}, s67
    v_xor_b32 v5, 64, v4
    v_add_u32 v5, s67, v5
    s_add_u32 s21, s20, s66
    s_add_u32 s22, s21, s66
    s_add_u32 s23, s22, s66
    s_add_u32 s24, s20, {64*1280}
    s_add_u32 s25, s21, {64*1280}
    s_add_u32 s26, s22, {64*1280}
    s_add_u32 s27, s23, {64*1280}
    s_mov_b32 s36, 0
    s_mov_b32 s37, s41
    s_mul_i32 s42, s43, 10240
    s_add_u32 s42, s42, {WBASE}
    s_mov_b32 s30, s42
    s_add_u32 s31, s30, 5120
    s_cbranch_vccnz K1_LW_SSM
    s_mov_b32 s39, {32*3456}
    s_mov_b32 s34, 0
    """)
    for n in range(5):
        a(f"""
        v_add_u32 v22, {64*n}, v1
        v_mul_u32_u24 v23, 6554, v22
        v_lshrrev_b32 v23, 16, v23
        v_mul_u32_u24 v24, 10, v23
        v_sub_u32 v24, v22, v24
        v_and_b32 v25, 0x33, v23
        v_bfe_u32 v6, v23, 2, 1
        v_lshl_or_b32 v25, v6, 3, v25
        v_bfe_u32 v6, v23, 3, 1
        v_lshl_or_b32 v25, v6, 2, v25
        v_mul_u32_u24 v25, 3456, v25
        v_lshl_add_u32 v{12+n}, v24, 4, v25
        """)
    a("s_branch K1_LW_GO")
    a.label("K1_LW_SSM")
    a(f"""
    s_mov_b32 s39, {32*1280}
    s_mov_b32 s34, 0x40000000
    v_mul_u32_u24 v24, 1280, v20
    v_lshl_add_u32 v12, v23, 4, v24
    v_xor_b32 v13, 64, v12
    v_add_u32 v13, {8*1280}, v13
    v_add_u32 v14, {16*1280}, v12
    v_add_u32 v15, {16*1280}, v13
    v_mov_b32 v16, v12
    """)
    a.label("K1_LW_GO")
    def xdma(lo, hi):
        for k in range(lo, hi):
            c, q = divmod(k, 8)
            a(f"s_add_u32 m0, s37, {c*8192 + q*1024}\ns_add_u32 s68, s{20 + 4*c + (q >> 1)}, s36\nbuffer_load_dwordx4 v{4+(q & 1)}, s[8:11], s68 offen lds")
    def wdma(c, cnt=5, lo=0):
        if cnt > lo: a(f"s_add_u32 s69, s40, s39" if c else "s_mov_b32 s69, s40")
        for n in range(lo, cnt):
            if n == 4: a("s_add_u32 s69, s69, s34")
            a(f"s_add_u32 m0, s{30+c}, {n*1024}\ns_nop 0\nbuffer_load_dwordx4 v{12+n}, s[12:15], s69 offen lds")
    def adv():
        a(f"""
        s_add_u32 s40, s40, s33
        s_add_u32 s36, s36, 128
        s_add_u32 s37, s37, 32768
        s_add_u32 s30, s30, 20480
        s_cmp_ge_u32 s37, 98304
        s_cselect_b32 s37, s41, s37
        s_cselect_b32 s30, s42, s30
        s_add_u32 s31, s30, 5120
        """)
    NV = 26
    def ltouch():
        if LTD: a("buffer_load_dword v19, v17, s[12:15], s88 offen\nbuffer_load_dword v19, v18, s[8:11], s89 offen\ns_add_u32 s88, s88, s33\ns_add_u32 s89, s89, 128")
    NT = 4 if LTD else 0
    a(f"s_load_dwordx4 s[80:83], s[0:1], {KA['cre']}\ns_load_dwordx2 s[84:85], s[0:1], {KA['wd']}")
    a(f"s_waitcnt vmcnt({2*LT-2})")
    a.stamp(1)
    xdma(0, 16); wdma(0); wdma(1); adv()
    for _ in range(LT2):
        a("buffer_load_dword v19, v17, s[12:15], s88 offen\nbuffer_load_dword v19, v18, s[8:11], s89 offen\ns_add_u32 s88, s88, s33\ns_add_u32 s89, s89, 128")
    a(f"s_waitcnt vmcnt({NV//2 + 2*LT2})")
    xdma(0, 13)
    a(f"s_waitcnt vmcnt({13 + 2*LT2})\ns_mov_b32 s87, 0")
    a.stamp(2)
    a("s_barrier")
    a.stamp(16)
    xdma(13, 16); wdma(0); wdma(1); adv(); ltouch()
    if H0 == 3: wdma(0, 5, NLW); wdma(1)
    a.label("K1_LL")
    xdma(0, 16); wdma(0, NLW); adv(); ltouch()
    NF = NV; NV = 16 + NLW
    a(f"s_cmp_lg_u32 s87, {RPS}\ns_cbranch_scc1 K1_LNR")
    if EH: a("s_cmp_ge_u32 s62, 4\ns_cbranch_scc1 K1_LNR")
    repack_issue(a)
    a(f"s_add_u32 s87, s87, 1\ns_waitcnt vmcnt({NV + NT + (21 if EH else 11)})\ns_branch K1_LW")
    a.label("K1_LNR")
    a(f"s_add_u32 s87, s87, 1")
    a.dstamp(16, "s87")
    a(f"s_waitcnt vmcnt({NV + NT})")
    a.label("K1_LW")
    a.dstamp(2, "s87")
    a("s_barrier")
    a("s_cmp_lt_u32 s87, 8\ns_cbranch_scc1 K1_LL")
    if RPS <= 6:
        a("s_waitcnt vmcnt(0)")
        if EH: a("s_cmp_ge_u32 s62, 4\ns_cbranch_scc1 K1_LNF")
        repack_finish(a)
        if EH:
            a("s_branch K1_LB9")
            a.label("K1_LNF")
            a("s_barrier\ns_mov_b32 s47, 1\ns_setprio 0\ns_branch K1_P2")
            a.label("K1_LB9")
    else:
        a("s_waitcnt vmcnt(11)")
    a.stamp(11)
    a("s_barrier")
    a.stamp(25)
    if RPS > 6:
        a("s_waitcnt vmcnt(0)")
        repack_finish(a)
        a("s_barrier")
    a("""
    s_mov_b64 exec, 1
    s_waitcnt vmcnt(0)
    buffer_store_dword v46, v2, s[20:23], s66 offen sc1
    """)
    if EH: a("buffer_store_dword v46, v2, s[20:23], s66 offen offset:256 sc1")
    a("s_mov_b64 exec, -1")
    a.stamp(13)
    if RPS <= 6 and os.environ.get("LB10", "0") == "1": a("s_mov_b32 s47, 0\ns_setprio 0\ns_barrier\ns_branch K1_P2")
    else: a(f"s_mov_b32 s47, {1 if RPS <= 6 else 0}\ns_setprio 0\ns_branch K1_P2")

def repack_issue(a):
    NG2 = 2 if EH else 1
    a(f"""
    s_waitcnt lgkmcnt(0)
    s_lshl_b32 s70, s35, 1
    s_add_u32 s70, s70, s43
    s_mul_i32 s65, s70, 40960
    s_mul_i32 s66, s62, {160*NG2}
    s_add_u32 s65, s65, s66
    """)
    srd(a, 72, 54, 256)
    a("v_mov_b32 v40, 0\nbuffer_load_dword v46, v40, s[72:75], 0 offen sc1")
    srd(a, 72, 84, F*D*2)
    for n in range(5):
        a(f"""
        v_add_u32 v40, {64*n}, v1
        v_mul_u32_u24 v41, 6554, v40
        v_lshrrev_b32 v41, 16, v41
        v_mul_u32_u24 v42, 10, v41
        v_sub_u32 v42, v40, v42
        v_mul_u32_u24 v41, 1280, v41
        v_lshl_add_u32 v40, v42, 4, v41
        """)
        for g in range(NG2): a(f"buffer_load_dwordx4 {vr(48+20*g+4*n,4)}, v40, s[72:75], s65 offen offset:{160*g}")
    a(f"""
    s_sub_u32 s71, 63, s70
    s_bitcmp1_b32 s71, 1
    s_cselect_b32 s76, s82, s80
    s_cselect_b32 s77, s83, s81
    s_mov_b32 s78, {D*P*2}
    s_mov_b32 s79, 0x20000
    s_lshr_b32 s65, s71, 2
    s_lshl_b32 s65, s65, 7
    s_and_b32 s66, s71, 1
    s_lshl_b32 s66, s66, 6
    s_add_u32 s65, s65, s66
    s_mul_i32 s66, s62, {80*1280*NG2}
    s_add_u32 s65, s65, s66
    s_cmp_lt_u32 s71, 40
    s_cselect_b32 s65, s65, 0x40000000
    v_mul_u32_u24 v40, 1280, v31
    v_lshrrev_b32 v41, 4, v1
    v_lshl_add_u32 v40, v41, 4, v40
    """)
    for dt in range(5*NG2):
        a(f"buffer_load_dwordx4 {vr(88+4*dt,4)}, v40, s[76:79], s65 offen\ns_add_u32 s65, s65, {16*1280}")

def repack_finish(a):
    NG2 = 2 if EH else 1
    srd(a, 16, 4, WP_BYTES, WS_WP)
    srd(a, 20, 4, FLG_BYTES, WS_FLG)
    a(f"""
    s_mul_i32 s65, s43, 10240
    s_add_u32 s65, s65, {WBASE + 20480}
    v_lshlrev_b32 v2, 4, v1
    v_add_u32 v3, s65, v2
    v_lshrrev_b32 v6, 4, v1
    v_bfe_u32 v4, v1, 2, 2
    v_lshl_add_u32 v4, v6, 2, v4
    v_mul_u32_u24 v4, 160, v4
    v_and_b32 v5, 3, v1
    v_lshl_add_u32 v4, v5, 3, v4
    v_add_u32 v4, s65, v4
    """)
    for n in range(5*NG2): a(f"ds_write_b128 v3, {vr(48+4*n,4)} offset:{1024*n}")
    a(f"""
    s_mul_i32 s68, s62, {5*NS2*1024*NG2}
    s_lshl_b32 s65, s71, 10
    s_add_u32 s65, s65, s68
    s_cmp_lt_u32 s71, 40
    s_cselect_b32 s65, s65, 0x40000000
    s_waitcnt lgkmcnt(0)
    """)
    for g in range(NG2):
        for dt in range(5):
            for h in range(2): a(f"ds_read_b64_tr_b16 {vr(48+20*g+4*dt+2*h,2)}, v4 offset:{5120*g + 2560*h + 32*dt}")
    for dt in range(5*NG2):
        a(f"buffer_store_dwordx4 {vr(88+4*dt,4)}, v2, s[16:19], s65 offen sc1\ns_add_u32 s65, s65, {NS2*1024}")
    a(f"""
    s_mul_i32 s65, s70, 52429
    s_lshr_b32 s65, s65, 18
    s_mul_i32 s66, s65, 5
    s_sub_u32 s66, s70, s66
    s_add_u32 s67, s70, 2
    s_mul_i32 s67, s67, 52429
    s_lshr_b32 s67, s67, 18
    s_sub_u32 s67, s70, s67
    s_add_u32 s67, s67, 40
    s_add_u32 s65, s65, 84
    s_cmp_eq_u32 s66, 2
    s_cselect_b32 s65, s65, s67
    s_lshl_b32 s65, s65, 10
    s_add_u32 s65, s65, s68
    s_cmp_lt_u32 s70, 54
    s_cselect_b32 s65, s65, 0x40000000
    s_waitcnt lgkmcnt(0)
    """)
    for dt in range(5*NG2):
        a(f"buffer_store_dwordx4 {vr(48+4*dt,4)}, v2, s[16:19], s65 offen sc1\ns_add_u32 s65, s65, {NS2*1024}")
    a(f"""
    s_lshl_b32 s66, s70, 2
    s_lshl_b32 s67, s62, {9 if EH else 8}
    s_add_u32 s66, s66, s67
    s_add_u32 s66, s66, 8192
    v_mov_b32 v2, 0
    """)

def helper_loop(a, glu, hooks={}):
    NJ = 5 if glu else 4
    SLOT = 20480
    NR = 8 if EC else 6
    G2 = 128 if EC else 72
    NG = 2 + NR*(2 if glu else 1)
    def colsum(s, dst):
        off = (s % 3)*SLOT
        for ks in range(2):
            for j in range(NJ):
                r = 88 + 20*ks + 4*j
                if glu:
                    for h in range(2): a(f"ds_read_b64_tr_b16 {vr(r+2*h,2)}, v18 offset:{off + (8*h + 32*ks)*160 + 32*j}")
                else:
                    a(f"ds_read_b128 {vr(r,4)}, v{18 if ks == 0 else 16} offset:{off + j*2048 + (1024 if j >= 2 else 0)}")
            if ks == 0 and glu: a("s_waitcnt lgkmcnt(2)")
        for ks in range(2):
            a(f"s_waitcnt lgkmcnt({(2*NJ if glu else NJ) if ks == 0 else 0})")
            for j in range(NJ):
                a(f"v_mfma_f32_16x16x32_bf16 {vr(dst+4*j,4)}, v[56:59], {vr(88+20*ks+4*j,4)}, {vr(dst+4*j,4)}")
    def pick(dst):
        a(f"s_nop 7\nv_mov_b32 v24, v{dst}")
        for g in range(1, 4):
            a(f"v_cmp_eq_u32 vcc, {g}, v30\ns_nop 1\nv_cndmask_b32 v24, v24, v{dst+4*g}, vcc")
        if glu: a(f"v_mov_b32 v25, v{dst+16}")
    def remote_colsum(s):
        l4 = a.newlabel("K1_LC")
        a(f"s_cmp_lg_u32 s62, {s & 3 if EC else s}\ns_cbranch_scc1 {l4}\ns_add_u32 s93, s92, {s*1280}")
        colsum(s, 128); pick(128)
        if EC and s < 4:
            for r in range(128, 148): a(f"v_mov_b32 v{r}, 0")
        a("v_mov_b32 v22, v24\nv_mov_b32 v23, s95\nbuffer_store_dwordx2 v[22:23], v17, s[28:31], s93 offen sc1")
        if glu: a("v_mov_b32 v28, v25\nv_mov_b32 v29, s95\ns_mov_b64 exec, 0xffff\nbuffer_store_dwordx2 v[28:29], v17, s[28:31], s93 offen offset:512 sc1\ns_mov_b64 exec, -1")
        a.label(l4)
    def red16(v):
        for r in (8, 4, 2, 1):
            a(f"s_nop 1\nv_add_f32_dpp v{v}, v{v}, v{v} row_ror:{r} row_mask:0xf bank_mask:0xf")
    inv640 = 0x3acccccd
    U = 148
    def stats_a():
        if SST < 0: a("s_waitcnt vmcnt(0)")
        for k in range(20):
            a(f"v_lshlrev_b32 v{U+2*k}, 16, v{60+k}\nv_and_b32 v{U+1+2*k}, 0xffff0000, v{60+k}")
        a(f"v_pk_add_f32 v[22:23], {vr(U,2)}, {vr(U+2,2)}\nv_pk_add_f32 v[28:29], {vr(U+4,2)}, {vr(U+6,2)}")
        for k in range(U+8, U+40, 4):
            a(f"v_pk_add_f32 v[22:23], v[22:23], v[{k}:{k+1}]\nv_pk_add_f32 v[28:29], v[28:29], v[{k+2}:{k+3}]")
        a("v_pk_add_f32 v[22:23], v[22:23], v[28:29]\ns_nop 0\nv_add_f32 v22, v22, v23")
        red16(22)
        a(f"v_mul_f32 v80, {inv640:#x}, v22")
        if SST < 0: a("buffer_load_dword v52, v55, s[20:23], 0 offen sc1")
    def stats_b():
        for k in range(U, U+40, 2):
            a(f"v_pk_add_f32 v[{k}:{k+1}], v[{k}:{k+1}], v[80:81] op_sel_hi:[1,0] neg_lo:[0,1] neg_hi:[0,1]")
        a(f"v_pk_mul_f32 v[22:23], {vr(U,2)}, {vr(U,2)}\nv_pk_mul_f32 v[28:29], {vr(U+2,2)}, {vr(U+2,2)}")
        for k in range(U+4, U+40, 4):
            a(f"v_pk_fma_f32 v[22:23], v[{k}:{k+1}], v[{k}:{k+1}], v[22:23]\nv_pk_fma_f32 v[28:29], v[{k+2}:{k+3}], v[{k+2}:{k+3}], v[28:29]")
        a("v_pk_add_f32 v[22:23], v[22:23], v[28:29]\ns_nop 0\nv_add_f32 v25, v22, v23")
        red16(25)
        a(f"v_mul_f32 v25, {inv640:#x}, v25")
        bf16r(a, 25, 25)
        a("v_add_f32 v25, 0x3727c5ac, v25")
        bf16r(a, 25, 25)
        a("""
        v_sqrt_f32 v25, v25
        s_nop 0
        v_cvt_pk_bf16_f32 v24, v25, v80
        v_mov_b32 v25, s95
        s_mov_b32 exec_lo, 0x10001
        s_mov_b32 exec_hi, 0x10001
        buffer_store_dwordx2 v[24:25], v26, s[24:27], 0 offen sc1
        s_mov_b64 exec, -1
        """)
    def gather_issue():
        a("buffer_load_dwordx2 v[26:27], v53, s[24:27], 0 offen sc1")
        a("buffer_load_dwordx2 v[28:29], v53, s[24:27], 0 offen offset:512 sc1")
        for r in range(NR):
            a(f"s_add_u32 s66, s92, {r*1280}")
            a(f"buffer_load_dwordx2 {vr(60+2*r,2)}, v17, s[28:31], s66 offen sc1")
            if glu: a(f"buffer_load_dwordx2 {vr(G2+2*r,2)}, v17, s[28:31], s66 offen offset:512 sc1")
    def get_epoch():
        lp = a.newlabel("K1_EP"); lo = a.newlabel("K1_EO")
        a("s_mov_b32 s67, 0")
        a.label(lp)
        a(f"""
        s_waitcnt vmcnt(0)
        v_readfirstlane_b32 s95, v52
        s_add_u32 s67, s67, 1
        s_cmp_lg_u32 s95, 0
        s_cbranch_scc1 {lo}
        s_sleep 4
        buffer_load_dword v52, v55, s[20:23], 0 offen sc1
        s_cmp_lt_u32 s67, 100000
        s_cbranch_scc1 {lp}
        """)
        a.label(lo)
    a(f"""
    s_lshl_b32 s66, s62, 8
    s_lshl_b32 s67, s35, 3
    s_add_u32 s66, s66, s67
    s_lshl_b32 s67, s43, 2
    s_add_u32 s66, s66, s67
    s_mul_i32 s94, s66, 1280
    v_mul_u32_u24 v54, 1280, v30
    v_lshl_add_u32 v54, v31, 4, v54
    v_add_u32 v26, s66, v30
    v_lshlrev_b32 v26, 3, v26
    """)
    def stat_loads():
        for q in range(5):
            a(f"buffer_load_dwordx4 {vr(60+4*q,4)}, v54, s[8:11], s94 offen offset:{256*q}")
    if SST < 0: stat_loads()
    if "preload" in hooks: hooks["preload"]()
    srd(a, 20, 54, 256)
    le = a.newlabel("K1_E0")
    a(f"""
    v_mov_b32 v55, 0
    s_or_b32 s66, s2, s43
    s_cmp_lg_u32 s66, 0
    s_cbranch_scc1 {le}
    s_memrealtime s[66:67]
    s_waitcnt lgkmcnt(0)
    s_or_b32 s66, s66, 1
    v_mov_b32 v52, s66
    s_mov_b64 exec, 1
    buffer_store_dword v52, v55, s[20:23], 0 offen sc1
    s_mov_b64 exec, -1
    """)
    a.label(le)
    srd(a, 24, 4, L*8, WS_STAT); srd(a, 28, 4, CSP_BYTES, WS_CSP)
    for r in range(32, 52): a(f"v_mov_b32 v{r}, 0")
    for r in range(128, 148): a(f"v_mov_b32 v{r}, 0")
    for r in range(56, 60): a(f"v_mov_b32 v{r}, 0x3f803f80")
    a(f"""
    s_lshl_b32 s92, s35, 3
    s_add_u32 s93, s92, s62
    s_lshl_b32 s93, s93, 1
    s_add_u32 s93, s93, s43
    s_mul_i32 s93, s93, 640
    s_lshl_b32 s92, s92, 1
    s_add_u32 s92, s92, s43
    s_mul_i32 s92, s92, 640
    v_lshlrev_b32 v19, 2, v1
    v_lshlrev_b32 v17, 3, v1
    """)
    WVO = [2, 3, 4, 5, 12]
    pcs = [(c, n) for c in range(2) for n in range(NJ) if c == 1 or n >= NLW]
    p0, p1 = (56, 58) if glu else (48, 50)
    KADV = 64*3456 if glu else 128
    def wsetup():
        a(f"""
        s_cmp_eq_u32 s43, 0
        s_cselect_b32 s12, s{p0}, s{p1}
        s_cselect_b32 s13, s{p0+1}, s{p1+1}
        s_mov_b32 s14, {D*F*2 if glu else P*D*2}
        s_mov_b32 s15, 0x20000
        s_mul_i32 s42, s43, 10240
        s_add_u32 s42, s42, {WBASE}
        """)
        if glu:
            a(f"s_sub_u32 s40, s35, 10\ns_mul_i32 s40, s40, 160")
            for n in range(5):
                a(f"""
                v_add_u32 v22, {64*n}, v1
                v_mul_u32_u24 v23, 6554, v22
                v_lshrrev_b32 v23, 16, v23
                v_mul_u32_u24 v24, 10, v23
                v_sub_u32 v24, v22, v24
                v_and_b32 v25, 0x33, v23
                v_bfe_u32 v6, v23, 2, 1
                v_lshl_or_b32 v25, v6, 3, v25
                v_bfe_u32 v6, v23, 3, 1
                v_lshl_or_b32 v25, v6, 2, v25
                v_mul_u32_u24 v25, 3456, v25
                v_lshl_add_u32 v{WVO[n]}, v24, 4, v25
                """)
        else:
            a(f"""
            s_mul_i32 s40, s35, {64*1280}
            v_xor_b32 v23, v30, v21
            v_mul_u32_u24 v24, 1280, v20
            v_lshl_add_u32 v2, v23, 4, v24
            v_xor_b32 v3, 64, v2
            v_add_u32 v3, {8*1280}, v3
            v_add_u32 v4, {16*1280}, v2
            v_add_u32 v5, {16*1280}, v3
            """)
    def hdma(st):
        for c, n in pcs:
            a(f"s_add_u32 m0, s42, {(st % 3)*SLOT + c*5120 + n*1024}\ns_add_u32 s41, s40, {st*KADV + c*32*(3456 if glu else 1280)}\nbuffer_load_dwordx4 v{WVO[n]}, s[12:15], s41 offen lds")
    wsetup()
    if SST < 0: stats_a()
    else: a("buffer_load_dword v52, v55, s[20:23], 0 offen sc1")
    def gather_check(q):
        last = max(i for i, t in enumerate(q) if t == "g")
        a(f"""
        s_mov_b64 s[32:33], 0xffff
        s_mul_i32 s65, s43, {NJ*64}
        v_add_u32 v13, s65, v19
        v_add_u32 v13, {LDS_CS}, v13
        s_lshl_b32 s65, s43, 9
        v_add_u32 v23, s65, v19
        v_add_u32 v23, {LDS_STA}, v23
        s_mov_b32 s67, 0
        s_waitcnt vmcnt({len(q) - 1 - last})
        """)
        lp = a.newlabel("K1_GP"); lo = a.newlabel("K1_GO")
        a.label(lp)
        tags = [27, 29] + [61+2*r for r in range(NR)]
        a(f"v_cmp_eq_u32 s[68:69], s95, v{tags[0]}")
        for t in tags[1:]: a(f"v_cmp_eq_u32 vcc, s95, v{t}\ns_and_b64 s[68:69], s[68:69], vcc")
        if glu:
            for r in range(NR): a(f"v_cmp_eq_u32 vcc, s95, v{G2+1+2*r}\ns_orn2_b64 vcc, vcc, s[32:33]\ns_and_b64 s[68:69], s[68:69], vcc")
        a(f"""
        s_cmp_eq_u64 s[68:69], -1
        s_cbranch_scc1 {lo}
        s_add_u32 s67, s67, 1
        s_cmp_ge_u32 s67, 100000
        s_cbranch_scc1 {lo}
        s_sleep 4
        """)
        gather_issue()
        a(f"s_waitcnt vmcnt(0)\ns_branch {lp}")
        a.label(lo)
        a("""
        v_lshlrev_b32 v27, 16, v26
        v_lshlrev_b32 v29, 16, v28
        v_and_b32 v26, 0xffff0000, v26
        v_and_b32 v28, 0xffff0000, v28
        v_rcp_f32 v27, v27
        v_rcp_f32 v29, v29
        ds_write_b32 v23, v26 offset:1024
        ds_write_b32 v23, v28 offset:1280
        ds_write_b32 v23, v27
        ds_write_b32 v23, v29 offset:256
        """)
        for r in range(1, NR):
            a(f"v_add_f32 v60, v60, v{60+2*r}")
            if glu: a(f"v_add_f32 v{G2}, v{G2}, v{G2+2*r}")
    q = []
    nxt = H0
    for s in range(10):
        if s >= H0:
            last = max(i for i, t in enumerate(q) if t == s)
            a(f"s_waitcnt vmcnt({len(q) - 1 - last})")
        a.stamp(2 + s)
        a("s_barrier")
        a.stamp(16 + s)
        if s == HPS: a("s_setprio 2")
        if s == 0:
            get_epoch()
            if SST < 0: stats_b()
        while nxt <= min(9, s + 2 - (1 if s in DEF else 0)):
            hdma(nxt); q += [nxt]*len(pcs); nxt += 1
        if s == SST: stat_loads(); q += ["x"]*5
        if SST >= 0 and s == SST + 2:
            last = max(i for i, t in enumerate(q) if t == "x")
            a(f"s_waitcnt vmcnt({len(q) - 1 - last})")
            stats_a(); stats_b()
        if s == GIS: q += ["g"]*NG
        if s < NR: remote_colsum(s)
        if ("side", s) in hooks: hooks[("side", s)]()
        if s == GIS: gather_issue()
        if s >= NR: colsum(s, 32)
        if s == GCS: gather_check(q)
    pick(32)
    a.stamp(12)
    a(f"""
    v_mov_b32 v84, s95
    v_mov_b32 v85, 0
    v_mov_b32 v86, 0
    v_mov_b32 v87, 0
    v_mov_b32 v88, {LDS_SYNC}
    ds_write_b128 v88, v[84:87]
    ds_write_b64 v88, v[86:87] offset:16
    ds_write_b64 v88, v[86:87] offset:24
    """)
    if GCS > 9: gather_check(q)
    a("v_add_f32 v24, v24, v60")
    if glu: a(f"v_add_f32 v25, v25, v{G2}")
    a("ds_write_b32 v13, v24")
    if glu: a("s_mov_b64 exec, 0xffff\nds_write_b32 v13, v25 offset:256\ns_mov_b64 exec, -1")
    a.stamp(13)
    a("s_setprio 0\ns_waitcnt lgkmcnt(0)\ns_barrier")
    a.stamp(14)

PFD = int(os.environ.get("PFD", "4"))
PF0 = int(os.environ.get("PF0", "2"))
def prefetch_setup(a, glu):
    if not PF: return {}
    KADV = 64*3456 if glu else 128
    p0, p1 = (56, 58) if glu else (48, 50)
    a(f"""
    s_cmp_eq_u32 s3, 0
    s_cselect_b32 s12, s{p0}, s{p1}
    s_cselect_b32 s13, s{p0+1}, s{p1+1}
    s_mov_b32 s14, {D*F*2 if glu else P*D*2}
    s_mov_b32 s15, 0x20000
    s_mov_b32 s81, {KADV}
    s_lshr_b32 s82, s61, 3
    s_lshl_b32 s82, s82, 4
    """)
    if glu:
        a(f"""
        s_mul_i32 s80, s82, 3456
        s_mul_i32 s82, s63, 160
        s_add_u32 s80, s80, s82
        v_mul_u32_u24 v14, 3456, v31
        v_bfe_u32 v15, v1, 4, 1
        v_mul_u32_u24 v15, 156, v15
        v_add_u32 v14, v14, v15
        s_mov_b32 s83, 32
        """)
    else:
        a(f"""
        s_lshl_b32 s80, s63, 6
        s_add_u32 s80, s80, s82
        s_mul_i32 s80, s80, 1280
        v_mul_u32_u24 v14, 1280, v31
        s_mov_b32 s83, 16
        """)
    a(f"""
    s_lshl_b32 s82, s62, 8
    s_and_b32 s84, s61, 7
    s_lshl_b32 s84, s84, 5
    s_add_u32 s82, s82, s84
    s_mul_i32 s82, s82, 1280
    v_mul_u32_u24 v15, 1280, v1
    s_cmp_eq_u32 s3, 2
    s_cselect_b32 s12, s8, s12
    s_cselect_b32 s13, s9, s13
    s_cselect_b32 s14, s10, s14
    s_cselect_b32 s80, s82, s80
    s_cselect_b32 s81, 128, s81
    s_cselect_b32 s83, 32, s83
    s_cselect_b64 vcc, -1, 0
    s_cmp_eq_u32 s3, 3
    s_cselect_b32 s83, 0, s83
    v_cndmask_b32 v14, v14, v15, vcc
    v_cmp_gt_u32 vcc, s83, v1
    v_mov_b32 v15, 0x40000000
    s_nop 0
    v_cndmask_b32 v14, v15, v14, vcc
    """)
    def touch():
        a("s_add_u32 s80, s80, s81\nbuffer_load_dword v16, v14, s[12:15], s80 offen")
    for _ in range(LT + LT2 - 1): a("s_add_u32 s80, s80, s81")
    for _ in range(PFD - LT - LT2): touch()
    return {"touch": touch}

def lds_spin(a, lab, va, off, cond, init=False, vt=4):
    if init: a(f"v_mov_b32 v{va}, {LDS_SYNC}")
    a("s_mov_b32 s67, 0")
    a.label(lab)
    a(f"""
    ds_read_b32 v{vt}, v{va} offset:{off}
    s_add_u32 s67, s67, 1
    s_waitcnt lgkmcnt(0)
    v_readfirstlane_b32 s66, v{vt}
    {cond}
    s_cbranch_scc1 {lab}_OK
    s_cmp_ge_u32 s67, 1000000
    s_cbranch_scc1 {lab}_OK
    s_sleep 1
    s_branch {lab}
    """)
    a.label(lab + "_OK")

def consumer_flag(a):
    srd(a, 20, 4, FLG_BYTES, WS_FLG)
    a(f"""
    s_lshl_b32 s66, s62, 2
    s_add_u32 s66, s66, s3
    s_lshl_b32 s66, s66, 8
    s_lshl_b32 s67, s35, 2
    s_add_u32 s66, s66, s67
    v_mov_b32 v2, 0
    v_mov_b32 v3, s95
    v_mov_b32 v4, {LDS_SYNC}
    v_mov_b32 v5, 1
    s_mov_b64 exec, 1
    s_mov_b32 s47, 0
    s_mov_b32 s67, 0
    """)
    a.stamp(16)
    a("""
    s_waitcnt vmcnt(0)
    buffer_store_dword v3, v2, s[20:23], s66 offen sc1
    ds_add_u32 v4, v5 offset:12
    s_mov_b64 exec, -1
    s_setprio 0
    """)
    a.stamp(17)
    a.label("K1_CW")
    a("""
    ds_read_b32 v6, v4 offset:12
    s_add_u32 s67, s67, 1
    s_waitcnt lgkmcnt(0)
    v_readfirstlane_b32 s66, v6
    s_and_b32 s66, s66, 15
    s_cmp_ge_u32 s66, 4
    s_cbranch_scc1 K1_P2
    s_cmp_ge_u32 s67, 1000000
    s_cbranch_scc1 K1_P2
    s_sleep 1
    s_branch K1_CW
    """)

M2MAP = ['''s_bfe_u32 s49, s50, 0x10003
    s_lshl_b32 s49, s49, 2
    s_bfe_u32 s65, s50, 0x20001
    s_add_u32 s49, s49, s65
    s_lshr_b32 s48, s50, 4
    s_lshl_b32 s48, s48, 1
    s_and_b32 s65, s50, 1
    s_add_u32 s48, s48, s65''',
    's_and_b32 s49, s50, 7\ns_lshr_b32 s48, s50, 3',
    '''s_lshr_b32 s49, s50, 3
    s_lshl_b32 s49, s49, 1
    s_bfe_u32 s65, s50, 0x10002
    s_add_u32 s49, s49, s65
    s_and_b32 s48, s50, 3'''][M2]
def phase2(a):
    PA = 16
    def pacc(j, i): return PA + 4*(j*4 + i)
    HB = 96
    def hreg(n, i): return HB + 16*(n % NH) + 4*i
    def bH(n, i): return vr(hreg(n, i), 4)
    WV = HB + 16*NH; nwv = (192 - WV)//20
    assert 20*(NW - nwv) <= 60
    def wreg(n, j):
        b = n % NW
        return vr(WV + 20*b + 4*j, 4) if b < nwv else ar(20*(b - nwv) + 4*j, 4)
    NK = 12
    a.label("K1_P2")
    a.vm = []
    a(f"""
    s_and_b32 s46, s3, 3
    s_mov_b32 s50, s35
    {M2MAP}
    s_lshl_b32 s51, s48, 6
    s_lshl_b32 s65, s62, 2
    s_add_u32 s48, s48, s65
    s_mul_i32 s52, s49, {5*NS2*1024}
    s_add_u32 s53, s52, {NS2*1024}
    s_add_u32 s54, s52, {2*NS2*1024}
    s_add_u32 s55, s52, {3*NS2*1024}
    s_add_u32 s56, s52, {4*NS2*1024}
    s_xor_b32 s65, s3, 2
    s_cmp_ge_u32 s3, 4
    s_cselect_b32 s65, s65, s3
    s_mul_i32 s36, s65, 20480
    s_movk_i32 s41, 4096
    s_cselect_b32 s40, s41, {(-81920) & 0xffffffff}
    s_cselect_b32 s41, 12288, s41
    s_mov_b32 s66, {76*1024}
    s_cselect_b32 s66, {40*1024}, s66
    s_cmp_eq_u32 s3, 3
    s_cselect_b32 s38, 0x40000000, 0
    s_sub_u32 s40, s40, s38
    s_add_u32 s38, s38, 4096
    s_cmp_eq_u32 s3, 7
    s_cselect_b32 s39, 0x40000000, 0
    s_add_u32 s39, s39, 4096
    s_lshl_b32 s65, s46, 10
    s_add_u32 s65, s65, s66
    v_lshlrev_b32 v2, 4, v1
    v_add_u32 v3, s65, v2
    v_mov_b32 v4, v3
    v_add_u32 v13, s36, v2
    v_and_b32 v5, 15, v1
    v_lshrrev_b32 v6, 4, v1
    v_mov_b32 v9, {LDS_SYNC}
    """)
    srd(a, 8, 4, HP_BYTES, WS_HP)
    srd(a, 12, 4, WP_BYTES, WS_WP)
    srd(a, 20, 4, FLG_BYTES, WS_FLG)
    for i in range(4):
        a(f"s_xor_b32 s65, s46, {i}\ns_lshl_b32 s66, s48, 2\ns_add_u32 s65, s65, s66\ns_mul_i32 s{32+i}, s65, {NS2*1024}")
    a(f"""
    s_lshl_b32 s65, s48, 6
    s_lshl_b32 s66, s46, 4
    s_add_u32 s65, s65, s66
    v_add_u32 v7, s65, v5
    v_lshlrev_b32 v12, 2, v6
    s_mul_i32 s66, s49, 80
    v_add_u32 v12, s66, v12
    v_mul_u32_u24 v7, 640, v7
    v_add_u32 v7, v7, v12
    v_lshlrev_b32 v8, 1, v7
    v_lshlrev_b32 v7, 2, v7
    v_lshlrev_b32 v12, 1, v12
    """)
    srd(a, 28, 100, L*D*4)
    def dma(n):
        for j in range(5):
            a(f"s_add_u32 m0, s36, {(n - NW)*5120 + j*1024}\ns_nop 0")
            a.vmem(f"buffer_load_dwordx4 v4, s[12:15], s{52+j} offen sc1 lds", ("W", n))
        a(f"v_add_u32 v4, { {0: 's38', 1: 's40', 8: 's41', 10: 's39'}.get(n, '4096')}, v4")
    def loadW(n, j):
        if NW <= n < NW + NL:
            a(f"ds_read_b128 {wreg(n, j)}, v13 offset:{(n - NW)*5120 + j*1024}")
            return
        a.vmem(f"buffer_load_dwordx4 {wreg(n, j)}, v4, s[12:15], s{52+j} offen sc1", ("W", n))
        if j == 4: a(f"v_add_u32 v4, { {0: 's38', 1: 's40', 8: 's41', 10: 's39'}.get(n, '4096')}, v4")
    def loadH(n):
        for i in range(4):
            a.vmem(f"buffer_load_dwordx4 {bH(n,i)}, v3, s[8:11], s{32+i} offen sc1", ("H", n))
        a(f"v_add_u32 v3, { {0: 's38', 1: 's40', 8: 's41', 10: 's39'}.get(n, '4096')}, v3")
    def wait_flags(tag, poller, off, mask, word):
        a(f"s_mov_b32 s67, 0\n{poller}\ns_cbranch_scc0 K1_P2SPIN{tag}")
        a.label(f"K1_P2POLL{tag}")
        a(f"""
        buffer_load_dword v6, v5, s[20:23], {off} offen sc1
        s_waitcnt vmcnt(0)
        v_cmp_eq_u32 vcc, s95, v6
        s_add_u32 s67, s67, 1
        {mask}
        s_cbranch_scc1 K1_P2SET{tag}
        s_cmp_ge_u32 s67, 100000
        s_cbranch_scc1 K1_P2SET{tag}
        s_sleep {PSL if tag == "W" else PSH}
        s_branch K1_P2POLL{tag}
        """)
        a.label(f"K1_P2SET{tag}")
        a(f"v_mov_b32 v6, 1\nds_write_b32 {word}, v6\ns_branch K1_P2GO{tag}".replace("@", ""))
        a.label(f"K1_P2SPIN{tag}")
        a(f"""
        ds_read_b32 v6, {word}
        s_add_u32 s67, s67, 1
        s_waitcnt lgkmcnt(0)
        v_readfirstlane_b32 s66, v6
        s_cmp_lg_u32 s66, 0
        s_cbranch_scc1 K1_P2GO{tag}
        s_cmp_ge_u32 s67, 1000000
        s_cbranch_scc1 K1_P2GO{tag}
        s_sleep 1
        s_branch K1_P2SPIN{tag}
        """)
        a.label(f"K1_P2GO{tag}")
    a("s_cmp_lt_u32 s3, 4\ns_cbranch_scc1 K1_P2W")
    EX = HB
    srd(a, 16, 6, XN_BYTES)
    srd(a, 24, 96, D*2)
    for jd in range(5):
        a(f"buffer_load_dwordx2 {vr(EX+2*jd,2)}, v8, s[16:19], 0 offen offset:{32*jd}")
        a(f"buffer_load_dwordx2 {vr(EX+10+2*jd,2)}, v12, s[24:27], 0 offen offset:{32*jd}")
    a(f"""
    v_bfe_u32 v14, v1, 1, 2
    v_lshlrev_b32 v14, 4, v14
    v_and_b32 v10, 1, v1
    v_lshl_add_u32 v14, v10, 1, v14
    v_bfe_u32 v10, v1, 3, 1
    v_add_u32 v14, v14, v10
    s_lshl_b32 s65, s46, 2
    v_add_u32 v14, s65, v14
    s_lshl_b32 s65, s46, 4
    v_add_u32 v10, s65, v5
    s_cmp_lt_u32 s50, 10
    s_cselect_b64 vcc, -1, 0
    v_cndmask_b32 v14, v10, v14, vcc
    v_add_u32 v14, s51, v14
    v_lshlrev_b32 v14, 2, v14
    v_add_u32 v14, {LDS_STA}, v14
    """)
    a.label("K1_P2BAR")
    a("""
    s_cmp_eq_u32 s47, 0
    s_cbranch_scc1 K1_P2E
    s_barrier
    s_sub_u32 s47, s47, 1
    s_branch K1_P2BAR
    """)
    a.label("K1_P2E")
    a(f"""
    ds_read_b32 v11, v14
    ds_read_b32 v10, v14 offset:1024
    ds_read_b32 v12, v9
    v_mov_b32 v14, 16
    s_waitcnt lgkmcnt(0)
    v_readfirstlane_b32 s95, v12
    s_mov_b64 exec, 1
    ds_add_u32 v9, v14 offset:12
    s_mov_b64 exec, -1
    """)
    a.label("K1_P2W")
    a(f"""
    v_lshlrev_b32 v5, 2, v1
    s_lshl_b32 s65, s49, 8
    s_add_u32 s65, s65, 8192
    v_add_u32 v14, 16, v9
    """)
    def ssm_hold(t):
        a(f"s_cmp_ge_u32 s50, 10\ns_cbranch_scc1 K1_HL{t}_OK")
        lds_spin(a, f"K1_HL{t}", 9, 24, "s_cmp_lg_u32 s66, 0", vt=6)
    a.stamp(21)
    if WS6 == 2: ssm_hold("A")
    wait_flags("W", "s_cmp_eq_u32 s3, 4", "s65", "s_cmp_eq_u64 vcc, -1", "v14")
    a.stamp(22)
    for n in range(NW):
        for j in range(5): loadW(n, j)
    if WS6 == 1: ssm_hold("A")
    for n in range(NW, NW + NL): dma(n)
    for r in range(PA, PA + 80): a(f"v_mov_b32 v{r}, 0")
    a(f"s_cmp_lt_u32 s3, 4\ns_cbranch_scc1 K1_P2W2\ns_waitcnt vmcnt({5*(NW + NL)})")
    for jd in range(5):
        for h in range(2):
            x = EX+2*jd+h; ds = EX+10+2*jd+h; T = pacc(jd, 0) + 2*h
            a(f"""
            v_lshlrev_b32 v14, 16, v{x}
            v_and_b32 v15, 0xffff0000, v{x}
            v_sub_f32 v12, v14, v10
            v_sub_f32 v8, v15, v10
            v_cvt_pk_bf16_f32 v12, v12, v8
            v_and_b32 v8, 0xffff0000, v12
            v_lshlrev_b32 v12, 16, v12
            v_mul_f32 v12, v12, v11
            v_mul_f32 v8, v8, v11
            v_cvt_pk_bf16_f32 v12, v12, v8
            v_and_b32 v8, 0xffff0000, v12
            v_lshlrev_b32 v12, 16, v12
            v_lshlrev_b32 v5, 16, v{ds}
            v_and_b32 v6, 0xffff0000, v{ds}
            v_mul_f32 v12, v12, v5
            v_mul_f32 v8, v8, v6
            v_cvt_pk_bf16_f32 v12, v12, v8
            v_and_b32 v8, 0xffff0000, v12
            v_lshlrev_b32 v12, 16, v12
            v_add_f32 v{T}, v12, v14
            v_add_f32 v{T+1}, v8, v15
            """)
    a.label("K1_P2W2")
    a(f"""
    v_add_u32 v10, 4, v9
    v_add_u32 v11, 8, v9
    v_and_b32 v5, 31, v1
    v_lshlrev_b32 v5, 2, v5
    s_lshl_b32 s65, s48, 8
    """)
    RA = 184
    assert WV + 20*nwv <= RA
    for m in range(1, 8):
        a(f"""
        s_xor_b32 s66, s3, {m}
        s_xor_b32 s67, s66, 2
        s_cmp_ge_u32 s66, 4
        s_cselect_b32 s66, s67, s66
        s_mul_i32 s66, s66, 20480
        s_add_u32 s66, s66, {(((m & 3) + 3) & 3)*5120}
        v_add_u32 v{RA+m-1}, s66, v2
        """)
    a.stamp(26)
    lds_spin(a, "K1_HD", 9, 12, "s_cmp_ge_u32 s66, 68", vt=6)
    wait_flags("H", "s_cmp_eq_u32 s3, 4", "s65", "s_or_b32 s66, vcc_lo, 0x3ff\ns_cmp_eq_u32 s66, -1", "v10")
    a.stamp(27)
    loadH(0); loadH(1)
    a("s_cmp_ge_u32 s3, 4\ns_cbranch_scc1 K1_P2GOS")
    wait_flags("S", "s_cmp_eq_u32 s3, 0", "s65", "s_and_b32 s66, vcc_lo, 0x3ff\ns_cmp_eq_u32 s66, 0x3ff", "v11")
    a.stamp(23); a.lines.append("  ;@CSTAMP 24")
    for n in range(2, NH): loadH(n)
    PRI = os.environ.get("PRI", "")
    for n in range(NK):
        if PRI and n == 0:
            lp = a.newlabel("K1_PR"); a(f"s_cmp_lt_u32 s3, 4\ns_cbranch_scc1 {lp}\ns_setprio 2"); a.label(lp)
        if PRI and n == int(PRI): a("s_setprio 0")
        a.vmwait([("H", n), ("W", n)], "lgkmcnt(0)" if NW <= n < NW + NL else "")
        if n in (1, 5, 9): a.stamp(18 + n//4)
        sk = None
        if n >= 9:
            lo = a.newlabel("K1_P2O"); le = a.newlabel("K1_P2X")
            h0 = hreg(n, 0)
            a(f"s_cmp_lt_u32 s3, 4\ns_cbranch_scc1 {le}\ns_bitcmp1_b32 s3, 0\ns_cbranch_scc1 {lo}")
            for p in range(2):
                for e in range(2): a(f"v_swap_b32 v{h0+8*p+2+e}, v{h0+8*p+4+e}")
            a(f"s_branch {le}")
            a.label(lo)
            for p in range(2):
                for e in range(2): a(f"v_swap_b32 v{h0+8*p+e}, v{h0+8*p+6+e}")
            a.label(le)
            a("s_nop 1")
        for j in range(5):
            for i in range(4):
                a(f"v_mfma_f32_16x16x32_bf16 {vr(pacc(j,i),4)}, {wreg(n, j)}, {bH(n,i)}, {vr(pacc(j,i),4)}")
            if n + NW < NK and j >= 1 and sk is None: loadW(n + NW, j - 1)
            if n == NK - 1 and j >= 2:
                for i in range(1, 4): a(f"ds_write_b128 v13, {vr(pacc(j-2,i),4)} offset:{((i-1)*5 + j-2)*1024}")
        if sk:
            a.label(sk)
            if n + NW < NK:
                for j in range(4): loadW(n + NW, j)
        if n + NH < NK: loadH(n + NH)
        if n + NW < NK: loadW(n + NW, 4)
    a.label("K1_P2FIN")
    a.stamp(28); a.lines.append("  ;@CSTAMP 25")
    for i in range(1, 4): a(f"ds_write_b128 v13, {vr(pacc(3,i),4)} offset:{((i-1)*5 + 3)*1024}")
    a("s_nop 7\ns_nop 7")
    for i in range(1, 4): a(f"ds_write_b128 v13, {vr(pacc(4,i),4)} offset:{((i-1)*5 + 4)*1024}")
    a("s_cmp_lt_u32 s3, 4\ns_cbranch_scc1 K1_P2FB")
    for grp in range(2):
        own = [0, 1, 2] if grp == 0 else [3, 4]
        oth = [3, 4] if grp == 0 else [0, 1, 2]
        if grp: a.label("K1_P2FB")
        for j in oth: a(f"ds_write_b128 v13, {vr(pacc(j,0),4)} offset:{(15 + j)*1024}")
        a("s_waitcnt lgkmcnt(0)\ns_barrier")
        a.stamp(29)
        D0 = HB
        for x, j in enumerate(own):
            for m in range(7):
                a(f"ds_read_b128 {vr(D0+28*x+4*m,4)}, v{RA+m} offset:{j*1024}")
        for x, j in enumerate(own):
            rem = 7*(len(own) - 1 - x)
            d = D0 + 28*x; T = pacc(j, 0)
            a(f"s_waitcnt lgkmcnt({min(15, rem + 3)})")
            for h in range(2):
                a(f"v_pk_add_f32 {vr(d+2*h,2)}, {vr(d+2*h,2)}, {vr(d+4+2*h,2)}")
                a(f"v_pk_add_f32 {vr(d+8+2*h,2)}, {vr(d+8+2*h,2)}, {vr(d+12+2*h,2)}")
            for h in range(2): a(f"v_pk_add_f32 {vr(T+2*h,2)}, {vr(T+2*h,2)}, {vr(d+2*h,2)}")
            for h in range(2): a(f"v_pk_add_f32 {vr(T+2*h,2)}, {vr(T+2*h,2)}, {vr(d+8+2*h,2)}")
            a(f"s_waitcnt lgkmcnt({min(15, rem)})")
            for h in range(2): a(f"v_pk_add_f32 {vr(d+16+2*h,2)}, {vr(d+16+2*h,2)}, {vr(d+20+2*h,2)}")
            for h in range(2): a(f"v_pk_add_f32 {vr(T+2*h,2)}, {vr(T+2*h,2)}, {vr(d+24+2*h,2)}")
            for h in range(2): a(f"v_pk_add_f32 {vr(T+2*h,2)}, {vr(T+2*h,2)}, {vr(d+16+2*h,2)}")
            a(f"buffer_store_dwordx4 {vr(T,4)}, v7, s[28:31], 0 offen offset:{64*j} sc1")
        a.stamp(30)
        a("s_endpgm")

XM = int(os.environ.get("XM", "0"))
XMAP = ["s_lshr_b32 s62, s60, 2\ns_and_b32 s63, s60, 3",
        "s_and_b32 s62, s60, 1\ns_lshr_b32 s63, s60, 1\ns_add_u32 s63, s63, 2\ns_and_b32 s63, s63, 3",
        "s_and_b32 s62, s60, 1\ns_lshr_b32 s63, s60, 1",
        "s_and_b32 s62, s60, 1\ns_lshr_b32 s63, s60, 1\ns_lshl_b32 s63, s63, 1\ns_lshr_b32 s63, 0x78, s63\ns_and_b32 s63, s63, 3"][XM]
def gen_k1():
    a = Asm()
    a.raw(".p2align 8\n.type gemm1_kernel,@function\ngemm1_kernel:")
    a(f"""
    s_cmp_ge_u32 s2, 256
    s_cbranch_scc1 K1_END
    s_load_dwordx2 s[4:5], s[0:1], {KA['ws']}
    s_load_dwordx2 s[6:7], s[0:1], {KA['x']}
    s_load_dwordx4 s[44:47], s[0:1], {KA['lre']}
    s_load_dwordx4 s[48:51], s[0:1], {KA['bre']}
    s_load_dwordx2 s[52:53], s[0:1], {KA['ldt']}
    s_load_dwordx2 s[54:55], s[0:1], {KA['dbg']}
    s_load_dwordx4 s[56:59], s[0:1], {KA['wg']}
    s_load_dwordx2 s[96:97], s[0:1], {KA['dsk']}
    s_load_dwordx2 s[100:101], s[0:1], {KA['out']}
    v_and_b32 v1, 63, v0
    v_lshrrev_b32 v2, 6, v0
    s_nop 0
    v_readfirstlane_b32 s3, v2
    s_and_b32 s60, s2, 7
    s_lshr_b32 s61, s2, 3
    {XMAP}
    s_lshl_b32 s62, s62, 2
    s_lshr_b32 s64, s61, 3
    s_add_u32 s62, s62, s64
    s_lshl_b32 s63, s63, 3
    s_and_b32 s64, s61, 7
    s_add_u32 s63, s63, s64
    s_mov_b32 s35, s63
    s_waitcnt lgkmcnt(0)
    """)
    srd(a, 8, 6, XN_BYTES)
    a("""
    s_sub_u32 s65, s3, 4
    s_cmp_ge_u32 s65, 2
    s_cbranch_scc1 K1_NOTLOADER
    """)
    loader_code(a)
    a.label("K1_NOTLOADER")
    if os.environ.get("CPF", "1") == "1":
        a(f"""
        s_cmp_lg_u32 s3, 3
        s_cbranch_scc1 K1_NOCPF
        s_getpc_b64 s[66:67]
        K1_PCREF:
        s_sub_u32 s66, s66, K1_PCREF-gemm1_kernel
        s_subb_u32 s67, s67, 0
        s_lshl_b32 s65, s61, 11
        v_lshlrev_b32 v14, 7, v1
        v_add_u32 v14, s65, v14
        v_cmp_gt_u32 vcc, CODE_END-gemm1_kernel, v14
        s_and_b64 exec, vcc, 0xffff
        s_cbranch_execz K1_CPFSKIP
        global_load_dword v16, v14, s[66:67]
        K1_CPFSKIP:
        s_mov_b64 exec, -1
        K1_NOCPF:
        """)
    srd(a, 16, 4, HP_BYTES, WS_HP)
    srd(a, 76, 4, AGG_BYTES, WS_AGG)
    a(f"""
    v_lshrrev_b32 v30, 4, v1
    v_and_b32 v31, 15, v1
    v_lshrrev_b32 v10, 1, v31
    v_xor_b32 v10, v10, v30
    v_lshlrev_b32 v11, 7, v31
    v_lshl_add_u32 v10, v10, 4, v11
    v_bfe_u32 v14, v1, 2, 2
    v_bfe_u32 v15, v1, 4, 1
    v_lshl_add_u32 v14, v15, 2, v14
    v_bfe_u32 v15, v1, 5, 1
    v_lshl_add_u32 v14, v15, 4, v14
    v_mul_u32_u24 v14, 160, v14
    v_and_b32 v15, 3, v1
    v_lshl_add_u32 v11, v15, 3, v14
    s_cmp_ge_u32 s3, 4
    s_cbranch_scc1 K1_HELPER
    """)
    a(f"""
    s_lshl_b32 s65, s3, 13
    v_add_u32 v2, s65, v10
    v_xor_b32 v3, 64, v2
    v_add_u32 v4, 32768, v2
    v_add_u32 v5, 32768, v3
    v_add_u32 v6, 65536, v2
    v_add_u32 v7, 65536, v3
    s_lshl_b32 s64, s62, 4
    s_lshl_b32 s65, s3, 2
    s_add_u32 s64, s64, s65
    s_mul_i32 s64, s64, {NS2*1024}
    v_lshlrev_b32 v12, 4, v1
    s_cmp_lt_u32 s63, 10
    s_cbranch_scc1 K1_SSM
    """)
    a(f"""
    s_sub_u32 s63, s63, 10
    v_add_u32 v8, {WBASE}, v11
    s_lshr_b32 s65, s63, 1
    s_and_b32 s66, s63, 1
    s_lshl_b32 s67, s65, 2
    s_lshl_b32 s68, s66, 1
    s_add_u32 s67, s67, s68
    s_add_u32 s67, s67, 40
    s_lshl_b32 s67, s67, 10
    s_add_u32 s70, s67, s64
    s_add_u32 s71, s70, 1024
    s_cmp_eq_u32 s63, 21
    s_cselect_b32 s71, 0x40000000, s71
    s_add_u32 s67, s65, 84
    s_lshl_b32 s67, s67, 10
    s_mul_i32 s68, s66, {NS2*1024}
    s_add_u32 s67, s67, s68
    s_add_u32 s72, s67, s64
    """)
    consumer_loop(a, True, prefetch_setup(a, True))
    a(f"""
    s_lshl_b32 s65, s3, 8
    v_lshlrev_b32 v2, 2, v31
    v_add_u32 v2, s65, v2
    v_add_u32 v2, {LDS_STA}, v2
    v_lshlrev_b32 v3, 4, v30
    v_add_u32 v3, {LDS_CS}, v3
    """)
    for i in range(4):
        a(f"ds_read_b32 v{4+i}, v2 offset:{64*i}")
        a(f"ds_read_b32 v{8+i}, v2 offset:{1024+64*i}")
    a(f"v_mov_b32 v15, {LDS_SYNC}\nds_read_b32 v14, v15")
    a("s_cmp_eq_u32 s66, 1\ns_waitcnt lgkmcnt(0)\nv_readfirstlane_b32 s95, v14")
    for i in range(4): a(f"v_mul_f32 v{4+i}, v{4+i}, v{4+i}")
    a("s_cbranch_scc1 K1_GLU_ODD")
    for odd in range(2):
        if odd: a.label("K1_GLU_ODD")
        groups = [(4,), (0, 1), (2, 3)] if not odd else [(0,), (1, 2), (3, 4)]
        k = 0
        for gi, grp in enumerate(groups):
            for x, j in enumerate(grp):
                a(f"ds_read_b128 {vr(14+8*x,4)}, v3 offset:{64*j}")
                a(f"ds_read_b128 {vr(18+8*x,4)}, v3 offset:{320+64*j}")
            a("s_waitcnt lgkmcnt(0)")
            for i in range(4):
                mi = 8 + (i & ~1); msel = i & 1
                ai = 4 + (i & ~1)
                sel = f"op_sel:[0,{msel},0] op_sel_hi:[1,{msel},1] neg_lo:[0,1,0] neg_hi:[0,1,0]"
                sel2 = f"op_sel:[0,{msel}] op_sel_hi:[1,{msel}]"
                for x, j in enumerate(grp):
                    G = acc(i, j); U = acc(i, 5+j)
                    for h in range(2):
                        a(f"v_pk_fma_f32 {vr(G+2*h,2)}, {vr(14+8*x+2*h,2)}, {vr(mi,2)}, {vr(G+2*h,2)} {sel}")
                        a(f"v_pk_fma_f32 {vr(U+2*h,2)}, {vr(18+8*x+2*h,2)}, {vr(mi,2)}, {vr(U+2*h,2)} {sel}")
                    for h in range(2):
                        a(f"v_pk_mul_f32 {vr(G+2*h,2)}, {vr(G+2*h,2)}, {vr(U+2*h,2)}")
                    for h in range(2):
                        a(f"v_pk_mul_f32 {vr(G+2*h,2)}, {vr(G+2*h,2)}, {vr(ai,2)} {sel2}")
                if gi == 0:
                    T = acc(i & ~1, 5+grp[0]); G = acc(i, grp[0]); o = 2*(i & 1)
                    a(f"v_cvt_pk_bf16_f32 v{T+o}, v{G}, v{G+1}")
                    a(f"v_cvt_pk_bf16_f32 v{T+o+1}, v{G+2}, v{G+3}")
                    if i & 1:
                        a(f"s_add_u32 s75, s72, {(i-1)*NS2*1024}")
                        a(f"buffer_store_dwordx4 {vr(T,4)}, v12, s[16:19], s75 offen{ST}")
                    continue
                T = acc(i, 5+grp[0])
                for x, j in enumerate(grp):
                    G = acc(i, j)
                    a(f"v_cvt_pk_bf16_f32 v{T+2*x}, v{G}, v{G+1}")
                    a(f"v_cvt_pk_bf16_f32 v{T+2*x+1}, v{G+2}, v{G+3}")
                a(f"s_add_u32 s75, s{69+gi}, {i*NS2*1024}")
                a(f"buffer_store_dwordx4 {vr(T,4)}, v12, s[16:19], s75 offen{ST}")
        if odd == 0: a("s_branch K1_CFLAG")
    a.label("K1_CFLAG")
    consumer_flag(a)
    a.label("K1_SSM")
    a.lg = []
    a(f"""
    v_add_u32 v8, {WBASE}, v10
    v_xor_b32 v9, 64, v8
    s_lshl_b32 s65, s63, 12
    s_add_u32 s64, s64, s65
    """)
    consumer_loop(a, False, prefetch_setup(a, False))
    LAM = 14
    a(f"""
    v_lshlrev_b32 v13, 4, v31
    v_add_u32 v13, {LDS_LAM}, v13
    s_lshl_b32 s65, s3, 8
    v_lshlrev_b32 v2, 4, v30
    v_add_u32 v2, s65, v2
    v_add_u32 v2, {LDS_STA}, v2
    v_lshlrev_b32 v3, 2, v31
    v_add_u32 v3, {LDS_CS}, v3
    """)
    for i in range(4):
        a(f"ds_read_b128 {vr(160+4*i,4)}, v2 offset:{64*i}")
        a(f"ds_read_b128 {vr(176+4*i,4)}, v2 offset:{1024+64*i}")
    for jj in range(8):
        a(f"ds_read_b32 v{4+jj}, v3 offset:{64*jj}")
    a(f"v_mov_b32 v15, {LDS_SYNC}\nds_read_b32 v14, v15")
    a("s_waitcnt lgkmcnt(0)\nv_readfirstlane_b32 s95, v14")
    for j in range(4):
        a(f"ds_read_b128 {vr(LAM+4*j,4)}, v13 offset:{256*j}")
    for j in range(4):
        for jj in (j, 4+j):
            cs = 4 + (jj & ~1); sl = jj & 1
            for i in range(4):
                A = acc(i, jj)
                for h in range(2):
                    a(f"v_pk_fma_f32 {vr(A+2*h,2)}, {vr(176+4*i+2*h,2)}, {vr(cs,2)}, {vr(A+2*h,2)} op_sel:[0,{sl},0] op_sel_hi:[1,{sl},1] neg_lo:[0,1,0] neg_hi:[0,1,0]")
            for i in range(4):
                A = acc(i, jj)
                for h in range(2):
                    a(f"v_pk_mul_f32 {vr(A+2*h,2)}, {vr(A+2*h,2)}, {vr(160+4*i+2*h,2)}")
    a(f"""
    s_lshl_b32 s65, s3, 2
    v_add_u32 v10, s65, v30
    v_lshlrev_b32 v10, 9, v10
    v_lshl_add_u32 v10, v31, 3, v10
    v_add_u32 v10, {LDS_E16}, v10
    s_waitcnt lgkmcnt(0)
    """)
    def BR(j, sg): return acc(sg >> 1, j) + 2*(sg & 1)
    def BI(j, sg): return acc(sg >> 1, 4+j) + 2*(sg & 1)
    E = 160
    def ER(q, j): return E + 16*q + 4*j
    def EI(q, j): return E + 16*q + 4*j + 2
    def step(dR, dI, pR, pI, bR, bI, lam):
        return [
          f"v_pk_fma_f32 {vr(dR,2)}, {vr(lam,2)}, {vr(pR,2)}, {vr(bR,2)} op_sel_hi:[0,1,1]",
          f"v_pk_fma_f32 {vr(dI,2)}, {vr(lam,2)}, {vr(pI,2)}, {vr(bI,2)} op_sel_hi:[0,1,1]",
          f"v_pk_fma_f32 {vr(dR,2)}, {vr(lam,2)}, {vr(pI,2)}, {vr(dR,2)} op_sel:[1,0,0] op_sel_hi:[1,1,1] neg_lo:[1,0,0] neg_hi:[1,0,0]",
          f"v_pk_fma_f32 {vr(dI,2)}, {vr(lam,2)}, {vr(pR,2)}, {vr(dI,2)} op_sel:[1,0,0] op_sel_hi:[1,1,1]"]
    for sg in range(1, 8):
        q = sg & 1
        cols = []
        for j in range(4):
            pR, pI = (BR(j, 0), BI(j, 0)) if sg == 1 else (ER(q ^ 1, j), EI(q ^ 1, j))
            cols.append(step(ER(q, j), EI(q, j), pR, pI, BR(j, sg), BI(j, sg), LAM+4*j))
        for k in range(4):
            for j in range(4): a(cols[j][k])
    for j in range(4):
        c = ER(0, j); r = ER(1, j); im = EI(1, j); l8 = LAM+4*j+2
        a(f"""
        v_fma_f32 v{c}, v{l8}, v{r}, v{r+1}
        v_fma_f32 v{c+1}, v{l8}, v{im}, v{im+1}
        v_fma_f32 v{c}, -v{l8+1}, v{im}, v{c}
        v_fma_f32 v{c+1}, v{l8+1}, v{r}, v{c+1}
        ds_write_b64 v10, {vr(c,2)} offset:{128*j}
        """)
    a(f"""
    s_mul_i32 s65, s3, 18432
    v_mul_u32_u24 v2, 144, v31
    v_lshl_add_u32 v2, v30, 5, v2
    v_add_u32 v2, s65, v2
    v_bfe_u32 v3, v1, 2, 2
    v_lshl_add_u32 v3, v30, 3, v3
    v_mul_u32_u24 v3, 144, v3
    v_and_b32 v4, 3, v1
    v_lshl_add_u32 v3, v4, 3, v3
    v_add_u32 v3, s65, v3
    v_mov_b32 v13, {LDS_SYNC}
    v_mov_b32 v4, 1
    s_mov_b64 exec, 1
    ds_add_u32 v13, v4 offset:20
    s_mov_b64 exec, -1
    """)
    a.stamp(13)
    a(f"v_lshlrev_b32 v13, 3, v31\nv_add_u32 v13, {LDS_UV}, v13")
    for j in range(4):
        a(f"ds_read_b64 {vr([4,6,8,170][j],2)}, v13 offset:{128*j}")
    a("s_waitcnt lgkmcnt(0)")
    for j in range(4):
        U = [4,6,8,170][j]
        allp = [(acc(i, j)+2*h, acc(i, 4+j)+2*h) for i in range(4) for h in range(2)] + [(ER(1, j), EI(1, j))]
        for prs in (allp[:5], allp[5:]):
            for k, (R, I) in enumerate(prs):
                a(f"v_pk_mul_f32 {vr(160+2*k,2)}, {vr(R,2)}, {vr(U,2)} op_sel:[0,1] op_sel_hi:[1,1]")
            for k, (R, I) in enumerate(prs):
                a(f"v_pk_mul_f32 {vr(R,2)}, {vr(R,2)}, {vr(U,2)} op_sel:[0,0] op_sel_hi:[1,0]")
            for k, (R, I) in enumerate(prs):
                a(f"v_pk_fma_f32 {vr(R,2)}, {vr(I,2)}, {vr(U,2)}, {vr(R,2)} op_sel:[0,1,0] op_sel_hi:[1,1,1] neg_lo:[0,1,0] neg_hi:[0,1,0]")
            for k, (R, I) in enumerate(prs):
                a(f"v_pk_fma_f32 {vr(I,2)}, {vr(I,2)}, {vr(U,2)}, {vr(160+2*k,2)} op_sel:[0,0,0] op_sel_hi:[1,0,1]")
    a.stamp(15)
    lds_spin(a, "K1_SS", 13, 24, "s_cmp_lg_u32 s66, 0", init=True)
    a.stamp(14)
    for j in range(4):
        h = ER(0, j)
        a(f"ds_read_b32 v{h}, v10 offset:{LDS_S-LDS_E16+128*j}")
        a(f"ds_read_b32 v{h+2}, v10 offset:{LDS_S-LDS_E16+128*j+4}")
    a("s_waitcnt lgkmcnt(0)")
    for j in range(4):
        h = ER(0, j); l8 = LAM+4*j+2
        a(f"""
        v_fma_f32 v{h+1}, v{l8}, v{h}, v{ER(1,j)}
        v_fma_f32 v{h+3}, v{l8}, v{h+2}, v{EI(1,j)}
        v_fma_f32 v{h+1}, -v{l8+1}, v{h+2}, v{h+1}
        v_fma_f32 v{h+3}, v{l8+1}, v{h}, v{h+3}
        """)
    def pass2(js):
        ops = []
        for sg in range(8):
            cols = []
            for j in js:
                pR, pI = (ER(0, j), EI(0, j)) if sg == 0 else (BR(j, sg-1), BI(j, sg-1))
                cols.append(step(BR(j, sg), BI(j, sg), pR, pI, BR(j, sg), BI(j, sg), LAM+4*j))
            for k in (0, 2):
                for c in cols: ops += [c[k], c[k+1]]
        return ops
    def pack(p, tb):
        x = 0
        for im in range(2):
            for j in (2*p, 2*p + 1):
                jj = 4*im + j
                t = tb + 8*(x % 2); x += 1
                for i in range(4):
                    A = acc(i, jj)
                    ng = "-" if im else ""
                    a(f"v_cvt_pk_bf16_f32 v{t+i}, {ng}v{A}, {ng}v{A+2}")
                    a(f"v_cvt_pk_bf16_f32 v{t+4+i}, {ng}v{A+1}, {ng}v{A+3}")
                o = (32*(2*im + p) + 16*(j & 1))*144
                a(f"ds_write_b128 v2, {vr(t,4)} offset:{o}")
                a(f"ds_write_b128 v2, {vr(t+4,4)} offset:{o+16}")
    def frags(p):
        return [(acc(i, 4*im + 2*p), 2*im + p, i) for im in range(2) for i in range(4)]
    def rd(p): return [f"ds_read_b64_tr_b16 {vr(d+2*h,2)}, v3 offset:{(32*sl+4*h)*144 + 32*i}" for d, sl, i in frags(p) for h in range(2)]
    def stv(p): return [f"s_add_u32 s65, s64, {(i*NS2 + sl)*1024}\nbuffer_store_dwordx4 {vr(d,4)}, v12, s[16:19], s65 offen{ST}" for d, sl, i in frags(p)]
    for o in pass2((0, 1)): a(o)
    pack(0, 176)
    side = [None]*6 + ["s_waitcnt lgkmcnt(0)"] + rd(0) + [None]*8 + ["s_waitcnt lgkmcnt(0)"] + stv(0)
    for o in pass2((2, 3)):
        a(o)
        if side:
            x = side.pop(0)
            if x: a(x)
    assert not side
    pack(1, 160)
    a("s_waitcnt lgkmcnt(0)")
    for o in rd(1): a(o)
    for k, o in enumerate(stv(1)):
        a(f"s_waitcnt lgkmcnt({14 - 2*k})")
        a(o)
    a("s_branch K1_CFLAG")
    a.label("K1_HELPER")
    a(f"""
    s_and_b32 s43, s3, 1
    s_lshl_b32 s64, s62, 8
    s_lshl_b32 s65, s43, 7
    s_add_u32 s64, s64, s65
    v_lshrrev_b32 v20, 3, v1
    v_and_b32 v21, 7, v1
    """)
    a(f"""
    s_cmp_lt_u32 s63, 10
    s_cbranch_scc1 K1_HSSM
    s_mul_i32 s66, s43, 10240
    s_add_u32 s66, s66, {WBASE}
    v_add_u32 v18, s66, v11
    v_add_u32 v53, s64, v1
    v_lshlrev_b32 v53, 3, v53
    """)
    helper_loop(a, True, {})
    a("s_mov_b32 s47, 0\ns_branch K1_P2")
    a.label("K1_HSSM")
    LR = 85
    def preload():
        srd(a, 20, 44, P*2); srd(a, 24, 46, P*2); srd(a, 28, 52, P*2)
        a(f"""
        s_lshl_b32 s65, s63, 7
        v_lshlrev_b32 v22, 1, v1
        v_add_u32 v22, s65, v22
        s_lshl_b32 s90, s63, 13
        s_lshl_b32 s91, s62, 10
        s_add_u32 s91, s91, s90
        buffer_load_ushort v{LR}, v22, s[20:23], 0 offen
        buffer_load_ushort v{LR+1}, v22, s[24:27], 0 offen
        buffer_load_ushort v{LR+2}, v22, s[28:31], 0 offen
        """)
    LM = 8; L16 = 188; L256 = 190
    def csq(d, s, t=22):
        a(f"""
        v_mul_f32 v{t}, v{s+1}, v{s+1}
        v_mul_f32 v{t+1}, v{s}, v{s+1}
        v_fma_f32 v{d}, v{s}, v{s}, -v{t}
        v_add_f32 v{d+1}, v{t+1}, v{t+1}
        """)
    def pre():
        lam_calc(a, LR, LR+1, LR+2, 148, LM, LM+1, coef=(6, 7))
        a(f"""
        v_add_f32 v6, v6, v6
        v_add_f32 v7, v7, v7
        v_lshlrev_b32 v22, 3, v1
        v_add_u32 v22, {LDS_UV}, v22
        ds_write_b64 v22, v[6:7]
        """)
    def pre2():
        csq(LM+2, LM); csq(LM+2, LM+2); csq(LM+2, LM+2)
        csq(L16, LM+2)
        csq(L256, L16); csq(L256, L256); csq(L256, L256); csq(L256, L256)
        a("v_mov_b32 v148, v6\nv_mov_b32 v149, v7")
        for R in range(1, 16):
            u = 148 + 2*R
            a(f"""
            v_mul_f32 v{u}, v{L16}, v{u-2}
            v_mul_f32 v{u+1}, v{L16}, v{u-1}
            v_fma_f32 v{u}, -v{L16+1}, v{u-1}, v{u}
            v_fma_f32 v{u+1}, v{L16+1}, v{u-2}, v{u+1}
            """)
        a(f"""
        v_lshlrev_b32 v22, 4, v1
        v_add_u32 v23, {LDS_LAM}, v22
        ds_write_b128 v23, {vr(LM,4)}
        s_waitcnt lgkmcnt(0)
        """)
    a(f"""
    s_mul_i32 s67, s43, 10240
    s_add_u32 s67, s67, {WBASE}
    v_add_u32 v18, s67, v10
    v_xor_b32 v16, 64, v18
    v_bfe_u32 v53, v1, 2, 2
    v_lshlrev_b32 v53, 4, v53
    v_and_b32 v22, 1, v1
    v_lshl_add_u32 v53, v22, 3, v53
    v_bfe_u32 v22, v1, 1, 1
    v_add_u32 v53, v53, v22
    v_lshl_add_u32 v53, v30, 1, v53
    v_add_u32 v53, s64, v53
    v_lshlrev_b32 v53, 3, v53
    """)
    helper_loop(a, False, {"preload": preload, ("side", 1): pre, ("side", 4): pre2})
    a("s_mov_b32 s47, 0\ns_cmp_lg_u32 s43, 0\ns_cbranch_scc1 K1_P2")
    a(f"""
    v_lshlrev_b32 v22, 4, v1
    v_lshlrev_b32 v23, 3, v1
    v_add_u32 v23, {LDS_E16}, v23
    v_add_u32 v24, 4096, v22
    """)
    if os.environ.get("CPRI", "1") == "1": a("s_setprio 3")
    lds_spin(a, "K1_SE", 25, 20, "s_cmp_ge_u32 s66, 4", init=True)
    EV = 32
    def ev(R): return EV + 2*R
    for R in range(16):
        a(f"ds_read_b64 {vr(ev(R),2)}, v23 offset:{512*R}")
    def cfma(d, lam, s, add):
        a(f"""
        v_fma_f32 v{d}, v{lam}, v{s}, v{add}
        v_fma_f32 v{d+1}, v{lam}, v{s+1}, v{add+1}
        v_fma_f32 v{d}, -v{lam+1}, v{s+1}, v{d}
        v_fma_f32 v{d+1}, v{lam+1}, v{s}, v{d+1}
        """)
    A0, A1 = 96, 100
    a(f"v_mov_b32 v{A0+2}, s95\nv_mov_b32 v{A0+3}, 0")
    a("s_waitcnt lgkmcnt(0)")
    def cfma_ip(R):
        e = ev(R); p_ = ev(R-1); d = A0 if R == 15 else e
        a(f"""
        v_fma_f32 v{d}, v{L16}, v{p_}, v{e}
        v_fma_f32 v{d+1}, v{L16}, v{p_+1}, v{e+1}
        v_fma_f32 v{d}, -v{L16+1}, v{p_+1}, v{d}
        v_fma_f32 v{d+1}, v{L16+1}, v{p_}, v{d+1}
        """)
    for R in range(1, 16): cfma_ip(R)
    a(f"""
    buffer_store_dwordx4 {vr(A0,4)}, v22, s[76:79], s91 offen sc1
    s_mov_b32 s67, 0
    """)
    PV = 64
    RP = 112
    a("s_cmp_eq_u32 s62, 0\ns_cbranch_scc1 K1_POLL0")
    for rb in range(7):
        a(f"buffer_load_dwordx4 {vr(PV+4*rb,4)}, v{22 if rb < 4 else 24}, s[76:79], s90 offen offset:{1024*(rb%4)} sc1")
    a.label("K1_POLL0")
    for R in range(1, 16):
        t = RP + 2*(R-1); c_ = ev(R-1)
        a(f"""
        v_mul_f32 v{t}, v6, v{c_}
        v_mul_f32 v{t+1}, v6, v{c_+1}
        v_fma_f32 v{t}, -v7, v{c_+1}, v{t}
        v_fma_f32 v{t+1}, v7, v{c_}, v{t+1}
        """)
    a("s_cbranch_scc1 K1_POLLOK\ns_branch K1_POLL1")
    a.label("K1_POLL")
    for rb in range(7):
        a(f"buffer_load_dwordx4 {vr(PV+4*rb,4)}, v{22 if rb < 4 else 24}, s[76:79], s90 offen offset:{1024*(rb%4)} sc1")
    a.label("K1_POLL1")
    a("s_waitcnt vmcnt(0)\ns_mov_b64 s[68:69], -1")
    lab = a.newlabel("K1_CHK")
    for rb in range(7):
        a(f"""
        s_cmp_le_u32 s62, {rb}
        s_cbranch_scc1 {lab}
        v_cmp_eq_u32 vcc, s95, v{PV+4*rb+2}
        s_and_b64 s[68:69], s[68:69], vcc
        """)
    a.label(lab)
    a(f"""
    s_cmp_eq_u64 s[68:69], -1
    s_cbranch_scc1 K1_POLLOK
    s_add_u32 s67, s67, 1
    s_cmp_lt_u32 s67, 100000
    s_sleep 1
    s_cbranch_scc1 K1_POLL
    """)
    a.label("K1_POLLOK")
    a("v_mov_b32 v104, 0\nv_mov_b32 v105, 0")
    lab = a.newlabel("K1_CAR")
    for rb in range(7):
        a(f"s_cmp_le_u32 s62, {rb}\ns_cbranch_scc1 {lab}")
        cfma(106, L256, 104, PV+4*rb)
        a("v_mov_b32 v104, v106\nv_mov_b32 v105, v107")
    a.label(lab)
    for R0 in range(0, 16, 4):
        Rs = range(R0, R0 + 4)
        def dst(R): return 108 if R == 0 else RP + 2*(R-1)
        for R in Rs:
            u = 148 + 2*R; t = dst(R)
            if R == 0: a(f"v_mul_f32 v{t}, v{u}, v104\nv_mul_f32 v{t+1}, v{u}, v105")
            else: a(f"v_fma_f32 v{t}, v{u}, v104, v{t}\nv_fma_f32 v{t+1}, v{u}, v105, v{t+1}")
        for R in Rs:
            u = 148 + 2*R; t = dst(R)
            a(f"v_fma_f32 v{t}, -v{u+1}, v105, v{t}\nv_fma_f32 v{t+1}, v{u+1}, v104, v{t+1}")
        for R in Rs: a(f"ds_write_b64 v23, {vr(dst(R),2)} offset:{LDS_S-LDS_E16+512*R}")
    a("v_mov_b32 v4, 1\nds_write_b32 v25, v4 offset:24\ns_mov_b32 s47, 0\ns_setprio 0")
    phase2(a)
    a.label("K1_END")
    a("s_endpgm")
    return a.text(), kd("gemm1_kernel", 192+60, 102, 192), f"; @launch kernel=gemm1_kernel grid=(256,1,1) block=(512,1,1) lds={LDS_TOTAL}"
```
